```python
import torch

def _softmax(x, axis=-1):
    return torch.softmax(x, dim=axis)
def _gelu(x):
    return torch.nn.functional.gelu(x, approximate="tanh")
def _silu(x):
    return torch.nn.functional.silu(x)
def _sigmoid(x):
    return torch.sigmoid(x)
def _layernorm(x, axis=-1, eps=1e-5):
    m = x.mean(dim=axis, keepdim=True)
    v = x.var(dim=axis, keepdim=True, unbiased=False)
    return (x - m) / torch.sqrt(v + eps)
def _scatter_add(tgt, idx, src, axis=0):
    return tgt.clone().index_add_(axis, idx, src)
def _segment_sum(src, seg, n):
    out = torch.zeros((n,) + src.shape[1:], dtype=src.dtype)
    return out.index_add_(0, seg, src)
def _pad(x, pw):
    flat = tuple(v for pair in reversed(pw) for v in pair)
    return torch.nn.functional.pad(x, flat)

kernel_name = 'standalone__gqa_block_cached__near_ridge'

def setup_inputs():

    _w = (lambda a: (lambda t: t.to(torch.bfloat16) if t.is_floating_point() else t)(torch.as_tensor(a)))
    B, Sq, D = 16, 112, 448
    Hq, Hkv, Sk, Dh = 16, 8, 512, 256
    assert Hq % Hkv == 0, (Hq, Hkv)
    return {
        "x": _w((lambda *s: torch.randn(*s, dtype=torch.bfloat16) * 0.8)(B, Sq, D)),
        "k_cache": _w((lambda *s: torch.randn(*s, dtype=torch.bfloat16) * 0.8)(B, Hkv, Sk, Dh)),
        "v_cache": _w((lambda *s: torch.randn(*s, dtype=torch.bfloat16) * 0.05)(B, Hkv, Sk, Dh)),
        "wq": _w((lambda *s: torch.randn(*s, dtype=torch.bfloat16) * 0.8)(D, Hq * Dh) * (D ** -0.5)),
        "wo": _w((lambda *s: torch.randn(*s, dtype=torch.bfloat16) * 0.05)(Hq * Dh, D) * ((Hq * Dh) ** -0.5)),
    }

def reference(x, k_cache, v_cache, wq, wo):
    B, Sq, D = x.shape
    Hq, Dh = 16, 256
    Hkv = k_cache.shape[1]
    rep = Hq // Hkv
    q = (lambda x, *d: x.permute(*d))((x @ wq).reshape(B, Sq, Hq, Dh), 0, 2, 1, 3)
    k = (lambda x, n, axis: torch.repeat_interleave(x, n, dim=axis))(k_cache, rep, axis=1)
    v = (lambda x, n, axis: torch.repeat_interleave(x, n, dim=axis))(v_cache, rep, axis=1)
    scores = torch.einsum("bhqd,bhkd->bhqk", q, k) * (Dh ** -0.5)
    p = _softmax(scores, axis=-1)
    o = torch.einsum("bhqk,bhkd->bhqd", p, v)
    return (lambda x, *d: x.permute(*d))(o, 0, 2, 1, 3).reshape(B, Sq, Hq * Dh) @ wo
```

```python
import sys, math, struct, argparse

def f2u(x):
    return struct.unpack("<I", struct.pack("<f", x))[0]

def V(lo, n=1): return {("v", lo + i) for i in range(n)}
def Ac(lo, n=1): return {("a", lo + i) for i in range(n)}
def vr(lo, n): return f"v[{lo}:{lo+n-1}]"
def ar(lo, n): return f"a[{lo}:{lo+n-1}]"

class Ins:
    def __init__(s, text, kind, rd=(), wr=(), cost=4, after=-1, before=1 << 30, tag=None, rdc=()):
        s.text, s.kind, s.rd, s.wr, s.cost = text, kind, set(rd), set(wr), cost
        s.after, s.before, s.tag, s.rdc = after, before, tag, set(rdc)

class Emitter:
    def __init__(s):
        s.out = []; s.pos = 0
        s.dsq = []
        s.vmq = []
        s.lastw = {}
        s.lastc = {}
        s.lastst = {}
        s.nops = 0
        s.maxds = 0
    def raw(s, text, n=1):
        s.out.append("    " + text); s.pos += n
    def label(s, l): s.out.append(l + ":")
    def comment(s, c): s.out.append("    ; " + c)
    def need_nops(s, i):
        need = 0
        def req(p, d):
            nonlocal need
            need = max(need, d - (s.pos - p - 1))
        for r in i.rd | i.wr:
            if r in s.lastw:
                k, p = s.lastw[r]
                if k == "mfma":
                    if i.kind == "mfma":
                        if r in i.rd and r not in i.rdc: req(p, 12)
                    else:
                        req(p, 12)
                if r in i.rd:
                    if k in ("valu", "trans") and i.kind == "mfma": req(p, 2)
                    if k == "trans" and i.kind in ("valu", "trans", "perm", "vmem", "ds"): req(p, 1)
                    if k in ("valu", "trans") and i.kind == "perm": req(p, 2)
                    if k == "salu" and r == ("s", "m0") and i.kind == "vmem": req(p, 1)
        if i.kind in ("valu", "trans", "perm"):
            for r in i.wr:
                if r in s.lastc: req(s.lastc[r], 7)
                if r in s.lastst: req(s.lastst[r], 2)
        return need
    def ds_wait_needed(s, i):
        idx = -1
        for k, d in enumerate(s.dsq):
            if d & (i.rd | i.wr): idx = k
        return idx
    def emit(s, i):
        idx = s.ds_wait_needed(i)
        if idx >= 0:
            n = len(s.dsq) - idx - 1
            assert n <= 15
            s.raw(f"s_waitcnt lgkmcnt({n})")
            s.dsq = s.dsq[idx + 1:]
        n = s.need_nops(i)
        if n > 0:
            s.nops += n
            while n > 0:
                k = min(n, 16); s.raw(f"s_nop {k-1}", k); n -= k
        s.out.append("    " + i.text)
        p = s.pos; s.pos += 1
        kind = "valu" if i.kind == "perm" else i.kind
        for r in i.wr: s.lastw[r] = (kind, p)
        if i.kind == "mfma":
            for r in i.rdc: s.lastc[r] = p
        if i.kind == "ds":
            s.dsq.append(set(i.wr)); s.maxds = max(s.maxds, len(s.dsq))
            assert len(s.dsq) <= 15, "too many outstanding ds"
        if i.kind == "vmem":
            s.vmq.append(i.tag)
            if i.tag == "store":
                for r in i.rd: s.lastst[r] = p
    def wait_vm(s, tags):
        idx = -1
        for k, t in enumerate(s.vmq):
            if t in tags: idx = k
        for t in tags:
            assert s.vmq.count(t) == 4, f"tile {t} not fully issued before its wait ({s.vmq.count(t)})"
        n = min(63, len(s.vmq) - idx - 1)
        s.raw(f"s_waitcnt vmcnt({n})")

vLANE = 1
vX = 2
vWQ = 6
vWT = 10
vK = 11
vV = 13
vWO = 14
vST = 15
aX = 16
aWQ = 20
aK = 24
PVACC = [32, 64]
SACC = [64, 80]
NEGM = 96
aWO = 112
aWT = 114
aV = 116
vL = 118; vMX = 119; vT0 = 120; vT1 = 121; vRINV = 122; vT2 = 123; vT3 = 124; vT4 = 125
QACC = 128
PREG = 128
OUTACC = [128, 160]
AQ = 0; AO = 64; AXF = 64; AFR = 176; NFR = 8
sSRD_X, sSRD_WQ, sSRD_K, sSRD_V, sSRD_WO, sSRD_WS = 16, 20, 24, 28, 32, 36
sLINK = 40; sWB = 42; sOFF = 43; sC = 44; sT = 45; sW = 3; sPAR = 46
sSTAMP = 50
def srd(n): return f"s[{n}:{n+3}]"

NSLOT = 10
SLOT = 16384

def build(cfg):
    D = cfg.get("D", 4)
    BUD = cfg.get("budget", 24)
    stamps = cfg.get("stamps", [])
    ntKV = "nt" if cfg.get("ntkv", 1) else ""
    ntW = "nt" if cfg.get("ntw", 0) else ""
    ntX = "nt" if cfg.get("ntx", 0) else ""
    stfl = cfg.get("stfl", "sc1")
    E = Emitter()
    R = E.raw

    steps = [("WQ", t) for t in range(10)] + [("WT", q) for q in range(4)] + [("K", i) for i in range(16)] \
          + [("V", q, kt) for q in range(4) for kt in range(4)] + [("WO", p, kh) for p in range(7) for kh in range(2)]
    NS = len(steps)
    vis = {}; rel = {}
    for s_, t in enumerate(steps):
        vis[t] = s_ - 1
        rel[t] = s_ + 1
    for j in range(7):
        vis[("X", j)] = min(2 * j - 1, 9)
        rel[("X", j)] = min(2 * j, 10)
    order = cfg.get("order")
    if order is None:
        kearly = cfg.get("kearly", 3)
        xw = []
        for j in range(5):
            xw += [("X", j), ("WQ", 2 * j), ("WQ", 2 * j + 1)]
        xw += [("X", 5), ("X", 6)] + [("WT", q) for q in range(4)]
        first = NSLOT - kearly
        order = xw[:first] + [("K", i) for i in range(kearly)] + xw[first:] + [("K", i) for i in range(kearly, 16)] \
              + [t for t in steps if t[0] in ("V", "WO")]
    assert sorted(map(str, order)) == sorted(map(str, list(steps) + [("X", j) for j in range(7)]))
    slot_of = {}; issue_at = {}
    free = list(range(NSLOT)); qi = 0
    held = {}
    for bar in range(-2, NS):
        if bar >= -1:
            for t, sl in list(held.items()):
                if rel[t] <= bar:
                    free.append(sl); del held[t]
        free.sort()
        while free and qi < len(order):
            t = order[qi]; qi += 1
            sl = free.pop(0); slot_of[t] = sl; held[t] = sl; issue_at[t] = bar
    for t in order:
        assert issue_at[t] < vis[t], f"tile {t} issued at {issue_at[t]} but needed at {vis[t]}"
    if cfg.get("verbose"):
        for t in order: print(t, "slot", slot_of[t], "issue", issue_at[t], "vis", vis[t], file=sys.stderr)

    M0 = {("s", "m0")}
    def dma_tile(t):
        L = []
        sl = slot_of[t]
        L.append(Ins(f"s_add_u32 m0, s{sWB}, {sl*SLOT}", "salu", wr=M0))
        def smov(val):
            L.append(Ins(f"s_mov_b32 s{sOFF}, {val}", "salu"))
        def ld(vreg, sr, j, fl):
            L.append(Ins(f"buffer_load_dwordx4 v{vreg}, {srd(sr)}, s{sOFF} offen offset:{j*1024} {fl} lds".replace("  ", " "),
                         "vmem", rd=M0 | V(vreg), tag=t, cost=cfg.get("dmacost", 4)))
        k = t[0]
        if k == "X":
            smov(128 * t[1])
            for j in range(4): ld(vX + j, sSRD_X, j, ntX)
        elif k == "WQ":
            smov(t[1] * 32 * 8192)
            for j in range(4): ld(vWQ + j, sSRD_WQ, j, ntW)
        elif k == "WT":
            for j in range(4):
                smov(320 * 8192 + t[1] * 128 + j * (8 * 8192 - 1024)); ld(vWT, sSRD_WQ, j, ntW)
        elif k == "K":
            smov(t[1] * 16384)
            for j in range(4): ld(vK + (j & 1), sSRD_K, j, ntKV)
        elif k == "V":
            smov(t[2] * 65536 + t[1] * 128)
            for j in range(4): ld(vV, sSRD_V, j, ntKV)
        elif k == "WO":
            for j in range(4):
                smov(t[2] * 128 * 896 + t[1] * 128 + j * (8 * 896 - 1024)); ld(vWO, sSRD_WO, j, ntW)
        return L

    win = {}
    pend = []
    def ds_read(kind, dst_lo, n, areg, byteoff):
        L = []
        wneed = byteoff >> 16
        cur = win.get(areg, 0)
        if cur != wneed:
            d = (wneed - cur) * 65536
            L.append(Ins(f"v_add_u32 v{areg}, {d & 0xffffffff:#x}, v{areg}", "valu", rd=V(areg), wr=V(areg)))
            win[areg] = wneed
        L.append(Ins(f"{kind} {ar(dst_lo, n)}, v{areg} offset:{byteoff & 0xffff}", "ds", rd=V(areg), wr=Ac(dst_lo, n) | {("slot", byteoff // SLOT, len(pend))}))
        pend.append(0)
        return L

    def frag_reads(i):
        s_, g = divmod(i, 16)
        t = steps[s_]; base = slot_of[t] * SLOT
        fr = AFR + 4 * (i % NFR)
        k = t[0]
        if k == "K":
            return ds_read("ds_read_b128", fr, 4, aK + (g & 7), base + (g >> 3) * 256)
        L = []
        for e in range(2):
            if k == "WQ":
                ks, mt = g >> 3, g & 7
                a_, off = aWQ + (mt & 3), ks * 8192 + e * 2048 + (mt >> 2) * 256
            elif k == "WT":
                a_, off = aWT + (g & 1), (g >> 1) * 2048 + e * 512
            elif k == "V":
                a_, off = aV + (g & 1), (g >> 1) * 2048 + e * 1024
            else:
                a_, off = aWO + (g & 1), (g >> 1) * 2048 + e * 1024
            L += ds_read("ds_read_b64_tr_b16", fr + 2 * e, 2, a_, base + off)
        return L

    def mfma(i):
        s_, g = divmod(i, 16)
        t = steps[s_]; k = t[0]
        fr = AFR + 4 * (i % NFR)
        czero = False; cneg = False
        if k == "WQ":
            ks, mt = g >> 3, g & 7
            kap = 2 * t[1] + ks
            acc = QACC + 16 * mt; B = ("a", AXF + 4 * kap); czero = kap == 0
        elif k == "WT":
            kap = 20 + (g >> 1)
            acc = QACC + 16 * (2 * t[1] + (g & 1)); B = ("a", AXF + 4 * kap)
        elif k == "K":
            acc = SACC[t[1] & 1]; B = ("a", AQ + 4 * g)
            if g == 0:
                if t[1] < 2: czero = True
                else: cneg = True
        elif k == "V":
            acc = PVACC[t[1] & 1] + 16 * (g & 1); B = ("v", PREG + 4 * (8 * t[2] + (g >> 1)))
            czero = t[2] == 0 and (g >> 1) == 0
        else:
            acc = OUTACC[t[1] & 1] + 16 * (g & 1); B = ("a", AO + 4 * (8 * t[2] + (g >> 1)))
            czero = t[2] == 0 and (g >> 1) == 0
        Bt = ar(B[1], 4) if B[0] == "a" else vr(B[1], 4)
        Bs = Ac(B[1], 4) if B[0] == "a" else V(B[1], 4)
        if czero: Ct, Cs = "0", set()
        elif cneg: Ct, Cs = vr(NEGM, 16), V(NEGM, 16)
        else: Ct, Cs = vr(acc, 16), V(acc, 16)
        return Ins(f"v_mfma_f32_32x32x16_bf16 {vr(acc,16)}, {ar(fr,4)}, {Bt}, {Ct}", "mfma",
                   rd=Ac(fr, 4) | Bs | Cs, wr=V(acc, 16), rdc=Cs, cost=8)

    def valu(text, rd, wr, after, before, kind="valu", cost=4):
        return Ins(text, kind, rd=rd, wr=wr, after=after, before=before, cost=cost)
    streams = []
    stubs = []
    S0 = 14 * 16; P0 = 30 * 16; O0 = 46 * 16; END = 60 * 16
    L = []
    for q in range(4):
        aft = (10 + q) * 16 + 15
        for m in range(2):
            T = 2 * q + m
            for t in range(2):
                ts = 2 * T + t
                bef = S0 + ts
                for io in range(4):
                    r = QACC + 16 * T + 8 * t + 2 * io
                    L.append(valu(f"v_mul_f32 v{r}, s{sC}, v{r}", V(r), V(r), aft, bef))
                    L.append(valu(f"v_mul_f32 v{r+1}, s{sC}, v{r+1}", V(r + 1), V(r + 1), aft, bef))
                    L.append(valu(f"v_cvt_pk_bf16_f32 v{r}, v{r}, v{r+1}", V(r, 2), V(r), aft, bef))
                    L.append(valu(f"v_accvgpr_write_b32 a{AQ+4*ts+io}, v{r}", V(r), Ac(AQ + 4 * ts + io), aft, bef))
    streams.append(L)
    L = []
    for i in range(16):
        acc = SACC[i & 1]
        aft = (14 + i) * 16 + 15
        bef = min((16 + i) * 16, P0 + 16 * 3) if i < 14 else P0 + 16 * 3
        if i >= 14: bef = P0 + 48 + 2 * (2 * (i - 12))
        def mx(first):
            L.append(valu(f"v_max3_f32 v{vMX}, v{acc}, v{acc+1}, v{acc+2}", V(acc, 3), V(vMX), aft, bef))
            for r in range(3, 15, 2):
                L.append(valu(f"v_max3_f32 v{vMX}, v{vMX}, v{acc+r}, v{acc+r+1}", V(vMX) | V(acc + r, 2), V(vMX), aft, bef))
            L.append(valu(f"v_max_f32 v{vMX}, v{vMX}, v{acc+15}", V(vMX) | V(acc + 15), V(vMX), aft, bef))
        if i == 0:
            b2 = 16 * 16
            mx(True)
            L.append(valu(f"v_mov_b32 v{vT0}, v{vMX}", V(vMX), V(vT0), aft, b2))
            L.append(valu(f"v_mov_b32 v{vL}, 0", set(), V(vL), aft, b2))
            L.append(valu(f"v_permlane32_swap_b32 v{vMX}, v{vT0}", V(vMX) | V(vT0), V(vMX) | V(vT0), aft, b2, kind="perm"))
            L.append(valu(f"v_max_f32 v{vMX}, v{vMX}, v{vT0}", V(vMX) | V(vT0), V(vMX), aft, b2))
            L.append(valu(f"v_sub_f32 v{NEGM}, 0, v{vMX}", V(vMX), V(NEGM), aft, b2))
            for r in range(1, 16):
                L.append(valu(f"v_sub_f32 v{NEGM+r}, 0, v{vMX}", V(vMX), V(NEGM + r), aft, b2))
        if i < 2:
            for r in range(16):
                L.append(valu(f"v_add_f32 v{acc+r}, v{acc+r}, v{NEGM}", V(acc + r) | V(NEGM), V(acc + r), aft, bef))
        if i >= 1:
            mx(False)
            L.append(valu(f"v_cmp_lt_f32 vcc, s{sT}, v{vMX}", V(vMX), set(), aft, bef))
            L.append(Ins(f"s_cbranch_vccnz L_stub{i}\nL_ret{i}:", "salu", after=aft, before=bef))
            stubs.append(i)
        for r in range(0, 16, 2):
            L.append(valu(f"v_exp_f32 v{acc+r}, v{acc+r}", V(acc + r), V(acc + r), aft, bef, kind="trans", cost=8))
            L.append(valu(f"v_exp_f32 v{acc+r+1}, v{acc+r+1}", V(acc + r + 1), V(acc + r + 1), aft, bef, kind="trans", cost=8))
            L.append(valu(f"v_add_f32 v{vL}, v{vL}, v{acc+r}", V(vL) | V(acc + r), V(vL), aft, bef))
            L.append(valu(f"v_cvt_pk_bf16_f32 v{PREG+8*i+r//2}, v{acc+r}, v{acc+r+1}", V(acc + r, 2), V(PREG + 8 * i + r // 2), aft, bef))
            L.append(valu(f"v_add_f32 v{vL}, v{vL}, v{acc+r+1}", V(vL) | V(acc + r + 1), V(vL), aft, bef))
    bef = P0 + 64
    aft = P0
    L.append(valu(f"v_mov_b32 v{vT0}, v{vL}", V(vL), V(vT0), aft, bef))
    L.append(valu(f"v_permlane32_swap_b32 v{vL}, v{vT0}", V(vL) | V(vT0), V(vL) | V(vT0), aft, bef, kind="perm"))
    L.append(valu(f"v_add_f32 v{vL}, v{vL}, v{vT0}", V(vL) | V(vT0), V(vL), aft, bef))
    L.append(valu(f"v_rcp_f32 v{vRINV}, v{vL}", V(vL), V(vRINV), aft, bef, kind="trans", cost=8))
    for q in range(4):
        aft = (30 + 4 * q + 3) * 16 + 15
        for m in range(2):
            for t in range(2):
                ko = 4 * q + 2 * m + t
                bef = O0 + (2 * ko if ko < 8 else 16 + 2 * (ko - 8))
                if q < 2: bef = min(bef, (30 + 4 * (q + 2)) * 16)
                for io in range(4):
                    r = PVACC[q & 1] + 16 * m + 8 * t + 2 * io
                    L.append(valu(f"v_mul_f32 v{r}, v{vRINV}, v{r}", V(r) | V(vRINV), V(r), aft, bef))
                    L.append(valu(f"v_mul_f32 v{r+1}, v{vRINV}, v{r+1}", V(r + 1) | V(vRINV), V(r + 1), aft, bef))
                    L.append(valu(f"v_cvt_pk_bf16_f32 v{r}, v{r}, v{r+1}", V(r, 2), V(r), aft, bef))
                    L.append(valu(f"v_accvgpr_write_b32 a{AO+4*ko+io}, v{r}", V(r), Ac(AO + 4 * ko + io), aft, bef))
    for p in range(7):
        aft = (46 + 2 * p + 1) * 16 + 15
        bef = (46 + 2 * (p + 2)) * 16 if p < 5 else 1 << 30
        L.append(Ins(f"s_mov_b32 s{sPAR+1}, {p*4096}", "salu", after=aft, before=bef))
        for m in range(2):
            for u in range(2):
                r = OUTACC[p & 1] + 16 * m + 8 * u
                d = OUTACC[p & 1] + 16 * m + 8 * u
                for io in range(4):
                    L.append(valu(f"v_cvt_pk_bf16_f32 v{d+io}, v{r+2*io}, v{r+2*io+1}", V(r + 2 * io, 2), V(d + io), aft, bef))
                L.append(Ins(f"buffer_store_dwordx4 {vr(d,4)}, v{vST}, {srd(sSRD_WS)}, s{sPAR+1} offen offset:{(2*m+u)*1024} {stfl}",
                             "vmem", rd=V(d, 4) | V(vST), tag="store", after=aft, before=bef, cost=8))
    streams.append(L)

    E.out.append(f"""; fused GQA block: q-proj + attention + out-proj partials (main), then head reduction (reduce)
; @launch kernel=gqa_main_kernel grid=(256,1,1) block=(256,1,1) lds=163840
; @launch kernel=gqa_reduce_kernel grid=(448,1,1) block=(256,1,1) lds=0
.amdgcn_target "amdgcn-amd-amdhsa--gfx950"
.text
.globl gqa_main_kernel
.p2align 8
.type gqa_main_kernel,@function
gqa_main_kernel:""")
    R("s_cmp_ge_u32 s2, 256")
    R("s_cbranch_scc1 L_exit")
    R("s_load_dwordx8 s[8:15], s[0:1], 0")
    R("s_load_dwordx2 s[4:5], s[0:1], 32")
    R("s_load_dwordx2 s[6:7], s[0:1], 56")
    if stamps: R(f"s_memtime s[{sSTAMP}:{sSTAMP+1}]")
    if stamps: R(f"s_memrealtime s[{sSTAMP+40}:{sSTAMP+41}]")
    t0, t1, t2, t3, t4, t5 = 32, 33, 34, 35, 36, 37
    vA, vP8, vB2, vP32, vG4, vW = 38, 39, 40, 41, 42, 43
    R(f"v_lshrrev_b32 v{vW}, 6, v0")
    R(f"v_and_b32 v{vLANE}, 63, v0")
    R(f"v_readfirstlane_b32 s{sW}, v{vW}")
    R(f"v_lshrrev_b32 v{vA}, 3, v{vLANE}")
    R(f"v_and_b32 v{vP8}, 7, v{vLANE}")
    R(f"v_lshrrev_b32 v{vB2}, 5, v{vLANE}")
    R(f"v_and_b32 v{vP32}, 31, v{vLANE}")
    R(f"v_lshrrev_b32 v{vG4}, 4, v{vLANE}")
    R("s_and_b32 s47, s2, 7")
    R("s_bfe_u32 s46, s2, 0x10003")
    R("s_lshr_b32 s48, s2, 4")
    R("s_lshl_b32 s49, s47, 1")
    R("s_add_u32 s49, s49, s46")
    R(f"s_lshl_b32 s{sWB}, s{sW}, 12")
    R(f"v_lshl_add_u32 v{t0}, v{vW}, 5, v{vA}")
    R(f"v_mul_u32_u24 v{t1}, 896, v{t0}")
    R(f"v_xor_b32 v{t2}, v{vP8}, v{vG4}")
    R(f"v_lshlrev_b32 v{t2}, 4, v{t2}")
    R(f"v_xor_b32 v{t3}, 64, v{t2}")
    R(f"v_add_u32 v{vX}, v{t1}, v{t2}")
    R(f"v_add_u32 v{vX+1}, v{t1}, v{t3}")
    R(f"v_add_u32 v{vX+2}, {2*6144}, v{vX}")
    R(f"v_add_u32 v{vX+3}, {3*6144}, v{vX+1}")
    R(f"v_add_u32 v{vX+1}, {6144}, v{vX+1}")
    R(f"v_lshl_add_u32 v{t4}, v{vW}, 3, v{vB2}")
    R(f"v_lshlrev_b32 v{t2}, 2, v{vB2}")
    R(f"v_xor_b32 v{t2}, v{vP32}, v{t2}")
    R(f"v_lshlrev_b32 v{t2}, 4, v{t2}")
    R(f"v_xor_b32 v{t3}, 128, v{t2}")
    R(f"v_lshl_add_u32 v{vWQ}, v{t4}, 13, v{t2}")
    R(f"v_lshl_add_u32 v{vWQ+1}, v{t4}, 13, v{t3}")
    R(f"v_add_u32 v{vWQ+2}, {2*15360}, v{vWQ}")
    R(f"v_add_u32 v{vWQ+3}, {3*15360}, v{vWQ+1}")
    R(f"v_add_u32 v{vWQ+1}, {15360}, v{vWQ+1}")
    R(f"v_lshl_add_u32 v{t2}, v{vW}, 1, v{vB2}")
    R(f"v_xor_b32 v{t2}, v{vP32}, v{t2}")
    R(f"v_lshlrev_b32 v{t2}, 4, v{t2}")
    R(f"v_xor_b32 v{t3}, 128, v{t2}")
    R(f"v_lshl_add_u32 v{vK}, v{t4}, 9, v{t2}")
    R(f"v_lshl_add_u32 v{vK+1}, v{t4}, 9, v{t3}")
    R("s_waitcnt lgkmcnt(0)")
    R("s_mul_i32 s60, s48, 100352")
    R(f"s_add_u32 s{sSRD_X}, s8, s60"); R(f"s_addc_u32 s{sSRD_X+1}, s9, 0")
    R(f"s_mov_b32 s{sSRD_X+2}, 100352"); R(f"s_mov_b32 s{sSRD_X+3}, 0x20000")
    R("s_lshl_b32 s60, s49, 9")
    R(f"s_add_u32 s{sSRD_WQ}, s14, s60"); R(f"s_addc_u32 s{sSRD_WQ+1}, s15, 0")
    R(f"s_sub_u32 s{sSRD_WQ+2}, {448*8192}, s60"); R(f"s_mov_b32 s{sSRD_WQ+3}, 0x20000")
    R("s_lshl_b32 s60, s48, 3"); R("s_add_u32 s60, s60, s47"); R("s_lshl_b32 s60, s60, 18")
    R(f"s_add_u32 s{sSRD_K}, s10, s60"); R(f"s_addc_u32 s{sSRD_K+1}, s11, 0")
    R(f"s_mov_b32 s{sSRD_K+2}, 262144"); R(f"s_mov_b32 s{sSRD_K+3}, 0x20000")
    R(f"s_add_u32 s{sSRD_V}, s12, s60"); R(f"s_addc_u32 s{sSRD_V+1}, s13, 0")
    R(f"s_mov_b32 s{sSRD_V+2}, 262144"); R(f"s_mov_b32 s{sSRD_V+3}, 0x20000")
    R(f"v_and_b32 v{t2}, 1, v{vG4}")
    R(f"v_lshlrev_b32 v{t2}, 2, v{t2}")
    R(f"v_xor_b32 v{t2}, v{vP8}, v{t2}")
    R(f"v_lshlrev_b32 v{t5}, 4, v{t2}")
    R(f"v_lshl_add_u32 v{vWT}, v{t0}, 13, v{t5}")
    pro = [t for t in order if issue_at[t] == -2]
    for t in pro:
        for i in dma_tile(t): E.emit(i)
    R("s_mul_i32 s60, s49, 229376")
    R(f"s_add_u32 s{sSRD_WO}, s4, s60"); R(f"s_addc_u32 s{sSRD_WO+1}, s5, 0")
    R(f"s_mov_b32 s{sSRD_WO+2}, 229376"); R(f"s_mov_b32 s{sSRD_WO+3}, 0x20000")
    R("s_lshl_b32 s60, s48, 4"); R("s_add_u32 s60, s60, s49"); R("s_lshl_b32 s60, s60, 2"); R(f"s_add_u32 s60, s60, s{sW}")
    R("s_mul_i32 s60, s60, 28672")
    R(f"s_add_u32 s{sSRD_WS}, s6, s60"); R(f"s_addc_u32 s{sSRD_WS+1}, s7, 0")
    R(f"s_mov_b32 s{sSRD_WS+2}, 28672"); R(f"s_mov_b32 s{sSRD_WS+3}, 0x20000")
    R(f"s_mov_b32 s{sC}, {f2u(math.log2(math.e) / 16.0):#x}")
    R(f"s_mov_b32 s{sT}, {f2u(cfg.get('T', 20.0)):#x}")
    R(f"v_add_u32 v{vWO}, v{t1}, v{t5}")
    R(f"v_and_b32 v{t2}, 1, v{vA}")
    R(f"v_lshl_add_u32 v{t2}, v{vG4}, 3, v{t2}")
    R(f"v_lshl_add_u32 v{t2}, v{vW}, 5, v{t2}")
    R(f"v_lshl_add_u32 v{vV}, v{t2}, 9, v{t5}")
    R(f"v_lshl_add_u32 v{t2}, v{vW}, 5, v{vP32}")
    R(f"v_lshlrev_b32 v{vST}, 4, v{vLANE}")
    R(f"v_mov_b32 v{t3}, 0x40000000")
    R(f"v_cmp_lt_u32 vcc, 111, v{t2}")
    R("s_nop 1")
    R(f"v_cndmask_b32 v{vST}, v{vST}, v{t3}, vcc")
    R(f"v_bfe_u32 v{t2}, v{vLANE}, 1, 3")
    R(f"v_xor_b32 v{t2}, v{t2}, v{vB2}")
    R(f"v_lshlrev_b32 v{t2}, 4, v{t2}")
    R(f"v_lshl_add_u32 v{t2}, v{vP32}, 7, v{t2}")
    R(f"v_lshl_add_u32 v{aX}, v{vW}, 12, v{t2}")
    for s_ in range(1, 4): R(f"v_xor_b32 v{aX+s_}, {32*s_}, v{aX}")
    vR, vC4, vG1, vSW = 44, 45, 46, 47
    R(f"v_bfe_u32 v{vR}, v{vLANE}, 2, 2")
    R(f"v_and_b32 v{vC4}, 3, v{vLANE}")
    R(f"v_and_b32 v{vG1}, 1, v{vG4}")
    R(f"v_and_b32 v{t2}, 1, v{vC4}")
    R(f"v_lshrrev_b32 v{t3}, 1, v{vC4}")
    R(f"v_lshl_add_u32 v{vSW}, v{t2}, 1, v{t3}")
    R(f"v_lshl_add_u32 v{vSW}, v{vG1}, 2, v{vSW}")
    R(f"v_lshlrev_b32 v{vSW}, 3, v{vSW}")
    R(f"v_lshl_add_u32 v{t4}, v{vB2}, 3, v{vR}")
    R(f"v_lshl_add_u32 v{t0}, v{t4}, 9, v{vSW}")
    R(f"v_lshl_add_u32 v{aWQ}, v{vR}, 6, v{t0}")
    for m in range(1, 4): R(f"v_xor_b32 v{aWQ+m}, {64*m}, v{aWQ}")
    R(f"v_lshrrev_b32 v{t1}, 1, v{vR}")
    R(f"v_lshl_add_u32 v{t0}, v{t4}, 7, v{vSW}")
    R(f"v_lshl_add_u32 v{aWT}, v{t1}, 6, v{t0}")
    R(f"v_xor_b32 v{aWT+1}, 64, v{aWT}")
    R(f"v_lshl_add_u32 v{t4}, v{vB2}, 2, v{vR}")
    R(f"v_lshlrev_b32 v{t4}, 7, v{t4}")
    R(f"v_lshl_add_u32 v{t4}, v{t1}, 6, v{t4}")
    R(f"v_lshl_add_u32 v{t0}, v{vG1}, 2, v{vC4}")
    R(f"v_lshl_add_u32 v{aV}, v{t0}, 3, v{t4}")
    R(f"v_xor_b32 v{aV+1}, 64, v{aV}")
    R(f"v_lshl_add_u32 v{t0}, v{vG1}, 1, v{t3}")
    R(f"v_lshl_add_u32 v{t0}, v{t2}, 2, v{t0}")
    R(f"v_lshl_add_u32 v{aWO}, v{t0}, 3, v{t4}")
    R(f"v_xor_b32 v{aWO+1}, 64, v{aWO}")
    R(f"v_bfe_u32 v{t0}, v{vLANE}, 1, 2")
    R(f"v_bfe_u32 v{t1}, v{vLANE}, 3, 2")
    R(f"v_and_b32 v{t2}, 1, v{vLANE}")
    R(f"v_lshl_add_u32 v{t2}, v{t1}, 1, v{t2}")
    R(f"v_lshl_add_u32 v{t2}, v{t0}, 3, v{t2}")
    R(f"v_and_b32 v{t3}, 15, v{vLANE}")
    R(f"v_xor_b32 v{t3}, v{t3}, v{vB2}")
    R(f"v_lshlrev_b32 v{t3}, 4, v{t3}")
    R(f"v_lshl_add_u32 v{aK}, v{t2}, 9, v{t3}")
    for e in range(1, 8): R(f"v_xor_b32 v{aK+e}, {32*e}, v{aK}")

    def xreads(j):
        L = []
        for s_ in range(4):
            L.append(("xread", j, s_))
        return L
    def barrier(bi):
        tags = [t for t in order if vis[t] == bi]
        for t in order:
            if rel[t] == bi:
                for d in E.dsq:
                    assert not any(r[0] == "slot" and r[1] == slot_of[t] for r in d), f"release of {t} with reads outstanding"
                assert not any(("X", x[0]) == t for x in xq), f"release of {t} with x reads pending"
        if tags: E.wait_vm(tags)
        R("s_barrier")
    stamp_n = [1]
    def stamp():
        k = stamp_n[0]; stamp_n[0] += 1
        R(f"s_memtime s[{sSTAMP+2*k}:{sSTAMP+2*k+1}]")

    dmaq = []; xq = []
    barrier(-1)
    if stamps: stamp()
    for t in order:
        if issue_at[t] == -1: dmaq += dma_tile(t)
    for s_ in range(4):
        for i in ds_read("ds_read_b128", AXF + 4 * s_, 4, aX + s_, slot_of[("X", 0)] * SLOT): E.emit(i)
        if s_ == 0:
            for i in range(D):
                for x in frag_reads(i): E.emit(x)

    over = 0
    for i in range(END):
        s_, g = divmod(i, 16)
        if g == 0:
            E.comment(f"---- step {s_} {steps[s_]} slot {slot_of[steps[s_]]}")
            if s_ in stamps: stamp()
        for st in streams:
            k = 0
            for kk, x in enumerate(st):
                if x.before <= i: k = kk + 1
                if kk > 400: break
            for x in st[:k]:
                E.emit(x); over += x.cost
            del st[:k]
        while xq and xq[0][2] <= i:
            j, s2_, _ = xq.pop(0)
            for x in ds_read("ds_read_b128", AXF + 16 * j + 4 * s2_, 4, aX + s2_, slot_of[("X", j)] * SLOT): E.emit(x)
        E.emit(mfma(i))
        bud = BUD
        if g == 16 - D and s_ < NS - 1:
            for x in dmaq: E.emit(x); bud -= x.cost
            dmaq = []
            barrier(s_); bud -= 4
            for t in order:
                if issue_at[t] == s_: dmaq += dma_tile(t)
            for j in range(1, 7):
                if vis[("X", j)] == s_:
                    for s2_ in range(4):
                        kap = 4 * j + s2_
                        need = (kap // 2) * 16 + (kap & 1) * 8 if kap < 20 else 160 + 2 * (kap - 20)
                        xq.append((j, s2_, need - 2))
        if i + D < END:
            for x in frag_reads(i + D): E.emit(x); bud -= x.cost
        if xq and bud >= 4 and len(E.dsq) < 12:
            j, s2_, _ = xq.pop(0)
            for x in ds_read("ds_read_b128", AXF + 16 * j + 4 * s2_, 4, aX + s2_, slot_of[("X", j)] * SLOT):
                E.emit(x); bud -= x.cost
        nd = 0
        while dmaq and nd < cfg.get("dmapergap", 1):
            x = dmaq.pop(0); E.emit(x); bud -= x.cost
            if x.kind == "vmem": nd += 1
        for st in streams:
            while st and st[0].after <= i and st[0].cost <= bud and E.need_nops(st[0]) == 0:
                x = st.pop(0); E.emit(x); bud -= x.cost
    for st in streams:
        for x in st: E.emit(x)
    if stamps:
        stamp()
        R("s_waitcnt vmcnt(0)")
        stamp()
        R(f"s_memrealtime s[{sSTAMP+42}:{sSTAMP+43}]")
        R("s_waitcnt lgkmcnt(0)")
        n = stamp_n[0]
        R("s_add_u32 s8, s6, 0x8000000"); R("s_addc_u32 s9, s7, 0"); R("s_mov_b32 s10, 0x100000"); R("s_mov_b32 s11, 0x20000")
        R("s_lshl_b32 s12, s2, 2"); R(f"s_add_u32 s12, s12, s{sW}"); R("s_lshl_b32 s12, s12, 7")
        R("v_mov_b32 v2, s12")
        R(f"v_cmp_eq_u32 vcc, 0, v{vLANE}")
        R("s_and_saveexec_b64 s[14:15], vcc")
        for k in range(1, n):
            R(f"s_sub_u32 s13, s{sSTAMP+2*k}, s{sSTAMP}")
            R("v_mov_b32 v3, s13")
            R(f"buffer_store_dword v3, v2, s[8:11], 0 offen offset:{4*(k-1)}")
        R(f"v_mov_b32 v3, s{sSTAMP+40}")
        R(f"buffer_store_dword v3, v2, s[8:11], 0 offen offset:{4*30}")
        R(f"v_mov_b32 v3, s{sSTAMP+42}")
        R(f"buffer_store_dword v3, v2, s[8:11], 0 offen offset:{4*31}")
    R("s_waitcnt vmcnt(0)")
    E.label("L_exit")
    R("s_endpgm")
    for i in stubs:
        E.label(f"L_stub{i}")
        R(f"s_call_b64 s[{sLINK}:{sLINK+1}], L_fix")
        R(f"s_branch L_ret{i}")
    E.label("L_fix")
    R("s_nop 15"); R("s_nop 15")
    R(f"v_mov_b32 v{vT0}, v{vMX}")
    R("s_nop 1")
    R(f"v_permlane32_swap_b32 v{vMX}, v{vT0}")
    R(f"v_max3_f32 v{vMX}, v{vMX}, v{vT0}, 0")
    R(f"v_ceil_f32 v{vMX}, v{vMX}")
    R(f"v_sub_f32 v{vT1}, 0, v{vMX}")
    R(f"v_exp_f32 v{vT1}, v{vT1}")
    for r in range(SACC[0], NEGM + 16):
        R(f"v_sub_f32 v{r}, v{r}, v{vMX}")
    R(f"v_mul_f32 v{vL}, v{vL}, v{vT1}")
    for r in range(PVACC[0], PVACC[0] + 32):
        R(f"v_mul_f32 v{r}, v{r}, v{vT1}")
    for r in range(PREG, PREG + 128):
        R(f"v_lshlrev_b32 v{vT2}, 16, v{r}")
        R(f"v_and_b32 v{vT3}, 0xffff0000, v{r}")
        R(f"v_mul_f32 v{vT2}, v{vT2}, v{vT1}")
        R(f"v_mul_f32 v{vT3}, v{vT3}, v{vT1}")
        R(f"v_cvt_pk_bf16_f32 v{r}, v{vT2}, v{vT3}")
    R("s_nop 1")
    R(f"s_setpc_b64 s[{sLINK}:{sLINK+1}]")
    print(f"main: nops inserted {E.nops}, forced cost {over}, max ds outstanding {E.maxds}, instrs {E.pos}", file=sys.stderr)

    E.out.append(""".globl gqa_reduce_kernel
.p2align 8
.type gqa_reduce_kernel,@function
gqa_reduce_kernel:""")
    R("s_cmp_ge_u32 s2, 448")
    R("s_cbranch_scc1 LR_exit")
    R("s_load_dwordx2 s[4:5], s[0:1], 40")
    R("s_load_dwordx2 s[6:7], s[0:1], 56")
    R("v_lshrrev_b32 v2, 6, v0")
    R("v_and_b32 v1, 63, v0")
    R("v_readfirstlane_b32 s3, v2")
    R(f"s_mul_hi_u32 s8, s2, {(2**32 + 27)//28}")
    R("s_mul_i32 s9, s8, 28")
    R("s_sub_u32 s9, s2, s9")
    R("s_lshl_b32 s9, s9, 2")
    R("s_add_u32 s9, s9, s3")
    R(f"s_mul_hi_u32 s10, s9, {(2**32 + 27)//28}")
    R("s_mul_i32 s11, s10, 28")
    R("s_sub_u32 s11, s9, s11")
    R("v_and_b32 v3, 31, v1")
    R("v_lshrrev_b32 v4, 5, v1")
    R("s_lshl_b32 s12, s10, 5")
    R("v_add_u32 v3, s12, v3")
    R("v_lshlrev_b32 v5, 4, v1")
    R("v_mov_b32 v6, 0x40000000")
    R("v_cmp_lt_u32 vcc, 111, v3")
    R("v_mul_u32_u24 v7, 896, v3")
    R("v_lshl_add_u32 v7, v4, 5, v7")
    R("v_cndmask_b32 v5, v5, v6, vcc")
    R("v_cndmask_b32 v7, v7, v6, vcc")
    R("s_mul_i32 s13, s8, 1835008")
    R("s_lshl_b32 s14, s9, 10")
    R("s_add_u32 s13, s13, s14")
    R("s_waitcnt lgkmcnt(0)")
    R("s_add_u32 s16, s6, s13"); R("s_addc_u32 s17, s7, 0"); R("s_mov_b32 s18, 1835008"); R("s_mov_b32 s19, 0x20000")
    for h in range(16):
        R(f"s_mov_b32 s15, {h*114688}")
        R(f"buffer_load_dwordx4 v[{8+4*h}:{11+4*h}], v5, s[16:19], s15 offen {cfg.get('rlfl','')}")
    R("s_mul_i32 s13, s8, 100352")
    R("s_add_u32 s20, s4, s13"); R("s_addc_u32 s21, s5, 0"); R("s_mov_b32 s22, 100352"); R("s_mov_b32 s23, 0x20000")
    R("s_lshr_b32 s14, s11, 1"); R("s_lshl_b32 s14, s14, 6")
    R("s_and_b32 s15, s11, 1"); R("s_lshl_b32 s15, s15, 4")
    R("s_add_u32 s14, s14, s15")
    for h in range(16):
        R(f"s_waitcnt vmcnt({15-h})")
        for r in range(4):
            src = 8 + 4 * h + r
            if h == 0:
                R(f"v_lshlrev_b32 v{72+2*r}, 16, v{src}")
                R(f"v_and_b32 v{73+2*r}, 0xffff0000, v{src}")
            else:
                R(f"v_lshlrev_b32 v80, 16, v{src}")
                R(f"v_and_b32 v81, 0xffff0000, v{src}")
                R(f"v_add_f32 v{72+2*r}, v{72+2*r}, v80")
                R(f"v_add_f32 v{73+2*r}, v{73+2*r}, v81")
    for r in range(4):
        R(f"v_cvt_pk_bf16_f32 v{84+r}, v{72+2*r}, v{73+2*r}")
    R("buffer_store_dwordx4 v[84:87], v7, s[20:23], s14 offen")
    if stamps:
        R("s_waitcnt vmcnt(0)")
        R("s_memrealtime s[24:25]")
        R("s_waitcnt lgkmcnt(0)")
        R("s_add_u32 s16, s6, 0x8100000"); R("s_addc_u32 s17, s7, 0"); R("s_mov_b32 s18, 0x100000"); R("s_mov_b32 s19, 0x20000")
        R("s_lshl_b32 s12, s2, 2"); R("v_mov_b32 v2, s12"); R("v_mov_b32 v3, s24")
        R("v_cmp_eq_u32 vcc, 0, v0")
        R("s_and_saveexec_b64 s[14:15], vcc")
        R("buffer_store_dword v3, v2, s[16:19], 0 offen")
    R("s_waitcnt vmcnt(0)")
    E.label("LR_exit")
    R("s_endpgm")
    E.out.append(""".section .rodata,"a"
.p2align 6
.amdhsa_kernel gqa_main_kernel
  .amdhsa_next_free_vgpr 512
  .amdhsa_next_free_sgpr 102
  .amdhsa_accum_offset 256
  .amdhsa_group_segment_fixed_size 0
  .amdhsa_kernarg_size 64
  .amdhsa_user_sgpr_count 2
  .amdhsa_user_sgpr_kernarg_segment_ptr 1
  .amdhsa_system_sgpr_workgroup_id_x 1
.end_amdhsa_kernel
.p2align 6
.amdhsa_kernel gqa_reduce_kernel
  .amdhsa_next_free_vgpr 88
  .amdhsa_next_free_sgpr 32
  .amdhsa_accum_offset 88
  .amdhsa_group_segment_fixed_size 0
  .amdhsa_kernarg_size 64
  .amdhsa_user_sgpr_count 2
  .amdhsa_user_sgpr_kernarg_segment_ptr 1
  .amdhsa_system_sgpr_workgroup_id_x 1
.end_amdhsa_kernel
""")
    return "\n".join(E.out)

if __name__ == "__main__":
    ap = argparse.ArgumentParser()
    ap.add_argument("-o", default="standalone__gqa_block_cached__near_ridge.s")
    ap.add_argument("kv", nargs="*")
    a = ap.parse_args()
    cfg = {}
    for kv in a.kv:
        k, v = kv.split("=", 1)
        try: cfg[k] = eval(v)
        except Exception: cfg[k] = v
    open(a.o, "w").write(build(cfg))
```

```python
import sys, math, struct, argparse

def f2u(x): return struct.unpack("<I", struct.pack("<f", x))[0]
def V(lo, n=1): return {("v", lo + i) for i in range(n)}
def Ac(lo, n=1): return {("a", lo + i) for i in range(n)}
def vr(lo, n): return f"v[{lo}:{lo+n-1}]" if n > 1 else f"v{lo}"
def ar(lo, n): return f"a[{lo}:{lo+n-1}]"
INF = 1 << 30

class Ins:
    def __init__(s, text, kind, rd=(), wr=(), cost=4, after=-1, before=INF, tag=None, rdc=(), pre=None, res=None, passes=4):
        s.text, s.kind, s.rd, s.wr, s.cost = text, kind, set(rd), set(wr), cost
        s.after, s.before, s.tag, s.rdc = after, before, tag, set(rdc)
        s.pre = pre
        s.res = res
        s.passes = passes

class Emitter:
    def __init__(s):
        s.out = []; s.pos = 0
        s.dsq = []
        s.vmq = []
        s.lastw = {}; s.lastc = {}; s.lastst = {}
        s.nops = 0; s.skip = None
    def raw(s, text, n=1):
        s.out.append("    " + text); s.pos += n
    def label(s, l): s.out.append(l + ":")
    def comment(s, c): s.out.append("    ; " + c)
    def need_nops(s, i):
        need = 0
        def req(p, d):
            nonlocal need
            need = max(need, d - (s.pos - p - 1))
        for r in i.rd | i.wr:
            if r in s.lastw:
                k, p = s.lastw[r]
                if k == "mfma":
                    if i.kind == "mfma":
                        if r in i.rd and r not in i.rdc: req(p, 8)
                    else: req(p, 8)
                if r in i.rd:
                    if k in ("valu", "trans") and i.kind == "mfma": req(p, 2)
                    if k == "trans" and i.kind in ("valu", "trans", "perm", "vmem", "ds"): req(p, 1)
                    if k in ("valu", "trans") and i.kind == "perm": req(p, 2)
                    if k == "salu" and r == ("s", "m0") and i.kind == "vmem": req(p, 1)
        if i.kind in ("valu", "trans", "perm"):
            for r in i.wr:
                if r in s.lastc: req(s.lastc[r], 3)
                if r in s.lastst: req(s.lastst[r], 2)
        if i.kind == "mfma":
            for r in i.wr:
                if r in s.lastst: req(s.lastst[r], 2)
        return need
    def ds_idx(s, i):
        idx = -1
        for k, (d, _) in enumerate(s.dsq):
            if d & (i.rd | i.wr): idx = k
        return idx
    def wait_ds_idx(s, idx):
        n = len(s.dsq) - idx - 1
        if n > 15:
            idx += n - 15; n = 15
        s.raw(f"s_waitcnt lgkmcnt({n})")
        s.dsq = s.dsq[idx + 1:]
    def wait_ds_res(s, pred):
        idx = -1
        for k, (_, r) in enumerate(s.dsq):
            if r is not None and pred(r): idx = k
        if idx >= 0: s.wait_ds_idx(idx)
    def emit(s, i):
        idx = s.ds_idx(i)
        if idx >= 0: s.wait_ds_idx(idx)
        if i.kind == "ds" and len(s.dsq) >= 13: s.wait_ds_idx(len(s.dsq) - 1 - 9)
        n = s.need_nops(i)
        if n > 0:
            s.nops += n
            while n > 0:
                k = min(n, 16); s.raw(f"s_nop {k-1}", k); n -= k
        if not (s.skip and s.skip(i)): s.out.append("    " + i.text)
        p = s.pos; s.pos += 1
        kind = "valu" if i.kind == "perm" else i.kind
        for r in i.wr: s.lastw[r] = (kind, p)
        if i.kind == "mfma":
            for r in i.rdc: s.lastc[r] = p
        if i.kind == "ds": s.dsq.append((set(i.wr), i.res))
        if i.kind == "vmem":
            s.vmq.append(i.tag)
            if i.tag == "store":
                for r in i.rd: s.lastst[r] = p
    def wait_vm(s, tags):
        idx = -1
        for k, t in enumerate(s.vmq):
            if t in tags: idx = k
        for t in tags:
            assert s.vmq.count(t) == 4, f"unit {t} not fully issued before its wait ({s.vmq.count(t)})"
        n = min(63, len(s.vmq) - idx - 1)
        if n < getattr(s, "vm_known", 1 << 30) + (len(s.vmq) - getattr(s, "vm_len", 0)):
            s.raw(f"s_waitcnt vmcnt({n})")
            s.vm_known = n; s.vm_len = len(s.vmq)

RING = 24576; NU = 6; UNIT = 4096
EB = 4 * RING
LB = EB + 57344
vLANE = 53
dK = 1
dV = 5
dWO = 9
vST = 10
vST2 = 5
rK = 12
rV = 16
rWO = 20
rE = 22
wP = 23
wO = 24
vL = 25
SACC = [32, 60]; PR = [88, 116]; OACC = 144
dX = 116
dWQ = 120
rX = 124
rWQ = 126
wQ = 130
AQ = 0
AK = 224
sSRD_X, sSRD_WQ, sSRD_K, sSRD_V, sSRD_WO, sSRD_WS = 16, 20, 24, 28, 32, 36
sRB = 42; sOFF = 43; sC = 44; sXB = 45; sW = 3; sST = 47
sSTAMP = 60
sSTO = 48
sPFO = 55
sW2K = 59
vPFK = 11; vPFV = 11
def srd(n): return f"s[{n}:{n+3}]"
assert vL + 7 <= 32

def build(cfg):
    BUD = cfg.get("budget", 8)
    stamps = cfg.get("stamps", [])
    ntKV = "nt" if cfg.get("ntkv", 1) else ""
    ntW = "nt" if cfg.get("ntw", 0) else ""
    ntX = "nt" if cfg.get("ntx", 0) else ""
    stfl = cfg.get("stfl", "sc1")
    DMIN = cfg.get("dmin", 8)
    E = Emitter(); R = E.raw
    BL = 56
    Q0, S0, P0, O0, END = 0, 7 * BL, 15 * BL, 23 * BL, 30 * BL

    units = [("WQ", t) for t in range(14)] + [("K", i, h) for i in range(8) for h in range(2)] \
          + [("V", k) for k in range(16)] + [("WO", p, kh) for p in range(7) for kh in range(2)]
    uidx = {u: k for k, u in enumerate(units)}
    ESLOT = {8: 0, 9: 1, 10: 2, 11: 3}
    def uoff(u):
        if u[0] == "WO" and 2 * u[1] + u[2] >= 12: return ((uidx[u] - 10) % NU) * UNIT
        return (uidx[u] % NU) * UNIT
    rWOE = rK

    M = []
    def qa(j, ks, mt): return 32 * (j & 1) + 16 * ks + 4 * mt
    def qb(j, ks, nu): return 64 + 56 * (j & 1) + 28 * ks + 4 * nu
    def oacc(mt, nu): return OACC + 4 * (4 * nu + mt)
    first_use = {}; last_use = {}
    def use(name, i):
        first_use.setdefault(name, i); last_use[name] = i
    done_at = {}
    for j in range(7):
        for nu in range(7):
            for mt in range(4):
                for ks in range(2):
                    i = len(M)
                    M.append((oacc(mt, nu), qa(j, ks, mt), qb(j, ks, nu), j == 0 and ks == 0))
                    use(("QA", j, ks, mt), i); use(("QB", j, ks, nu), i); done_at[("Q", mt, nu)] = i
    def ka(step, k): return AK + 16 * (step & 1) + 4 * k
    SX = OACC + 112 - 28
    sbuf = [SACC[0], SACC[1], SX, SACC[0], SACC[1], SX, SACC[0], SACC[1]] if cfg.get("s3", 1) else [SACC[b & 1] for b in range(8)]
    for b in range(8):
        for h in range(2):
            for nu in range(7):
                for k in range(4):
                    i = len(M)
                    M.append((sbuf[b] + 4 * nu, ka(2 * b + h, k), AQ + 4 * ((4 * h + k) * 7 + nu), h == 0 and k == 0))
                    use(("SA", b, h, k), i); use(("SB", 4 * h + k, nu), i); done_at[("S", b, nu)] = i
                    use(("Sacc", b, nu), i)
    for j in range(8):
        for nu in range(7):
            for mt in range(4):
                for ks in range(2):
                    i = len(M)
                    M.append((oacc(mt, nu), qa(j, ks, mt), qb(j, ks, nu), j == 0 and ks == 0))
                    use(("VA", j, ks, mt), i); use(("VB", j, ks, nu), i); done_at[("O", mt, nu)] = i
    for p in range(7):
        for h in range(2):
            for nu in range(7):
                for k in range(4):
                    i = len(M)
                    M.append((SACC[p & 1] + 4 * nu, ka(2 * p + h, k), AQ + 4 * ((4 * h + k) * 7 + nu), h == 0 and k == 0))
                    use(("OA", p, h, k), i); use(("OB", 4 * h + k, nu), i); done_at[("Y", p, nu)] = i
                    use(("Yacc", p, nu), i)
    assert len(M) == END
    def mfma(i):
        acc, a, b, cz = M[i]
        Cs = set() if cz else V(acc, 4)
        return Ins(f"v_mfma_f32_16x16x32_bf16 {vr(acc,4)}, {ar(a,4)}, {ar(b,4)}, {'0' if cz else vr(acc,4)}", "mfma",
                   rd=Ac(a, 4) | Ac(b, 4) | Cs, wr=V(acc, 4), rdc=Cs, cost=8)

    ev_done = set()
    events = {}
    def add_event(idx, name, fn): events.setdefault(idx, []).append((name, fn))
    def after_ev(*names): return lambda: all(n in ev_done for n in names)

    M0 = {("s", "m0")}
    reads_left = {}
    last_read = {}; now = [0]
    def res_idle(res):
        return reads_left.get(res, 0) == 0 and not any(r == res for _, r in E.dsq)

    def dma_unit(u, pre=None):
        L = []
        k = u[0]
        if k == "X":
            L.append(Ins(f"s_add_u32 m0, s{sXB}, {(u[1] % 4) * 16384}", "salu", wr=M0, pre=pre))
        elif k == "WO" and 2 * u[1] + u[2] in ESLOT:
            L.append(Ins(f"s_add_u32 m0, s{sXB}, {ESLOT[2 * u[1] + u[2]] * 16384}", "salu", wr=M0, pre=pre))
        else:
            L.append(Ins(f"s_add_u32 m0, s{sRB}, {uoff(u)}", "salu", wr=M0, pre=pre))
        def smov(val): L.append(Ins(f"s_mov_b32 s{sOFF}, {val}", "salu"))
        def ld(vreg, sr, j, fl):
            L.append(Ins(f"buffer_load_dwordx4 v{vreg}, {srd(sr)}, s{sOFF} offen offset:{j*1024} {fl} lds".replace("  ", " "),
                         "vmem", rd=M0 | V(vreg), tag=u, cost=8))
        if k == "X":
            smov(128 * u[1])
            for j in range(4): ld(dX + j, sSRD_X, j, ntX)
        elif k == "WQ":
            smov(u[1] * 32 * 8192)
            for j in range(4): ld(dWQ + j, sSRD_WQ, j, ntW)
        elif k == "K":
            smov((u[1] >> 1) * 65536 + (u[1] & 1) * 8192 + u[2] * 256)
            for j in range(4): ld(dK + j, sSRD_K, j, ntKV)
        elif k == "V":
            smov(u[1] * 16384)
            for j in range(4): ld(dV + j, sSRD_V, j, ntKV)
        elif k == "WO":
            for j in range(4):
                smov(u[2] * 128 * 896 + u[1] * 128 + j * (8 * 896 - 1024)); ld(dWO, sSRD_WO, j, ntW)
        return L

    def rd(kind, dst, n, areg, off, res, after, before, pre=None):
        assert 0 <= off < 65536
        reads_left[res] = reads_left.get(res, 0) + 1
        return Ins(f"{kind} {ar(dst,n)}, v{areg} offset:{off}", "ds", rd=V(areg), wr=Ac(dst, n), res=res,
                   after=after, before=max(before, after + 1), pre=pre, tag="read")

    RA = []; RB = []
    MID = cfg.get("mid", 40)
    A1, A2 = cfg.get("a1", 6), cfg.get("a2", 30)
    def vmwait(tags): return lambda: E.wait_vm(tags)
    def bar(tags=(), wres=None, idle=()):
        def f():
            for r in idle: assert reads_left.get(r, 0) == 0, f"barrier releases {r} with reads pending"
            if wres is not None:
                assert not any(x.kind == "ds" and x.res is not None and wres(x.res) for x in VS), "publishing barrier before all writes were emitted"
            E.wait_ds_res(lambda r: r in idle or (wres is not None and wres(r)))
            if tags: E.wait_vm(list(tags))
            if not cfg.get("nobar"): R("s_barrier")
        return f
    def areads(base, j, kind, fu, areg, estride, busy=None):
        for ks in range(2):
            u = (kind, 2 * j + ks)
            at = base + (j - 1) * BL + (A1, A2)[ks]
            if base == 0 and j == 0: at = -1
            name = ("Wa", u)
            add_event(at, name, vmwait([u]))
            for mt in range(4):
                a0 = at if busy is None else max(at, busy(qa(j, ks, mt)))
                for e in range(2):
                    RA.append(rd("ds_read_b64_tr_b16", qa(j, ks, mt) + 2 * e, 2, areg + mt, uoff(u) + e * estride, u, a0,
                                 first_use[(fu, j, ks, mt)] - DMIN, after_ev(name)))
    for j in range(7):
        at = (j - 1) * BL + MID if j > 0 else -1
        name = ("Bx", j)
        add_event(at, name, bar(tags=[("X", j)], idle=[("X", j - 1)] if j > 0 else []))
        areads(0, j, "WQ", "QA", rWQ, 512)
        for nu in range(7):
            for ks in range(2):
                RB.append(rd("ds_read_b128", qb(j, ks, nu), 4, rX + ks, (j % 4) * 16384 + nu * 2048, ("X", j), at,
                             min(first_use[("QB", j, ks, nu)] - DMIN, j * BL + (MID - 6 if j < 6 else cfg.get("xe", 12) - 4)), after_ev(name)))
    add_event(6 * BL + cfg.get("xe", 12), "Bxe", bar(idle=[("X", 6)]))
    for st in range(16):
        b, h = st >> 1, st & 1
        at = S0 + (st - 1) * 28 + cfg.get("kat", 10)
        name = ("Wk", st)
        add_event(at, name, vmwait([("K", b, h)]))
        RA += [rd("ds_read_b128", ka(st, k), 4, rK + k, uoff(("K", b, h)), ("K", b, h), at,
                  first_use[("SA", b, h, k)] - DMIN, after_ev(name)) for k in range(4)]
    add_event(S0 - 1, "Bq", bar(wres=lambda r: r == "qw"))
    for h in range(2):
        for nu in range(7):
            for k in range(4):
                kap = 4 * h + k
                RB.append(rd("ds_read_b128", AQ + 4 * (kap * 7 + nu), 4, rE, (kap * 7 + nu) * 1024, "q", S0 - 1,
                             first_use[("SB", kap, nu)] - DMIN, after_ev("Bq")))
    add_event(S0 + BL + 4, "Bqe", bar(idle=["q"]))
    def qbusy(reg): return last_use[("SB",) + divmod((reg - AQ) // 4, 7)]
    for j in range(8):
        at = P0 + (j - 1) * BL + MID
        c = j >> 1
        name = ("Bp", j & ~1)
        if j == 0: add_event(at, name, bar(wres=lambda r: r in (("pw", 0), ("pw", 1))))
        elif j == 2: add_event(at, name, bar(idle=[("P", 0)]))
        elif j == 4: add_event(at, name, bar(idle=[("P", 1)], wres=lambda r: r == ("pw", 2)))
        elif j == 6: add_event(at, name, bar(idle=[("P", 2)], wres=lambda r: r in (("pw", 3), "lw")))
        areads(P0, j, "V", "VA", rV, 2048, qbusy if j < 2 else None)
        if j & 1: at = P0 + (j - 1) * BL + cfg.get("mid2", 30)
        for nu in range(7):
            for ks in range(2):
                a0 = max(at, qbusy(qb(j, ks, nu))) if j < 2 else at
                wprod = 2 * (j & 1) + ks
                RB.append(rd("ds_read_b128", qb(j, ks, nu), 4, rE, (c & 1) * 28672 + (wprod * 7 + nu) * 1024, ("P", c), a0,
                             min(first_use[("VB", j, ks, nu)] - DMIN, P0 + j * BL + (MID - 6 if j < 7 else cfg.get("xe", 12) - 4)), after_ev(name)))
    add_event(P0 + 7 * BL + cfg.get("xe", 12), "Bpe", bar(idle=[("P", 3)]))
    for st in range(14):
        p, h = st >> 1, st & 1
        at = O0 + (st - 1) * 28 + cfg.get("oat", 6)
        name = ("Bo", st & ~1)
        if h == 0:
            idle = [("WO", p - 1, 0), ("WO", p - 1, 1)] if 1 <= p <= 2 else []
            add_event(at, name, bar(tags=[("WO", p, 0), ("WO", p, 1)], idle=idle))
        for k in range(4):
            for e in range(2):
                if st in ESLOT: areg, off = rWOE, ESLOT[st] * 16384 + k * 4096 + e * 2048
                else: areg, off = rWO + (k >> 1), (k & 1) * RING + uoff(("WO", p, h)) + e * 2048
                RA.append(rd("ds_read_b64_tr_b16", ka(st, k) + 2 * e, 2, areg, off, ("WO", p, h), at,
                             first_use[("OA", p, h, k)] - DMIN, after_ev(name)))
    add_event(O0 + BL - 2, "Boe", bar(idle=["o"]))
    add_event(O0 - 1, "Bo_x", bar(wres=lambda r: r == "ow"))
    for h in range(2):
        for nu in range(7):
            for k in range(4):
                kap = 4 * h + k
                RB.append(rd("ds_read_b128", AQ + 4 * (kap * 7 + nu), 4, rE, (kap * 7 + nu) * 1024, "o", O0 - 1,
                             first_use[("OB", kap, nu)] - DMIN, after_ev("Bo_x")))

    DQ = []
    order = []
    xs = [("X", j) for j in range(7)]
    order = [xs[0], units[0], units[1], xs[1], units[2], units[3], xs[2], units[4], units[5], xs[3]]
    k = 6
    for j in range(4, 7):
        order += [units[k], units[k + 1], xs[j]]; k += 2
    order += units[k:]
    for u in order:
        if u[0] == "X":
            pre = after_ev(("Bx", u[1] - 3)) if u[1] >= 4 else None
        else:
            k = uidx[u]
            if k < NU: pre = None
            elif units[k - NU][0] == "WO":
                st = 2 * u[1] + u[2]
                pre = after_ev(("Bo", 2)) if st < 8 else after_ev("Boe") if st < 12 else after_ev(("Bo", 4))
            else:
                pre = (lambda r: (lambda: reads_left[r] == 0 and now[0] - last_read[r] >= cfg.get("rel", 7)))(units[k - NU])
        L = dma_unit(u, pre)
        if u[0] != "X" and uidx[u] >= NU and units[uidx[u] - NU][0] != "WO": L[0].res = units[uidx[u] - NU]
        DQ.append((u, L))

    def valu(text, rd_, wr_, after, before=INF, kind="valu", cost=4, pre=None):
        return Ins(text, kind, rd=rd_, wr=wr_, after=after, before=before, cost=cost, pre=pre)
    VS = []
    for nu in range(7):
        aft = done_at[("Q", 3, nu)]
        for mt in range(4):
            r = oacc(mt, nu)
            for x in range(4): VS.append(valu(f"v_mul_f32 v{r+x}, s{sC}, v{r+x}", V(r + x), V(r + x), aft, S0))
        for mt in range(4):
            r = oacc(mt, nu)
            VS.append(valu(f"v_cvt_pk_bf16_f32 v{r}, v{r}, v{r+1}", V(r, 2), V(r), aft, S0))
            VS.append(valu(f"v_cvt_pk_bf16_f32 v{r+1}, v{r+2}, v{r+3}", V(r + 2, 2), V(r + 1), aft, S0))
        for mt in range(4):
            r = oacc(mt, nu)
            off = ((mt >> 1) * 7 + nu) * 1024 + (mt & 1) * 512
            VS.append(Ins(f"ds_write_b64 v{wQ}, {vr(r,2)} offset:{off}", "ds", rd=V(wQ) | V(r, 2), res="qw",
                          after=aft, before=S0, pre=after_ev("Bxe"), cost=12))
    def pw(c, nu, hf, aft, bef, evn):
        r = PR[c & 1] + 4 * nu + 2 * hf
        return Ins(f"ds_write_b64 v{wP}, {vr(r,2)} offset:{(c&1)*28672+nu*1024+8*hf}", "ds", rd=V(wP) | V(r, 2), res=("pw", c),
                   after=aft, before=bef, pre=after_ev(evn), cost=12)
    pend = []
    WS = []
    pvfirst = {}
    for i in range(P0, P0 + BL): pvfirst.setdefault(M[i][0], i)
    for b in range(8):
        c, hf = b >> 1, b & 1
        for nu in range(7):
            acc = sbuf[b] + 4 * nu
            aft = done_at[("S", b, nu)]
            nxt = [bb for bb in range(b + 1, 8) if sbuf[bb] == sbuf[b]]
            pdead = (P0 - BL + MID, P0 - BL + MID, P0 + 3 * BL + MID, P0 + 5 * BL + MID)[c]
            if nxt: bef = first_use[("Sacc", nxt[0], nu)]
            elif acc in pvfirst: bef = pvfirst[acc]
            else: bef = INF
            bef = min(bef, pdead - 2)
            pr = PR[c & 1] + 4 * nu + 2 * hf
            ex = [valu(f"v_exp_f32 v{acc+x}, v{acc+x}", V(acc + x), V(acc + x), aft, bef, kind="trans", cost=8) for x in range(4)]
            if b == 0:
                ad = [valu(f"v_add_f32 v{vL+nu}, v{acc}, v{acc+1}", V(acc, 2), V(vL + nu), aft, bef)]
                ad += [valu(f"v_add_f32 v{vL+nu}, v{vL+nu}, v{acc+x}", V(vL + nu) | V(acc + x), V(vL + nu), aft, bef) for x in (2, 3)]
                ad = [None] + ad
            else:
                ad = [valu(f"v_add_f32 v{vL+nu}, v{vL+nu}, v{acc+x}", V(vL + nu) | V(acc + x), V(vL + nu), aft, bef) for x in range(4)]
            cv = [valu(f"v_cvt_pk_bf16_f32 v{pr}, v{acc}, v{acc+1}", V(acc, 2), V(pr), aft, bef),
                  valu(f"v_cvt_pk_bf16_f32 v{pr+1}, v{acc+2}, v{acc+3}", V(acc + 2, 2), V(pr + 1), aft, bef)]
            tail = [ad[0], cv[0], ad[1], cv[1], ad[2], ad[3]]
            tail = [x for x in tail if x is not None]
            tail.append(pw(c, nu, hf, aft, pdead, ("Bqe", "Bqe", ("Bp", 2), ("Bp", 4))[c]))
            seq = []
            for x in range(4):
                seq.append(ex[x])
                seq += pend[:2]; pend = pend[2:]
            seq += pend
            pend = tail
            VS += seq
    VS += pend
    lbef = P0 + 5 * BL + MID
    T0 = SACC[0]
    aft = done_at[("S", 7, 6)]
    for nu in range(7): VS.append(valu(f"v_mov_b32 v{T0+nu}, v{vL+nu}", V(vL + nu), V(T0 + nu), aft, lbef))
    for nu in range(7): VS.append(valu(f"v_permlane32_swap_b32 v{vL+nu}, v{T0+nu}", V(vL + nu) | V(T0 + nu), V(vL + nu) | V(T0 + nu), aft, lbef, kind="perm", cost=8))
    for nu in range(7): VS.append(valu(f"v_add_f32 v{vL+nu}, v{vL+nu}, v{T0+nu}", V(vL + nu) | V(T0 + nu), V(vL + nu), aft, lbef))
    for nu in range(7): VS.append(valu(f"v_mov_b32 v{T0+nu}, v{vL+nu}", V(vL + nu), V(T0 + nu), aft, lbef))
    for nu in range(7): VS.append(valu(f"v_permlane16_swap_b32 v{vL+nu}, v{T0+nu}", V(vL + nu) | V(T0 + nu), V(vL + nu) | V(T0 + nu), aft, lbef, kind="perm", cost=8))
    for nu in range(7): VS.append(valu(f"v_add_f32 v{T0+8+nu}, v{vL+nu}, v{T0+nu}", V(vL + nu) | V(T0 + nu), V(T0 + 8 + nu), aft, lbef))
    VS.append(valu(f"v_add_u32 v{T0+7}, s{sXB}, v{vST}", V(vST), V(T0+7), aft, lbef))
    VS.append(valu(f"v_subrev_u32 v{T0+7}, s{sW2K}, v{T0+7}", V(T0+7), V(T0+7), aft, lbef))
    for hh in range(2):
        VS.append(Ins(f"ds_write_b128 v{T0+7}, {vr(T0+8+4*hh,4)} offset:{57344+hh*1024}", "ds", rd=V(T0+7) | V(T0 + 8 + 4 * hh, 4),
                      res="lw", after=aft, before=lbef, cost=20))
    rb = P0 + 7 * BL
    for w in range(4):
        for hh in range(2):
            d = T0 + 8 * w + 4 * hh
            VS.append(Ins(f"ds_read_b128 {vr(d,4)}, v{rE} offset:{57344+w*2048+hh*1024}", "ds", rd=V(rE), wr=V(d, 4), res="lr",
                          after=0, before=rb, pre=after_ev(("Bp", 6))))
    la = P0 + 6 * BL + 20
    for nu in range(7): VS.append(valu(f"v_add_f32 v{T0+nu}, v{T0+nu}, v{T0+8+nu}", V(T0 + nu) | V(T0 + 8 + nu), V(T0 + nu), la, O0))
    for nu in range(7): VS.append(valu(f"v_add_f32 v{T0+16+nu}, v{T0+16+nu}, v{T0+24+nu}", V(T0 + 16 + nu) | V(T0 + 24 + nu), V(T0 + 16 + nu), la, O0))
    for nu in range(7): VS.append(valu(f"v_add_f32 v{T0+nu}, v{T0+nu}, v{T0+16+nu}", V(T0 + nu) | V(T0 + 16 + nu), V(T0 + nu), la, O0))
    for nu in range(7): VS.append(valu(f"v_rcp_f32 v{vL+nu}, v{T0+nu}", V(T0 + nu), V(vL + nu), la, O0, kind="trans", cost=8))
    VS.append(valu(f"v_add_u32 v{rWOE}, {EB}, v{rWO}", V(rWO), V(rWOE), P0 + 6 * BL, O0))
    VS.append(valu(f"v_lshrrev_b32 v{vST2}, 1, v{vST}", V(vST), V(vST2), P0 + 6 * BL, O0))
    for nu in range(7):
        aft = done_at[("O", 3, nu)]
        for al in range(2):
            r = oacc(2 * al, nu)
            for x in range(4):
                VS.append(valu(f"v_cvt_pk_bf16_f32 v{r+x}, v{r+2*x}, v{r+2*x+1}", V(r + 2 * x, 2), V(r + x), aft, O0))
        for al in range(2):
            r = oacc(2 * al, nu)
            VS.append(Ins(f"ds_write_b128 v{wO}, {vr(r,4)} offset:{(al*7+nu)*1024}", "ds", rd=V(wO) | V(r, 4), res="ow",
                          after=aft, before=O0, pre=after_ev("Bpe"), cost=20))
    SQ = []
    for p in range(7):
        stg = OACC + 16 * p
        for nu in range(7):
            acc = SACC[p & 1] + 4 * nu
            aft = done_at[("Y", p, nu)]
            bef = first_use[("Yacc", p + 2, nu)] if p < 5 else INF
            for x in range(4): VS.append(valu(f"v_mul_f32 v{acc+x}, v{vL+nu}, v{acc+x}", V(acc + x) | V(vL + nu), V(acc + x), aft, bef))
            d = stg + 2 * nu
            VS.append(valu(f"v_cvt_pk_bf16_f32 v{d}, v{acc}, v{acc+1}", V(acc, 2), V(d), aft, bef))
            VS.append(valu(f"v_cvt_pk_bf16_f32 v{d+1}, v{acc+2}, v{acc+3}", V(acc + 2, 2), V(d + 1), aft, bef))
            gate = (lambda: not dq) if cfg.get("gate", 1) else None
            if nu & 1:
                VS.append(Ins(f"buffer_store_dwordx4 {vr(d-2,4)}, v{vST}, {srd(sSRD_WS)}, s{sSTO+p} offen offset:{(nu>>1)*1024} {stfl}",
                              "vmem", rd=V(d - 2, 4) | V(vST), tag="store", after=aft, cost=32, pre=gate))
            if nu == 6:
                VS.append(Ins(f"buffer_store_dwordx2 {vr(d,2)}, v{vST2}, {srd(sSRD_WS)}, s{sSTO+p} offen offset:3072 {stfl}",
                              "vmem", rd=V(d, 2) | V(vST2), tag="store", after=aft, cost=18, pre=gate))

    PF = []
    pfs = cfg.get("pf", [])
    for n, stp in enumerate(pfs):
        if stp is None: continue
        if n < 4: sr, vreg, off = sSRD_K, vPFK, n * 65536
        else: sr, vreg, off = sSRD_V, vPFV, (n - 4) * 65536
        PF.append(Ins(f"buffer_load_dword v0, v{vreg}, {srd(sr)}, s{sPFO+(n&3)} offen {ntKV}", "vmem", rd=V(vreg), tag="pf",
                      after=int(stp * 28), cost=8))

    E.out.append(f"""; fused GQA block: q-proj + attention + out-proj partials (main), then head reduction (reduce)
; @launch kernel=gqa_main_kernel grid=(256,1,1) block=(256,1,1) lds=163840
; @launch kernel=gqa_reduce_kernel grid=(448,1,1) block=(256,1,1) lds=0
.amdgcn_target "amdgcn-amd-amdhsa--gfx950"
.text
.globl gqa_main_kernel
.p2align 8
.type gqa_main_kernel,@function
gqa_main_kernel:""")
    R("s_cmp_ge_u32 s2, 256")
    R("s_cbranch_scc1 L_exit")
    R("s_load_dwordx8 s[8:15], s[0:1], 0")
    R("s_load_dwordx2 s[4:5], s[0:1], 32")
    R("s_load_dwordx2 s[6:7], s[0:1], 56")
    if stamps:
        R(f"s_memtime s[{sSTAMP}:{sSTAMP+1}]"); R(f"s_memrealtime s[{sSTAMP+38}:{sSTAMP+39}]")
    t0, t1, t2, t3, t4, t5 = 40, 41, 42, 43, 44, 45
    vA, vP8, vG, vP16, vW, vR, vC4 = 46, 47, 48, 49, 50, 51, 52
    R(f"v_lshrrev_b32 v{vW}, 6, v0")
    R(f"v_and_b32 v{vLANE}, 63, v0")
    R(f"v_readfirstlane_b32 s{sW}, v{vW}")
    R(f"v_lshrrev_b32 v{vA}, 3, v{vLANE}")
    R(f"v_and_b32 v{vP8}, 7, v{vLANE}")
    R(f"v_lshrrev_b32 v{vG}, 4, v{vLANE}")
    R(f"v_and_b32 v{vP16}, 15, v{vLANE}")
    R("s_and_b32 s47, s2, 7")
    R("s_bfe_u32 s46, s2, 0x10003")
    R("s_lshr_b32 s48, s2, 4")
    R("s_lshl_b32 s49, s47, 1")
    R("s_add_u32 s49, s49, s46")
    R(f"s_mul_i32 s{sRB}, s{sW}, {RING}")
    R(f"s_lshl_b32 s{sXB}, s{sW}, 12"); R(f"s_add_u32 s{sXB}, s{sXB}, {EB}")
    R(f"v_lshl_add_u32 v{t0}, v{vW}, 5, v{vA}")
    R(f"v_mul_u32_u24 v{t1}, 896, v{t0}")
    R(f"v_xor_b32 v{t2}, v{vP8}, v{vG}")
    R(f"v_lshlrev_b32 v{t2}, 4, v{t2}")
    R(f"v_xor_b32 v{t3}, 64, v{t2}")
    R(f"v_add_u32 v{dX}, v{t1}, v{t2}")
    R(f"v_add_u32 v{dX+1}, v{t1}, v{t3}")
    R(f"v_add_u32 v{dX+2}, {2*6144}, v{dX}")
    R(f"v_add_u32 v{dX+3}, {3*6144}, v{dX+1}")
    R(f"v_add_u32 v{dX+1}, {6144}, v{dX+1}")
    R(f"v_and_b32 v{t2}, 1, v{vG}")
    R(f"v_lshlrev_b32 v{t2}, 1, v{t2}")
    R(f"v_xor_b32 v{t2}, v{vP8}, v{t2}")
    R(f"v_lshlrev_b32 v{t2}, 4, v{t2}")
    R(f"v_lshl_add_u32 v{t2}, v{vW}, 7, v{t2}")
    R(f"v_lshl_add_u32 v{dWQ}, v{vA}, 13, v{t2}")
    R(f"v_xor_b32 v{dWQ+1}, 64, v{dWQ}")
    R(f"v_add_u32 v{dWQ+2}, {2*64512}, v{dWQ}")
    R(f"v_add_u32 v{dWQ+3}, {3*64512}, v{dWQ+1}")
    R(f"v_add_u32 v{dWQ+1}, {64512}, v{dWQ+1}")
    R("s_waitcnt lgkmcnt(0)")
    R("s_mul_i32 s40, s48, 100352")
    R(f"s_add_u32 s{sSRD_X}, s8, s40"); R(f"s_addc_u32 s{sSRD_X+1}, s9, 0")
    R(f"s_mov_b32 s{sSRD_X+2}, 100352"); R(f"s_mov_b32 s{sSRD_X+3}, 0x20000")
    R("s_lshl_b32 s40, s49, 9")
    R(f"s_add_u32 s{sSRD_WQ}, s14, s40"); R(f"s_addc_u32 s{sSRD_WQ+1}, s15, 0")
    R(f"s_sub_u32 s{sSRD_WQ+2}, {448*8192}, s40"); R(f"s_mov_b32 s{sSRD_WQ+3}, 0x20000")
    npro = cfg.get("npro", 3); npro2 = cfg.get("npro2", 6)
    for u, L in DQ[:npro]:
        for x in L: E.emit(x)
    R("s_lshl_b32 s40, s48, 3"); R("s_add_u32 s40, s40, s47"); R("s_lshl_b32 s40, s40, 18")
    R(f"s_add_u32 s{sSRD_K}, s10, s40"); R(f"s_addc_u32 s{sSRD_K+1}, s11, 0")
    R(f"s_mov_b32 s{sSRD_K+2}, 262144"); R(f"s_mov_b32 s{sSRD_K+3}, 0x20000")
    R(f"s_add_u32 s{sSRD_V}, s12, s40"); R(f"s_addc_u32 s{sSRD_V+1}, s13, 0")
    R(f"s_mov_b32 s{sSRD_V+2}, 262144"); R(f"s_mov_b32 s{sSRD_V+3}, 0x20000")
    R("s_mul_i32 s40, s49, 229376")
    R(f"s_add_u32 s{sSRD_WO}, s4, s40"); R(f"s_addc_u32 s{sSRD_WO+1}, s5, 0")
    R(f"s_mov_b32 s{sSRD_WO+2}, 229376"); R(f"s_mov_b32 s{sSRD_WO+3}, 0x20000")
    R("s_lshl_b32 s40, s48, 4"); R("s_add_u32 s40, s40, s49"); R("s_lshl_b32 s40, s40, 2"); R(f"s_add_u32 s40, s40, s{sW}")
    R("s_mul_i32 s40, s40, 25088")
    R(f"s_add_u32 s{sSRD_WS}, s6, s40"); R(f"s_addc_u32 s{sSRD_WS+1}, s7, 0")
    R(f"s_mov_b32 s{sSRD_WS+2}, 25088"); R(f"s_mov_b32 s{sSRD_WS+3}, 0x20000")
    R(f"s_mov_b32 s{sC}, {f2u(math.log2(math.e) / 16.0):#x}")
    R(f"s_lshl_b32 s{sW2K}, s{sW}, 11")
    R(f"s_lshl_b32 s41, s{sW}, 1"); R("s_add_u32 s41, s41, s46"); R("s_lshl_b32 s41, s41, 13")
    R(f"v_lshl_add_u32 v{vPFV}, v{vLANE}, 7, s41")
    for p in range(7): R(f"s_mov_b32 s{sSTO+p}, {p*3584}")
    for n in range(4): R(f"s_mov_b32 s{sPFO+n}, {n*65536}")
    R(f"v_bfe_u32 v{vR}, v{vLANE}, 2, 2")
    R(f"v_and_b32 v{vC4}, 3, v{vLANE}")
    R(f"v_lshlrev_b32 v{vST}, 4, v{vLANE}")
    R(f"v_bfe_u32 v{t2}, v{vLANE}, 1, 3")
    R(f"v_xor_b32 v{t2}, v{t2}, v{vG}")
    R(f"v_lshlrev_b32 v{t2}, 4, v{t2}")
    R(f"v_lshl_add_u32 v{t2}, v{vP16}, 7, v{t2}")
    R(f"v_add_u32 v{rX}, {EB}, v{t2}")
    R(f"v_xor_b32 v{rX+1}, 64, v{rX}")
    R(f"v_lshrrev_b32 v{t4}, 1, v{vR}")
    R(f"v_and_b32 v{t2}, 1, v{vG}")
    R(f"v_lshl_add_u32 v{t5}, v{t2}, 1, v{t4}")
    R(f"v_lshlrev_b32 v{t3}, 3, v{vC4}")
    R(f"v_lshl_add_u32 v{t3}, v{t5}, 5, v{t3}")
    R(f"v_add_u32 v{t4}, s{sRB}, v{t3}")
    R(f"v_lshl_add_u32 v{t2}, v{vG}, 3, v{vR}")
    R(f"v_lshl_add_u32 v{rWQ}, v{t2}, 7, v{t4}")
    for m in range(1, 4): R(f"v_xor_b32 v{rWQ+m}, {32*m}, v{rWQ}")
    for u, L in DQ[npro:npro2]:
        for x in L: E.emit(x)
    R(f"v_lshl_add_u32 v{t2}, v{vG}, 2, v{vR}")
    R(f"v_lshl_add_u32 v{rV}, v{t2}, 7, v{t4}")
    for m in range(1, 4): R(f"v_xor_b32 v{rV+m}, {32*m}, v{rV}")
    R(f"v_lshl_add_u32 v{rWO}, v{t2}, 7, v{t3}")
    R(f"v_lshlrev_b32 v{t2}, 5, v{vW}")
    R(f"v_xor_b32 v{rWO}, v{rWO}, v{t2}")
    R(f"v_add_u32 v{rWO+1}, {2*RING}, v{rWO}")
    R(f"v_xor_b32 v{t2}, v{vG}, v{vP16}")
    R(f"v_lshlrev_b32 v{t2}, 4, v{t2}")
    R(f"v_lshl_add_u32 v{t2}, v{vP16}, 8, v{t2}")
    R(f"v_add_u32 v{rK}, s{sRB}, v{t2}")
    for k in range(1, 4): R(f"v_xor_b32 v{rK+k}, {64*k}, v{rK}")
    R(f"v_lshl_add_u32 v{t2}, v{vW}, 5, v{vG}")
    R(f"v_xor_b32 v{t3}, v{vP16}, v{vG}")
    R(f"v_lshlrev_b32 v{t3}, 4, v{t3}")
    R(f"v_lshl_add_u32 v{dK}, v{t2}, 9, v{t3}")
    for j in range(1, 4):
        R(f"v_xor_b32 v{dK+j}, {64*j}, v{dK}")
        R(f"v_add_u32 v{dK+j}, {1024*j}, v{dK+j}")
    R(f"v_lshlrev_b32 v{t2}, 1, v{vG}")
    R(f"v_xor_b32 v{t2}, v{vP8}, v{t2}")
    R(f"v_lshlrev_b32 v{t2}, 4, v{t2}")
    R(f"v_add_u32 v{dWO}, v{t1}, v{t2}")
    R(f"v_lshl_add_u32 v{t2}, v{vW}, 7, v{t2}")
    R(f"v_lshl_add_u32 v{dV}, v{vA}, 9, v{t2}")
    for j in range(1, 4): R(f"v_add_u32 v{dV+j}, {3072*j}, v{dV}")
    R(f"v_add_u32 v{rE}, {EB}, v{vST}")
    R(f"v_mul_u32_u24 v{t2}, 7168, v{vW}")
    R(f"v_add_u32 v{wP}, v{rE}, v{t2}")
    R(f"v_add_u32 v{wO}, v{wP}, v{t2}")
    R(f"v_lshrrev_b32 v{t3}, 1, v{vG}")
    R(f"v_lshl_add_u32 v{t3}, v{t3}, 4, v{vP16}")
    R(f"v_and_b32 v{t4}, 1, v{vG}")
    R(f"v_lshlrev_b32 v{t4}, 3, v{t4}")
    R(f"v_lshl_add_u32 v{t3}, v{t3}, 4, v{t4}")
    R(f"v_lshl_add_u32 v{t3}, v{t2}, 1, v{t3}")
    R(f"v_add_u32 v{wQ}, {EB}, v{t3}")
    if cfg.get("cpf"):
        R("s_getpc_b64 s[8:9]")
        E.label("L_pc")
        R("s_mov_b32 s10, L_exit-L_pc"); R("s_mov_b32 s11, 0x20000")
        R(f"v_lshlrev_b32 v{t2}, 7, v0")
        for k in range(cfg.get("cpf")):
            R(f"s_mov_b32 s41, {k*0x8000}")
            E.emit(Ins(f"buffer_load_dword v{t0}, v{t2}, s[8:11], s41 offen", "vmem", tag="pf"))
    dq = [x for u, L in DQ[npro2:] for x in L]

    stamp_n = [1]
    def stamp():
        k = stamp_n[0]; stamp_n[0] += 1
        R(f"s_memtime s[{sSTAMP+2*k}:{sSTAMP+2*k+1}]")
    def skipf(i):
        if cfg.get("nodma") and i.kind == "vmem" and i.tag != "store": return True
        if cfg.get("nost") and i.tag == "store": return True
        if cfg.get("novalu") and i.kind in ("valu", "trans", "perm"): return True
        return False

    wgap = {}
    def emit(x):
        if x.tag == "read":
            reads_left[x.res] -= 1; last_read[x.res] = now[0]
        if x.kind == "salu" and x.res is not None: E.wait_ds_res(lambda r: r == x.res)
        E.emit(x)
        for r in x.wr: wgap[r] = (now[0], x.kind)
    def ok(x, i): return x.after <= i and (x.pre is None or x.pre())
    def run_events(idx):
        for name, fn in events.get(idx, []):
            fn(); ev_done.add(name)
    def conflicts(x, y): return bool(x.rd & y.wr or x.wr & y.rd or x.wr & y.wr)
    def force_fifo(st, i, what):
        k = 0
        for kk, x in enumerate(st[:64]):
            if x.before <= i: k = kk + 1
        c = 0
        for x in st[:k]:
            assert ok(x, i), f"forced {what} not eligible at {i}: {x.text}"
            emit(x); c += x.cost
        del st[:k]
        return c
    def force_vs(i):
        need = [False] * min(len(VS), 600)
        for k in range(len(need) - 1, -1, -1):
            if VS[k].before <= i: need[k] = True
            if need[k]:
                for kk in range(k):
                    if not need[kk] and conflicts(VS[k], VS[kk]): need[kk] = True
        c = 0
        sel = [VS[k] for k in range(len(need)) if need[k]]
        for x in sel:
            assert ok(x, i), f"forced valu not eligible at {i}: {x.text}"
            VS.remove(x); emit(x); c += x.cost
        return c
    WIN = cfg.get("win", 150)
    def ready(x, i):
        if not ok(x, i) or E.need_nops(x) > 0: return False
        k = E.ds_idx(x)
        if k >= 0 and any(wgap.get(r, (-99, 0))[1] == "ds" and i - wgap[r][0] < 10 for r in x.rd | x.wr): return False
        for r in x.rd:
            if r in wgap and wgap[r][1] == "trans" and wgap[r][0] >= i: return False
        return True
    def pick(pred, i):
        blocked = []
        n = 0
        for k, x in enumerate(VS):
            if x.after <= i:
                n += 1
                if n > WIN: return None
            if pred(x) and ready(x, i) and not any(conflicts(x, y) for y in blocked): return x
            blocked.append(x)
            if k > 400: return None
        return None
    ismem = lambda x: x.kind in ("ds", "vmem")
    is4 = lambda x: x.cost == 4 and not ismem(x)

    run_events(-1)
    if stamps: stamp()
    E.skip = skipf
    over = {}; lastdma = -10; lastb128 = -10; lastw = -10; idle = {}
    for i in range(END):
        now[0] = i
        ph = "QSPO"[(i >= S0) + (i >= P0) + (i >= O0)]
        if i % 28 == 0:
            E.comment(f"---- step {i//28} {units[i//28]}")
            if i // 28 in stamps: stamp()
        c = force_fifo(RA, i - 4, "read") + force_fifo(RB, i - 4, "read") if i > 0 else force_fifo(RA, 0, "read") + force_fifo(RB, 0, "read")
        if i in (S0, O0): c += force_fifo(RB, i, "read")
        over[ph] = over.get(ph, 0) + c
        E.emit(mfma(i))
        bud = BUD
        if any(x.before <= i + 1 for x in VS[:600]):
            c = force_vs(i + 1); over[ph] = over.get(ph, 0) + max(0, c - bud); bud -= c
        run_events(i)
        if bud < BUD:
            continue
        cand = [q for q in (RA, RB) if q and ok(q[0], i)]
        cand.sort(key=lambda q: q[0].before)
        urgent = [q for q in cand if q[0].before <= i + 1 + sum(1 for x in q[:6] if x.before <= i + 6)]
        dma_due = dq and dq[0].kind == "vmem" and i - lastdma >= cfg.get("dmasp", 4) and E.need_nops(dq[0]) == 0
        x = None
        if urgent: x = urgent[0].pop(0)
        elif dma_due: x = dq.pop(0); lastdma = i
        elif PF and PF[0].after <= i and i - lastdma >= 2: x = PF.pop(0)
        else:
            cand = [q for q in cand if not ("b128" in q[0].text and i - lastb128 < cfg.get("b128sp", 2))]
            if cand: x = cand[0].pop(0)
        if x is None:
            big = lambda z: not is4(z) and not (ismem(z) and z.cost > 8 and i - lastw < (cfg.get("wsp", 3) if z.kind == "ds" else cfg.get("ssp", 6)))
            y4 = pick(is4, i); y8 = pick(big, i)
            y = y8
            if y4 is not None and y8 is not None and VS.index(y4) < VS.index(y8):
                load = sum(z.cost for z in VS[:600] if z.before <= y4.before)
                if load / 8.0 > (y4.before - i) * cfg.get("urg", 0.6): y = y4
            if y is not None and not is4(y):
                VS.remove(y); x = y
                if ismem(y) and y.cost > 8: lastw = i
        if x is not None:
            if "read_b128" in x.text: lastb128 = i
            emit(x); bud -= x.cost
            if x.cost > BUD: over[ph] = over.get(ph, 0) + x.cost - BUD
        while bud >= 4:
            if dq and dq[0].kind == "salu" and ok(dq[0], i):
                emit(dq.pop(0)); bud -= 4; continue
            y = pick(is4, i)
            if y is None: break
            VS.remove(y); emit(y); bud -= 4
        if bud > 0: idle[ph] = idle.get(ph, 0) + bud
    now[0] = END
    over["tail"] = sum(x.cost for x in VS)
    for x in VS: emit(x)
    assert not RA and not RB and not dq and not PF
    if stamps:
        stamp()
        R("s_waitcnt vmcnt(0)")
        stamp()
        R(f"s_memrealtime s[{sSTAMP+40}:{sSTAMP+41}]")
        R("s_waitcnt lgkmcnt(0)")
        n = stamp_n[0]
        R("s_add_u32 s8, s6, 0x8000000"); R("s_addc_u32 s9, s7, 0"); R("s_mov_b32 s10, 0x100000"); R("s_mov_b32 s11, 0x20000")
        R("s_lshl_b32 s12, s2, 2"); R(f"s_add_u32 s12, s12, s{sW}"); R("s_lshl_b32 s12, s12, 7")
        R("v_mov_b32 v2, s12")
        R(f"v_cmp_eq_u32 vcc, 0, v{vST}")
        R("s_and_saveexec_b64 s[14:15], vcc")
        for k in range(1, n):
            R(f"s_sub_u32 s13, s{sSTAMP+2*k}, s{sSTAMP}")
            R("v_mov_b32 v3, s13")
            R(f"buffer_store_dword v3, v2, s[8:11], 0 offen offset:{4*(k-1)}")
        R(f"v_mov_b32 v3, s{sSTAMP+38}")
        R(f"buffer_store_dword v3, v2, s[8:11], 0 offen offset:{4*30}")
        R(f"v_mov_b32 v3, s{sSTAMP+40}")
        R(f"buffer_store_dword v3, v2, s[8:11], 0 offen offset:{4*31}")
    R("s_waitcnt vmcnt(0)")
    E.label("L_exit")
    R("s_endpgm")
    print(f"main: nops {E.nops}, over {over}, idle {idle}, instrs {E.pos}", file=sys.stderr)

    E.out.append(""".globl gqa_reduce_kernel
.p2align 8
.type gqa_reduce_kernel,@function
gqa_reduce_kernel:""")
    R("s_cmp_ge_u32 s2, 448")
    R("s_cbranch_scc1 LR_exit")
    R("s_load_dwordx2 s[4:5], s[0:1], 40")
    R("s_load_dwordx2 s[6:7], s[0:1], 56")
    R("v_lshrrev_b32 v2, 6, v0")
    R("v_and_b32 v1, 63, v0")
    R("v_readfirstlane_b32 s3, v2")
    R(f"s_mul_hi_u32 s8, s2, {(2**32 + 27)//28}")
    R("s_mul_i32 s9, s8, 28")
    R("s_sub_u32 s9, s2, s9")
    R(f"s_mul_hi_u32 s10, s9, {(2**32 + 6)//7}")
    R("s_mul_i32 s11, s10, 7")
    R("s_sub_u32 s11, s9, s11")
    R("v_lshlrev_b32 v5, 4, v1")
    R("v_and_b32 v3, 15, v1"); R("v_lshrrev_b32 v4, 4, v1")
    R("s_mov_b32 s24, 14336")
    R("s_cmp_eq_u32 s3, 3")
    R("s_cbranch_scc0 LR_a")
    R("v_lshlrev_b32 v3, 1, v1"); R("v_and_b32 v3, 15, v3"); R("v_lshrrev_b32 v4, 3, v1")
    R("s_mov_b32 s24, 896")
    R("v_mov_b32 v6, 0x40000000")
    R("v_cmp_lt_u32 vcc, 31, v1")
    R("s_nop 1")
    R("v_cndmask_b32 v5, v5, v6, vcc")
    R("v_cndmask_b32 v3, v3, v6, vcc")
    R("v_min_u32 v3, 0x10000, v3")
    E.label("LR_a")
    R("v_mul_u32_u24 v7, 896, v3")
    R("v_lshl_add_u32 v7, v4, 3, v7")
    R("s_mul_i32 s13, s8, 1605632")
    R("s_mul_i32 s14, s9, 3584")
    R("s_add_u32 s13, s13, s14")
    R("s_lshl_b32 s14, s3, 10")
    R("s_add_u32 s13, s13, s14")
    R("s_waitcnt lgkmcnt(0)")
    R("s_add_u32 s16, s6, s13"); R("s_addc_u32 s17, s7, 0"); R("s_mov_b32 s18, 1605632"); R("s_mov_b32 s19, 0x20000")
    for h in range(16):
        R(f"s_mov_b32 s15, {h*100352}")
        R(f"buffer_load_dwordx4 v[{8+4*h}:{11+4*h}], v5, s[16:19], s15 offen {cfg.get('rlfl','')}")
    R("s_mul_i32 s13, s8, 100352")
    R("s_add_u32 s20, s4, s13"); R("s_addc_u32 s21, s5, 0"); R("s_mov_b32 s22, 100352"); R("s_mov_b32 s23, 0x20000")
    R("s_mul_i32 s14, s3, 28672")
    R("s_lshl_b32 s15, s11, 7"); R("s_add_u32 s14, s14, s15")
    R("s_lshl_b32 s15, s10, 5"); R("s_add_u32 s14, s14, s15")
    R("s_add_u32 s24, s24, s14")
    for h in range(16):
        R(f"s_waitcnt vmcnt({15-h})")
        for r in range(4):
            src = 8 + 4 * h + r
            if h == 0:
                R(f"v_lshlrev_b32 v{72+2*r}, 16, v{src}"); R(f"v_and_b32 v{73+2*r}, 0xffff0000, v{src}")
            else:
                R(f"v_lshlrev_b32 v80, 16, v{src}"); R(f"v_and_b32 v81, 0xffff0000, v{src}")
                R(f"v_add_f32 v{72+2*r}, v{72+2*r}, v80"); R(f"v_add_f32 v{73+2*r}, v{73+2*r}, v81")
    for r in range(4): R(f"v_cvt_pk_bf16_f32 v{84+r}, v{72+2*r}, v{73+2*r}")
    R("buffer_store_dwordx2 v[84:85], v7, s[20:23], s14 offen")
    R("buffer_store_dwordx2 v[86:87], v7, s[20:23], s24 offen")
    if stamps:
        R("s_waitcnt vmcnt(0)")
        R("s_memrealtime s[24:25]")
        R("s_waitcnt lgkmcnt(0)")
        R("s_add_u32 s16, s6, 0x8100000"); R("s_addc_u32 s17, s7, 0"); R("s_mov_b32 s18, 0x100000"); R("s_mov_b32 s19, 0x20000")
        R("s_lshl_b32 s12, s2, 2"); R("v_mov_b32 v2, s12"); R("v_mov_b32 v3, s24")
        R("v_cmp_eq_u32 vcc, 0, v0")
        R("s_and_saveexec_b64 s[14:15], vcc")
        R("buffer_store_dword v3, v2, s[16:19], 0 offen")
    R("s_waitcnt vmcnt(0)")
    E.label("LR_exit")
    R("s_endpgm")
    E.out.append(""".section .rodata,"a"
.p2align 6
.amdhsa_kernel gqa_main_kernel
  .amdhsa_next_free_vgpr 512
  .amdhsa_next_free_sgpr 102
  .amdhsa_accum_offset 256
  .amdhsa_group_segment_fixed_size 0
  .amdhsa_kernarg_size 64
  .amdhsa_user_sgpr_count 2
  .amdhsa_user_sgpr_kernarg_segment_ptr 1
  .amdhsa_system_sgpr_workgroup_id_x 1
.end_amdhsa_kernel
.p2align 6
.amdhsa_kernel gqa_reduce_kernel
  .amdhsa_next_free_vgpr 88
  .amdhsa_next_free_sgpr 32
  .amdhsa_accum_offset 88
  .amdhsa_group_segment_fixed_size 0
  .amdhsa_kernarg_size 64
  .amdhsa_user_sgpr_count 2
  .amdhsa_user_sgpr_kernarg_segment_ptr 1
  .amdhsa_system_sgpr_workgroup_id_x 1
.end_amdhsa_kernel
""")
    return "\n".join(E.out)

if __name__ == "__main__":
    ap = argparse.ArgumentParser()
    ap.add_argument("-o", default="a16.s")
    ap.add_argument("kv", nargs="*")
    a = ap.parse_args()
    cfg = {}
    for kv in a.kv:
        k, v = kv.split("=", 1)
        try: cfg[k] = eval(v)
        except Exception: cfg[k] = v
    txt = build(cfg)
    open(a.o, "w").write(txt)
```

```python
import sys, math, struct, argparse

def f2u(x): return struct.unpack("<I", struct.pack("<f", x))[0]
def V(lo, n=1): return {("v", lo + i) for i in range(n)}
def Ac(lo, n=1): return {("a", lo + i) for i in range(n)}
def vr(lo, n): return f"v[{lo}:{lo+n-1}]" if n > 1 else f"v{lo}"
def ar(lo, n): return f"a[{lo}:{lo+n-1}]"
INF = 1 << 30

class Ins:
    def __init__(s, text, kind, rd=(), wr=(), cost=4, after=-1, before=INF, tag=None, rdc=(), pre=None, res=None, passes=4):
        s.text, s.kind, s.rd, s.wr, s.cost = text, kind, set(rd), set(wr), cost
        s.after, s.before, s.tag, s.rdc = after, before, tag, set(rdc)
        s.pre = pre
        s.res = res
        s.passes = passes

class Emitter:
    def __init__(s):
        s.out = []; s.pos = 0
        s.dsq = []
        s.vmq = []
        s.lastw = {}; s.lastc = {}; s.lastst = {}
        s.nops = 0; s.skip = None
    def raw(s, text, n=1):
        s.out.append("    " + text); s.pos += n
    def label(s, l): s.out.append(l + ":")
    def comment(s, c): s.out.append("    ; " + c)
    def need_nops(s, i):
        need = 0
        def req(p, d):
            nonlocal need
            need = max(need, d - (s.pos - p - 1))
        for r in i.rd | i.wr:
            if r in s.lastw:
                k, p = s.lastw[r]
                if k == "mfma":
                    if i.kind == "mfma":
                        if r in i.rd and r not in i.rdc: req(p, 8)
                    else: req(p, 8)
                if r in i.rd:
                    if k in ("valu", "trans") and i.kind == "mfma": req(p, 2)
                    if k == "trans" and i.kind in ("valu", "trans", "perm", "vmem", "ds"): req(p, 1)
                    if k in ("valu", "trans") and i.kind == "perm": req(p, 2)
                    if k == "salu" and r == ("s", "m0") and i.kind == "vmem": req(p, 1)
        if i.kind in ("valu", "trans", "perm"):
            for r in i.wr:
                if r in s.lastc: req(s.lastc[r], 3)
                if r in s.lastst: req(s.lastst[r], 2)
        if i.kind == "mfma":
            for r in i.wr:
                if r in s.lastst: req(s.lastst[r], 2)
        return need
    def ds_idx(s, i):
        idx = -1
        for k, (d, _) in enumerate(s.dsq):
            if d & (i.rd | i.wr): idx = k
        return idx
    def wait_ds_idx(s, idx):
        n = len(s.dsq) - idx - 1
        if n > 15:
            idx += n - 15; n = 15
        s.raw(f"s_waitcnt lgkmcnt({n})")
        s.dsq = s.dsq[idx + 1:]
    def wait_ds_res(s, pred):
        idx = -1
        for k, (_, r) in enumerate(s.dsq):
            if r is not None and pred(r): idx = k
        if idx >= 0: s.wait_ds_idx(idx)
    def emit(s, i):
        idx = s.ds_idx(i)
        if idx >= 0: s.wait_ds_idx(idx)
        if i.kind == "ds" and len(s.dsq) >= 13: s.wait_ds_idx(len(s.dsq) - 1 - 9)
        n = s.need_nops(i)
        if n > 0:
            s.nops += n
            while n > 0:
                k = min(n, 16); s.raw(f"s_nop {k-1}", k); n -= k
        if not (s.skip and s.skip(i)): s.out.append("    " + i.text)
        p = s.pos; s.pos += 1
        kind = "valu" if i.kind == "perm" else i.kind
        for r in i.wr: s.lastw[r] = (kind, p)
        if i.kind == "mfma":
            for r in i.rdc: s.lastc[r] = p
        if i.kind == "ds": s.dsq.append((set(i.wr), i.res))
        if i.kind == "vmem":
            s.vmq.append(i.tag)
            if i.tag == "store":
                for r in i.rd: s.lastst[r] = p
    def wait_vm(s, tags):
        idx = -1
        for k, t in enumerate(s.vmq):
            if t in tags: idx = k
        for t in tags:
            assert s.vmq.count(t) == 4, f"unit {t} not fully issued before its wait ({s.vmq.count(t)})"
        n = min(63, len(s.vmq) - idx - 1)
        if n < getattr(s, "vm_known", 1 << 30) + (len(s.vmq) - getattr(s, "vm_len", 0)):
            s.raw(f"s_waitcnt vmcnt({n})")
            s.vm_known = n; s.vm_len = len(s.vmq)

RING = 24576; NU = 6; UNIT = 4096
EB = 4 * RING
LB = EB + 57344
vLANE = 53
dK = 1
dV = 5
dWO = 9
vST = 10
vST2 = 5
rK = 12
rV = 16
rWO = 20
rE = 22
wP = 23
wO = 24
vL = 25
SACC = [32, 60]; PR = [88, 116]; OACC = 144
dX = 116
dWQ = 120
rX = 124
rWQ = 126
wQ = 130
AQ = 0
AK = 224
sSRD_X, sSRD_WQ, sSRD_K, sSRD_V, sSRD_WO, sSRD_WS = 16, 20, 24, 28, 32, 36
sRB = 42; sOFF = 43; sC = 44; sXB = 45; sW = 3; sST = 47
sSTAMP = 68
sSRD_FL, sSRD_FM, sSRD_PB, sSRD_OUT = 8, 12, 60, 64
sH = 56; sRO = 57; sBB = 58
FLOFF = 0x2000000
sSTO = 48
sPFO = 55
sW2K = 59
sSQ = 47; sSX = 51; sSTG = 41; sSTV = 55
vPFK = 11; vPFV = 11
def srd(n): return f"s[{n}:{n+3}]"
assert vL + 7 <= 32

def build(cfg):
    BUD = cfg.get("budget", 8)
    stamps = cfg.get("stamps", [])
    ntKV = "nt" if cfg.get("ntkv", 1) else ""
    ntW = "nt" if cfg.get("ntw", 0) else ""
    ntX = "nt" if cfg.get("ntx", 0) else ""
    stfl = cfg.get("stfl", "sc1")
    DMIN = cfg.get("dmin", 8)
    E = Emitter(); R = E.raw
    BL = 56
    Q0, S0, P0, O0, END = 0, 7 * BL, 15 * BL, 23 * BL, 30 * BL

    units = [("WQ", t) for t in range(14)] + [("K", i, h) for i in range(8) for h in range(2)] \
          + [("V", k) for k in range(16)] + [("WO", p, kh) for p in range(7) for kh in range(2)]
    uidx = {u: k for k, u in enumerate(units)}
    ESLOT = {8: 0, 9: 1, 10: 2, 11: 3}
    def uoff(u):
        if u[0] == "WO" and 2 * u[1] + u[2] >= 12: return ((uidx[u] - 10) % NU) * UNIT
        return (uidx[u] % NU) * UNIT
    rWOE = rK

    M = []
    def qa(j, ks, mt): return 32 * (j & 1) + 16 * ks + 4 * mt
    def qb(j, ks, nu): return 64 + 56 * (j & 1) + 28 * ks + 4 * nu
    def oacc(mt, nu): return OACC + 4 * (4 * nu + mt)
    first_use = {}; last_use = {}
    def use(name, i):
        first_use.setdefault(name, i); last_use[name] = i
    done_at = {}
    for j in range(7):
        for nu in range(7):
            for mt in range(4):
                for ks in range(2):
                    i = len(M)
                    M.append((oacc(mt, nu), qa(j, ks, mt), qb(j, ks, nu), j == 0 and ks == 0))
                    use(("QA", j, ks, mt), i); use(("QB", j, ks, nu), i); done_at[("Q", mt, nu)] = i
    def ka(step, k): return AK + 16 * (step & 1) + 4 * k
    SX = OACC + 112 - 28
    sbuf = [SACC[0], SACC[1], SX, SACC[0], SACC[1], SX, SACC[0], SACC[1]] if cfg.get("s3", 1) else [SACC[b & 1] for b in range(8)]
    for b in range(8):
        for h in range(2):
            for nu in range(7):
                for k in range(4):
                    i = len(M)
                    M.append((sbuf[b] + 4 * nu, ka(2 * b + h, k), AQ + 4 * ((4 * h + k) * 7 + nu), h == 0 and k == 0))
                    use(("SA", b, h, k), i); use(("SB", 4 * h + k, nu), i); done_at[("S", b, nu)] = i
                    use(("Sacc", b, nu), i)
    for j in range(8):
        for nu in range(7):
            for mt in range(4):
                for ks in range(2):
                    i = len(M)
                    M.append((oacc(mt, nu), qa(j, ks, mt), qb(j, ks, nu), j == 0 and ks == 0))
                    use(("VA", j, ks, mt), i); use(("VB", j, ks, nu), i); done_at[("O", mt, nu)] = i
    def oa(p, kap): return ("a", AK + 4 * kap) if p % 2 == 0 else ("v", PR[0] + 4 * kap)
    for p in range(7):
        for nu in range(7):
            for kap in range(8):
                i = len(M)
                M.append((SACC[p & 1] + 4 * nu, oa(p, kap), AQ + 4 * (kap * 7 + nu), kap == 0))
                use(("OA", p, kap >> 2, kap & 3), i); use(("OB", kap, nu), i); done_at[("Y", p, nu)] = i
                use(("Yacc", p, nu), i)
    assert len(M) == END
    def mfma(i):
        acc, a, b, cz = M[i]
        Cs = set() if cz else V(acc, 4)
        if not isinstance(a, tuple): a = ("a", a)
        at, as_ = (ar(a[1], 4), Ac(a[1], 4)) if a[0] == "a" else (vr(a[1], 4), V(a[1], 4))
        return Ins(f"v_mfma_f32_16x16x32_bf16 {vr(acc,4)}, {at}, {ar(b,4)}, {'0' if cz else vr(acc,4)}", "mfma",
                   rd=as_ | Ac(b, 4) | Cs, wr=V(acc, 4), rdc=Cs, cost=8)

    ev_done = set()
    events = {}
    def add_event(idx, name, fn): events.setdefault(idx, []).append((name, fn))
    def after_ev(*names): return lambda: all(n in ev_done for n in names)

    M0 = {("s", "m0")}
    reads_left = {}
    last_read = {}; now = [0]
    def res_idle(res):
        return reads_left.get(res, 0) == 0 and not any(r == res for _, r in E.dsq)

    def dma_unit(u, pre=None):
        L = []
        k = u[0]
        if k == "X":
            L.append(Ins(f"s_add_u32 m0, s{sXB}, {(u[1] % 4) * 16384}", "salu", wr=M0, pre=pre))
        elif k == "WO" and 2 * u[1] + u[2] in ESLOT:
            L.append(Ins(f"s_add_u32 m0, s{sXB}, {ESLOT[2 * u[1] + u[2]] * 16384}", "salu", wr=M0, pre=pre))
        else:
            L.append(Ins(f"s_add_u32 m0, s{sRB}, {uoff(u)}", "salu", wr=M0, pre=pre))
        def smov(val): L.append(Ins(f"s_mov_b32 s{sOFF}, {val}", "salu"))
        def sxor(val):
            if cfg.get("stag"): L.append(Ins(f"s_xor_b32 s{sOFF}, s{sSTG if k == 'K' else sSTV}, {val}", "salu"))
            else: smov(val)
        def ld(vreg, sr, j, fl):
            L.append(Ins(f"buffer_load_dwordx4 v{vreg}, {srd(sr)}, s{sOFF} offen offset:{j*1024} {fl} lds".replace("  ", " "),
                         "vmem", rd=M0 | V(vreg), tag=u, cost=8))
        if k == "X":
            smov(128 * u[1])
            for j in range(4): ld(dX + j, sSRD_X, j, ntX)
        elif k == "WQ":
            smov(u[1] * 32 * 8192)
            for j in range(4): ld(dWQ + j, sSRD_WQ, j, ntW)
        elif k == "K":
            sxor((u[1] >> 1) * 65536 + (u[1] & 1) * 8192 + u[2] * 256)
            for j in range(4): ld(dK + j, sSRD_K, j, ntKV)
        elif k == "V":
            sxor(u[1] * 16384)
            for j in range(4): ld(dV + j, sSRD_V, j, ntKV)
        elif k == "WO":
            for j in range(4):
                smov(u[2] * 128 * 896 + u[1] * 128 + j * (8 * 896 - 1024)); ld(dWO, sSRD_WO, j, ntW)
        return L

    def rd(kind, dst, n, areg, off, res, after, before, pre=None):
        assert 0 <= off < 65536
        reads_left[res] = reads_left.get(res, 0) + 1
        if not isinstance(dst, tuple): dst = ("a", dst)
        dt, ds_ = (ar(dst[1], n), Ac(dst[1], n)) if dst[0] == "a" else (vr(dst[1], n), V(dst[1], n))
        return Ins(f"{kind} {dt}, v{areg} offset:{off}", "ds", rd=V(areg), wr=ds_, res=res,
                   after=after, before=max(before, after + 1), pre=pre, tag="read")

    RA = []; RB = []
    MID = cfg.get("mid", 40)
    A1, A2 = cfg.get("a1", 6), cfg.get("a2", 30)
    def vmwait(tags): return lambda: E.wait_vm(tags)
    def bar(tags=(), wres=None, idle=()):
        def f():
            for r in idle: assert reads_left.get(r, 0) == 0, f"barrier releases {r} with reads pending"
            if wres is not None:
                assert not any(x.kind == "ds" and x.res is not None and wres(x.res) for x in VS), "publishing barrier before all writes were emitted"
            E.wait_ds_res(lambda r: r in idle or (wres is not None and wres(r)))
            if tags: E.wait_vm(list(tags))
            if not cfg.get("nobar"): R("s_barrier")
        return f
    def areads(base, j, kind, fu, areg, estride, busy=None):
        for ks in range(2):
            u = (kind, 2 * j + ks)
            at = base + (j - 1) * BL + (A1, A2)[ks]
            if base == 0 and j == 0: at = -1
            name = ("Wa", u)
            add_event(at, name, vmwait([u]))
            for mt in range(4):
                a0 = at if busy is None else max(at, busy(qa(j, ks, mt)))
                for e in range(2):
                    RA.append(rd("ds_read_b64_tr_b16", qa(j, ks, mt) + 2 * e, 2, areg + mt, uoff(u) + e * estride, u, a0,
                                 first_use[(fu, j, ks, mt)] - DMIN, after_ev(name)))
    for j in range(7):
        at = (j - 1) * BL + MID if j > 0 else -1
        name = ("Bx", j)
        add_event(at, name, bar(tags=[("X", j)], idle=[("X", j - 1)] if j > 0 else []))
        areads(0, j, "WQ", "QA", rWQ, 512)
        for nu in range(7):
            for ks in range(2):
                RB.append(rd("ds_read_b128", qb(j, ks, nu), 4, rX + ks, (j % 4) * 16384 + nu * 2048, ("X", j), at,
                             min(first_use[("QB", j, ks, nu)] - DMIN, j * BL + (MID - 6 if j < 6 else cfg.get("xe", 12) - 4)), after_ev(name)))
    add_event(6 * BL + cfg.get("xe", 12), "Bxe", bar(idle=[("X", 6)]))
    for st in range(16):
        b, h = st >> 1, st & 1
        at = S0 + (st - 1) * 28 + cfg.get("kat", 10)
        name = ("Wk", st)
        add_event(at, name, vmwait([("K", b, h)]))
        RA += [rd("ds_read_b128", ka(st, k), 4, rK + k, uoff(("K", b, h)), ("K", b, h), at,
                  first_use[("SA", b, h, k)] - DMIN, after_ev(name)) for k in range(4)]
    add_event(S0 - 1, "Bq", bar(wres=lambda r: r == "qw"))
    for h in range(2):
        for nu in range(7):
            for k in range(4):
                kap = 4 * h + k
                RB.append(rd("ds_read_b128", AQ + 4 * (kap * 7 + nu), 4, rE, (kap * 7 + nu) * 1024, "q", S0 - 1,
                             first_use[("SB", kap, nu)] - DMIN, after_ev("Bq")))
    add_event(S0 + BL + 4, "Bqe", bar(idle=["q"]))
    def qbusy(reg): return last_use[("SB",) + divmod((reg - AQ) // 4, 7)]
    for j in range(8):
        at = P0 + (j - 1) * BL + MID
        c = j >> 1
        name = ("Bp", j & ~1)
        if j == 0: add_event(at, name, bar(wres=lambda r: r in (("pw", 0), ("pw", 1))))
        elif j == 2: add_event(at, name, bar(idle=[("P", 0)]))
        elif j == 4: add_event(at, name, bar(idle=[("P", 1)], wres=lambda r: r == ("pw", 2)))
        elif j == 6: add_event(at, name, bar(idle=[("P", 2)], wres=lambda r: r in (("pw", 3), "lw")))
        areads(P0, j, "V", "VA", rV, 2048, qbusy if j < 2 else None)
        if j & 1: at = P0 + (j - 1) * BL + cfg.get("mid2", 30)
        for nu in range(7):
            for ks in range(2):
                a0 = max(at, qbusy(qb(j, ks, nu))) if j < 2 else at
                wprod = 2 * (j & 1) + ks
                RB.append(rd("ds_read_b128", qb(j, ks, nu), 4, rE, (c & 1) * 28672 + (wprod * 7 + nu) * 1024, ("P", c), a0,
                             min(first_use[("VB", j, ks, nu)] - DMIN, P0 + j * BL + (MID - 6 if j < 7 else cfg.get("xe", 12) - 4)), after_ev(name)))
    add_event(P0 + 7 * BL + cfg.get("xe", 12), "Bpe", bar(idle=[("P", 3)]))
    add_event(O0 - 1, "Bo_x", bar(wres=lambda r: r == "ow", idle=[("WO", 0, 0), ("WO", 0, 1)], tags=[("WO", 1, 0), ("WO", 1, 1)]))
    for p in range(7):
        at = O0 + (p - 1) * BL + cfg.get("oat", 24)
        name = ("Bo", p)
        if p == 1: name = "Bo_x"; at = O0 + cfg.get("oat1", 0)
        elif p == 2:
            at = O0 + BL - 2
            add_event(at, name, bar(tags=[("WO", p, 0), ("WO", p, 1)], idle=["o", ("WO", 1, 0), ("WO", 1, 1)]))
        else: add_event(at, name, bar(tags=[("WO", p, 0), ("WO", p, 1)]))
        if p == 2: at = O0 + BL + 8
        for h in range(2):
            st = 2 * p + h
            for k in range(4):
                for e in range(2):
                    if st in ESLOT: areg, off = rWOE, ESLOT[st] * 16384 + k * 4096 + e * 2048
                    else: areg, off = rWO + (k >> 1), (k & 1) * RING + uoff(("WO", p, h)) + e * 2048
                    d = oa(p, 4 * h + k)
                    bef = first_use[("OA", p, h, k)] - DMIN
                    if p == 0: bef = min(bef, O0 - 8)
                    if p == 1: bef = min(bef, O0 + 3 * (8 * h + 2 * k + e) + 4)
                    RA.append(rd("ds_read_b64_tr_b16", (d[0], d[1] + 2 * e), 2, areg, off, ("WO", p, h), at, bef, after_ev(name)))
    for nu in range(7):
        for kap in range(8):
            RB.append(rd("ds_read_b128", AQ + 4 * (kap * 7 + nu), 4, rE, (kap * 7 + nu) * 1024, "o", O0 - 1,
                         first_use[("OB", kap, nu)] - DMIN, after_ev("Bo_x")))

    DQ = []
    order = []
    xs = [("X", j) for j in range(7)]
    order = [xs[0], units[0], units[1], xs[1], units[2], units[3], xs[2], units[4], units[5], xs[3]]
    k = 6
    for j in range(4, 7):
        order += [units[k], units[k + 1], xs[j]]; k += 2
    order += units[k:]
    for u in order:
        if u[0] == "X":
            pre = after_ev(("Bx", u[1] - 3)) if u[1] >= 4 else None
        else:
            k = uidx[u]
            if k < NU: pre = None
            elif units[k - NU][0] == "WO":
                st = 2 * u[1] + u[2]
                pre = after_ev("Bo_x") if st < 8 else after_ev(("Bo", 2))
            else:
                pre = (lambda r: (lambda: reads_left[r] == 0 and now[0] - last_read[r] >= cfg.get("rel", 7)))(units[k - NU])
        L = dma_unit(u, pre)
        if u[0] != "X" and uidx[u] >= NU and units[uidx[u] - NU][0] != "WO": L[0].res = units[uidx[u] - NU]
        DQ.append((u, L))

    def valu(text, rd_, wr_, after, before=INF, kind="valu", cost=4, pre=None):
        return Ins(text, kind, rd=rd_, wr=wr_, after=after, before=before, cost=cost, pre=pre)
    VS = []
    for nu in range(7):
        aft = done_at[("Q", 3, nu)]
        for mt in range(4):
            r = oacc(mt, nu)
            for x in range(4): VS.append(valu(f"v_mul_f32 v{r+x}, s{sC}, v{r+x}", V(r + x), V(r + x), aft, S0))
        for mt in range(4):
            r = oacc(mt, nu)
            VS.append(valu(f"v_cvt_pk_bf16_f32 v{r}, v{r}, v{r+1}", V(r, 2), V(r), aft, S0))
            VS.append(valu(f"v_cvt_pk_bf16_f32 v{r+1}, v{r+2}, v{r+3}", V(r + 2, 2), V(r + 1), aft, S0))
        for mt in range(4):
            r = oacc(mt, nu)
            off = ((mt >> 1) * 7 + nu) * 1024 + (mt & 1) * 512
            VS.append(Ins(f"ds_write_b64 v{wQ}, {vr(r,2)} offset:{off}", "ds", rd=V(wQ) | V(r, 2), res="qw",
                          after=aft, before=S0, pre=after_ev("Bxe"), cost=12))
    def pw(c, nu, hf, aft, bef, evn):
        r = PR[c & 1] + 4 * nu + 2 * hf
        return Ins(f"ds_write_b64 v{wP}, {vr(r,2)} offset:{(c&1)*28672+nu*1024+8*hf}", "ds", rd=V(wP) | V(r, 2), res=("pw", c),
                   after=aft, before=bef, pre=after_ev(evn), cost=12)
    pend = []
    WS = []
    pvfirst = {}
    for i in range(P0, P0 + BL): pvfirst.setdefault(M[i][0], i)
    for b in range(8):
        c, hf = b >> 1, b & 1
        for nu in range(7):
            acc = sbuf[b] + 4 * nu
            aft = done_at[("S", b, nu)]
            nxt = [bb for bb in range(b + 1, 8) if sbuf[bb] == sbuf[b]]
            pdead = (P0 - BL + MID, P0 - BL + MID, P0 + 3 * BL + MID, P0 + 5 * BL + MID)[c]
            if nxt: bef = first_use[("Sacc", nxt[0], nu)]
            elif acc in pvfirst: bef = pvfirst[acc]
            else: bef = INF
            bef = min(bef, pdead - 2)
            pr = PR[c & 1] + 4 * nu + 2 * hf
            ex = [valu(f"v_exp_f32 v{acc+x}, v{acc+x}", V(acc + x), V(acc + x), aft, bef, kind="trans", cost=8) for x in range(4)]
            if b == 0:
                ad = [valu(f"v_add_f32 v{vL+nu}, v{acc}, v{acc+1}", V(acc, 2), V(vL + nu), aft, bef)]
                ad += [valu(f"v_add_f32 v{vL+nu}, v{vL+nu}, v{acc+x}", V(vL + nu) | V(acc + x), V(vL + nu), aft, bef) for x in (2, 3)]
                ad = [None] + ad
            else:
                ad = [valu(f"v_add_f32 v{vL+nu}, v{vL+nu}, v{acc+x}", V(vL + nu) | V(acc + x), V(vL + nu), aft, bef) for x in range(4)]
            cv = [valu(f"v_cvt_pk_bf16_f32 v{pr}, v{acc}, v{acc+1}", V(acc, 2), V(pr), aft, bef),
                  valu(f"v_cvt_pk_bf16_f32 v{pr+1}, v{acc+2}, v{acc+3}", V(acc + 2, 2), V(pr + 1), aft, bef)]
            tail = [ad[0], cv[0], ad[1], cv[1], ad[2], ad[3]]
            tail = [x for x in tail if x is not None]
            tail.append(pw(c, nu, hf, aft, pdead, ("Bqe", "Bqe", ("Bp", 2), ("Bp", 4))[c]))
            seq = []
            for x in range(4):
                seq.append(ex[x])
                seq += pend[:2]; pend = pend[2:]
            seq += pend
            pend = tail
            VS += seq
    VS += pend
    lbef = P0 + 5 * BL + MID
    T0 = SACC[0]
    aft = done_at[("S", 7, 6)]
    for nu in range(7): VS.append(valu(f"v_mov_b32 v{T0+nu}, v{vL+nu}", V(vL + nu), V(T0 + nu), aft, lbef))
    for nu in range(7): VS.append(valu(f"v_permlane32_swap_b32 v{vL+nu}, v{T0+nu}", V(vL + nu) | V(T0 + nu), V(vL + nu) | V(T0 + nu), aft, lbef, kind="perm", cost=8))
    for nu in range(7): VS.append(valu(f"v_add_f32 v{vL+nu}, v{vL+nu}, v{T0+nu}", V(vL + nu) | V(T0 + nu), V(vL + nu), aft, lbef))
    for nu in range(7): VS.append(valu(f"v_mov_b32 v{T0+nu}, v{vL+nu}", V(vL + nu), V(T0 + nu), aft, lbef))
    for nu in range(7): VS.append(valu(f"v_permlane16_swap_b32 v{vL+nu}, v{T0+nu}", V(vL + nu) | V(T0 + nu), V(vL + nu) | V(T0 + nu), aft, lbef, kind="perm", cost=8))
    for nu in range(7): VS.append(valu(f"v_add_f32 v{T0+8+nu}, v{vL+nu}, v{T0+nu}", V(vL + nu) | V(T0 + nu), V(T0 + 8 + nu), aft, lbef))
    VS.append(valu(f"v_add_u32 v{T0+7}, s{sXB}, v{vST}", V(vST), V(T0+7), aft, lbef))
    VS.append(valu(f"v_subrev_u32 v{T0+7}, s{sW2K}, v{T0+7}", V(T0+7), V(T0+7), aft, lbef))
    for hh in range(2):
        VS.append(Ins(f"ds_write_b128 v{T0+7}, {vr(T0+8+4*hh,4)} offset:{57344+hh*1024}", "ds", rd=V(T0+7) | V(T0 + 8 + 4 * hh, 4),
                      res="lw", after=aft, before=lbef, cost=20))
    rb = P0 + 7 * BL
    for w in range(4):
        for hh in range(2):
            d = T0 + 8 * w + 4 * hh
            VS.append(Ins(f"ds_read_b128 {vr(d,4)}, v{rE} offset:{57344+w*2048+hh*1024}", "ds", rd=V(rE), wr=V(d, 4), res="lr",
                          after=0, before=rb, pre=after_ev(("Bp", 6))))
    la = P0 + 6 * BL + 20
    for nu in range(7): VS.append(valu(f"v_add_f32 v{T0+nu}, v{T0+nu}, v{T0+8+nu}", V(T0 + nu) | V(T0 + 8 + nu), V(T0 + nu), la, O0))
    for nu in range(7): VS.append(valu(f"v_add_f32 v{T0+16+nu}, v{T0+16+nu}, v{T0+24+nu}", V(T0 + 16 + nu) | V(T0 + 24 + nu), V(T0 + 16 + nu), la, O0))
    for nu in range(7): VS.append(valu(f"v_add_f32 v{T0+nu}, v{T0+nu}, v{T0+16+nu}", V(T0 + nu) | V(T0 + 16 + nu), V(T0 + nu), la, O0))
    for nu in range(7): VS.append(valu(f"v_rcp_f32 v{vL+nu}, v{T0+nu}", V(T0 + nu), V(vL + nu), la, O0, kind="trans", cost=8))
    VS.append(valu(f"v_add_u32 v{rWOE}, {EB}, v{rWO}", V(rWO), V(rWOE), P0 + 6 * BL, O0))
    VS.append(valu(f"v_lshrrev_b32 v{vST2}, 1, v{vST}", V(vST), V(vST2), P0 + 6 * BL, O0))
    for nu in range(7):
        aft = done_at[("O", 3, nu)]
        for al in range(2):
            r = oacc(2 * al, nu)
            for x in range(4):
                VS.append(valu(f"v_cvt_pk_bf16_f32 v{r+x}, v{r+2*x}, v{r+2*x+1}", V(r + 2 * x, 2), V(r + x), aft, O0))
        for al in range(2):
            r = oacc(2 * al, nu)
            VS.append(Ins(f"ds_write_b128 v{wO}, {vr(r,4)} offset:{(al*7+nu)*1024}", "ds", rd=V(wO) | V(r, 4), res="ow",
                          after=aft, before=O0, pre=after_ev("Bpe"), cost=20))
    SQ = []
    for p in range(7):
        stg = OACC + 16 * p
        for nu in range(7):
            acc = SACC[p & 1] + 4 * nu
            aft = done_at[("Y", p, nu)]
            bef = first_use[("Yacc", p + 2, nu)] if p < 5 else INF
            for x in range(4): VS.append(valu(f"v_mul_f32 v{acc+x}, v{vL+nu}, v{acc+x}", V(acc + x) | V(vL + nu), V(acc + x), aft, bef))
            d = stg + 2 * nu
            VS.append(valu(f"v_cvt_pk_bf16_f32 v{d}, v{acc}, v{acc+1}", V(acc, 2), V(d), aft, bef))
            VS.append(valu(f"v_cvt_pk_bf16_f32 v{d+1}, v{acc+2}, v{acc+3}", V(acc + 2, 2), V(d + 1), aft, bef))
            gate = (lambda: not dq) if cfg.get("gate", 1) else None
            if nu & 1:
                VS.append(Ins(f"buffer_store_dwordx4 {vr(d-2,4)}, v{vST}, {srd(sSRD_WS)}, s{sSTO+p} offen offset:{(nu>>1)*1024} {stfl}",
                              "vmem", rd=V(d - 2, 4) | V(vST), tag="store", after=aft, cost=32, pre=gate))
            if nu == 6:
                VS.append(Ins(f"buffer_store_dwordx2 {vr(d,2)}, v{vST2}, {srd(sSRD_WS)}, s{sSTO+p} offen offset:3072 {stfl}",
                              "vmem", rd=V(d, 2) | V(vST2), tag="store", after=aft, cost=18, pre=gate))

    vFA, vFO, vFN, vFV, vRA, vOA, vOA2, vZ = dK, dK + 1, dK + 2, dK + 3, 40, 41, 42, 43
    def publish(cnt):
        R(f"v_and_b32 v{vFV}, -16, v{vFV}")
        R(f"v_add_u32 v{vFV}, {16 + cnt}, v{vFV}")
        R(f"buffer_store_dword v{vFV}, v{vZ}, {srd(sSRD_FM)}, 0 offen sc1")
    def reduce_setup():
        t = 44
        R(f"v_lshrrev_b32 v{t}, 4, v{vST}")
        R(f"v_and_b32 v{t+1}, 15, v{t}")
        R(f"v_lshrrev_b32 v{t+2}, 4, v{t}")
        R(f"v_lshlrev_b32 v{vZ}, 24, v{t}")
        for s_ in range(2):
            for io in range(4):
                R(f"v_mov_b32 v{32+4*s_+io}, 0")
                R(f"v_mov_b32 v{t+3}, 0x3f80"); R(f"v_cmp_eq_u32 vcc, {8*s_+2*io}, v{t+1}"); R("s_nop 1")
                R(f"v_cndmask_b32 v{32+4*s_+io}, v{32+4*s_+io}, v{t+3}, vcc")
                R(f"v_mov_b32 v{t+3}, 0x3f800000"); R(f"v_cmp_eq_u32 vcc, {8*s_+2*io+1}, v{t+1}"); R("s_nop 1")
                R(f"v_cndmask_b32 v{32+4*s_+io}, v{32+4*s_+io}, v{t+3}, vcc")
        R(f"s_lshl_b32 s40, s{sW}, 4"); R(f"v_add_u32 v{t+3}, s40, v{t+1}")
        R(f"v_cmp_gt_u32 s[24:25], 56, v{t+3}")
        R(f"v_mul_u32_u24 v{vRA}, 100352, v{t+2}"); R(f"v_lshl_add_u32 v{vRA}, v{t+3}, 4, v{vRA}")
        R(f"v_mov_b32 v{t+4}, 0x7ffffff0")
        R(f"v_cndmask_b32 v{vRA}, v{t+4}, v{vRA}, s[24:25]")
        R(f"s_and_b32 s40, s{sH}, 3"); R("s_mul_i32 s40, s40, 56"); R(f"v_add_u32 v{t+3}, s40, v{t+3}")
        R(f"v_and_b32 v{t+5}, 1, v{t+2}")
        R(f"v_lshrrev_b32 v{t+6}, 6, v{t+3}"); R(f"v_and_b32 v{t+7}, 15, v{t+3}")
        R(f"v_lshl_add_u32 v{t+6}, v{t+6}, 5, v{t+7}"); R(f"v_lshl_add_u32 v{t+6}, v{t+5}, 4, v{t+6}")
        R(f"v_bfe_u32 v{t+7}, v{t+3}, 4, 2")
        R(f"v_and_b32 v{t+8}, 7, v{t+3}"); R(f"v_lshl_add_u32 v{t+8}, v{t+8}, 1, v{t+5}"); R(f"v_add_u32 v{t+8}, 96, v{t+8}")
        R(f"v_bfe_u32 v{t+9}, v{t+3}, 3, 2")
        R(f"v_cmp_lt_u32 vcc, 191, v{t+3}"); R("s_nop 1")
        R(f"v_cndmask_b32 v{t+6}, v{t+6}, v{t+8}, vcc"); R(f"v_cndmask_b32 v{t+7}, v{t+7}, v{t+9}, vcc")
        R(f"v_mul_u32_u24 v{vOA}, 896, v{t+6}"); R(f"v_lshl_add_u32 v{vOA}, v{t+7}, 3, v{vOA}")
        R(f"v_lshrrev_b32 v{t+5}, 1, v{t+2}"); R(f"v_lshl_add_u32 v{vOA}, v{t+5}, 7, v{vOA}")
        R(f"s_lshr_b32 s40, s{sH}, 2"); R("s_lshl_b32 s40, s40, 5"); R(f"v_add_u32 v{vOA}, s40, v{vOA}")
        R(f"v_cndmask_b32 v{vOA}, v{t+4}, v{vOA}, s[24:25]")
        R(f"v_cmp_gt_u32 vcc, 32, v{t}"); R("s_nop 1")
        R(f"v_cndmask_b32 v{vOA2}, v{t+4}, v{vOA}, vcc")
    if cfg.get("ink", 1):
        fa = P0 - BL
        VS.insert(0, valu(f"v_and_b32 v{vFA}, 0xf0, v{vST}", V(vST), V(dK, 4), fa, P0 + BL, pre=lambda: not any(x.kind == "vmem" and x.tag[0] == "K" for x in dq)))
        VS.insert(1, valu(f"v_lshlrev_b32 v{vFA}, 3, v{vFA}", V(vFA), V(vFA), fa, P0 + BL))
        VS.insert(2, valu(f"v_mov_b32 v{vFN}, 0", set(), V(vFN), fa, P0 + BL))
        VS.insert(3, Ins(f"buffer_load_dword v{vFO}, v{vFA}, {srd(sSRD_FL)}, 0 offen sc1", "vmem", rd=V(vFA), wr=V(vFO), tag="pf", after=fa, before=P0 + BL, cost=8))
        VS.insert(4, Ins(f"buffer_load_dword v{vFV}, v{vFN}, {srd(sSRD_FM)}, 0 offen sc1", "vmem", rd=V(vFN), wr=V(vFV), tag="pf", after=fa, before=P0 + BL, cost=8))

    PF = []
    if cfg.get("wopf") is not None:
        PF.append(Ins(f"buffer_load_dword v0, v{vPFV}, {srd(sSRD_WO)}, 0 offen", "vmem", rd=V(vPFV), tag="pf",
                      after=int(cfg["wopf"] * 28), cost=8))

    KN = "standalone__gqa_block_cached__near_ridge_kernel" if cfg.get("ink", 1) else "gqa_main_kernel"
    if cfg.get("ink", 1):
        E.out.append("; fused GQA block: q-proj + attention + out-proj + cross-workgroup head reduction")
        E.out.append("; @launch grid=(256,1,1) block=(256,1,1) lds=163840")
    else:
        E.out.append("""; fused GQA block: q-proj + attention + out-proj partials (main), then head reduction (reduce)
; @launch kernel=gqa_main_kernel grid=(256,1,1) block=(256,1,1) lds=163840
; @launch kernel=gqa_reduce_kernel grid=(448,1,1) block=(256,1,1) lds=0""")
    E.out.append(f""".amdgcn_target "amdgcn-amd-amdhsa--gfx950"
.text
.globl {KN}
.p2align 8
.type {KN},@function
{KN}:""")
    R("s_cmp_ge_u32 s2, 256")
    R("s_cbranch_scc1 L_exit")
    R("s_load_dwordx8 s[8:15], s[0:1], 0")
    R("s_load_dwordx2 s[4:5], s[0:1], 32")
    R(f"s_load_dwordx2 s[{sSRD_OUT}:{sSRD_OUT+1}], s[0:1], 40")
    R("s_load_dwordx2 s[6:7], s[0:1], 56")
    if stamps:
        R(f"s_memtime s[{sSTAMP}:{sSTAMP+1}]"); R(f"s_memrealtime s[{sSTAMP+30}:{sSTAMP+31}]")
    t0, t1, t2, t3, t4, t5 = 40, 41, 42, 43, 44, 45
    vA, vP8, vG, vP16, vW, vR, vC4 = 46, 47, 48, 49, 50, 51, 52
    R(f"v_lshrrev_b32 v{vW}, 6, v0")
    R(f"v_and_b32 v{vLANE}, 63, v0")
    R(f"v_readfirstlane_b32 s{sW}, v{vW}")
    R(f"v_lshrrev_b32 v{vA}, 3, v{vLANE}")
    R(f"v_and_b32 v{vP8}, 7, v{vLANE}")
    R(f"v_lshrrev_b32 v{vG}, 4, v{vLANE}")
    R(f"v_and_b32 v{vP16}, 15, v{vLANE}")
    R("s_bfe_u32 s46, s2, 0x10003")
    if cfg.get("kmap", 2) == 1:
        R("s_and_b32 s50, s2, 7")
        R("s_lshr_b32 s48, s2, 4")
        R(f"s_mov_b32 s{sSQ}, s48"); R(f"s_mov_b32 s{sSX}, s46")
    else:
        R("s_and_b32 s50, s2, 3"); R("s_lshl_b32 s50, s50, 1"); R("s_bfe_u32 s40, s2, 0x10004"); R("s_add_u32 s50, s50, s40")
        R(f"s_lshr_b32 s{sSQ}, s2, 5"); R("s_bfe_u32 s40, s2, 0x10002"); R("s_lshl_b32 s48, s40, 3"); R(f"s_add_u32 s48, s48, s{sSQ}")
        R(f"s_bfe_u32 s{sSX}, s2, 0x20003")
    R("s_lshl_b32 s49, s50, 1")
    R("s_add_u32 s49, s49, s46")
    STG = cfg.get("stag", 0)
    if STG == 64: R(f"s_lshl_b32 s{sSTG}, s46, 16"); R(f"s_lshl_b32 s{sSTV}, s46, 16")
    else: R(f"s_lshl_b32 s{sSTG}, s46, 13"); R(f"s_lshl_b32 s{sSTV}, s46, 15")
    R(f"s_mul_i32 s{sRB}, s{sW}, {RING}")
    R(f"s_lshl_b32 s{sXB}, s{sW}, 12"); R(f"s_add_u32 s{sXB}, s{sXB}, {EB}")
    R(f"v_lshl_add_u32 v{t0}, v{vW}, 5, v{vA}")
    R(f"v_mul_u32_u24 v{t1}, 896, v{t0}")
    R(f"v_xor_b32 v{t2}, v{vP8}, v{vG}")
    R(f"v_lshlrev_b32 v{t2}, 4, v{t2}")
    R(f"v_xor_b32 v{t3}, 64, v{t2}")
    R(f"v_add_u32 v{dX}, v{t1}, v{t2}")
    R(f"v_add_u32 v{dX+1}, v{t1}, v{t3}")
    R(f"v_add_u32 v{dX+2}, {2*6144}, v{dX}")
    R(f"v_add_u32 v{dX+3}, {3*6144}, v{dX+1}")
    R(f"v_add_u32 v{dX+1}, {6144}, v{dX+1}")
    R(f"v_and_b32 v{t2}, 1, v{vG}")
    R(f"v_lshlrev_b32 v{t2}, 1, v{t2}")
    R(f"v_xor_b32 v{t2}, v{vP8}, v{t2}")
    R(f"v_lshlrev_b32 v{t2}, 4, v{t2}")
    R(f"v_lshl_add_u32 v{t2}, v{vW}, 7, v{t2}")
    R(f"v_lshl_add_u32 v{dWQ}, v{vA}, 13, v{t2}")
    R(f"v_xor_b32 v{dWQ+1}, 64, v{dWQ}")
    R(f"v_add_u32 v{dWQ+2}, {2*64512}, v{dWQ}")
    R(f"v_add_u32 v{dWQ+3}, {3*64512}, v{dWQ+1}")
    R(f"v_add_u32 v{dWQ+1}, {64512}, v{dWQ+1}")
    if cfg.get("ppf"):
        km = cfg.get("kmap", 2)
        xr = 56 // km; qr = 4 * km
        R(f"s_mul_i32 s40, s{sSX}, {xr}"); R(f"v_add_u32 v54, s40, v{vLANE}"); R(f"v_mul_u32_u24 v54, 896, v54")
        R(f"v_lshl_add_u32 v54, v{vW}, 7, v54")
        R("v_mov_b32 v57, 0x7ffffff0"); R(f"v_cmp_gt_u32 vcc, {xr}, v{vLANE}")
        R(f"v_lshrrev_b32 v55, 2, v{vLANE}"); R(f"v_lshl_add_u32 v55, v{vW}, 6, v55")
        R("v_cndmask_b32 v54, v57, v54, vcc")
        R(f"s_mul_i32 s40, s{sSQ}, {qr}"); R("v_add_u32 v55, s40, v55"); R(f"v_and_b32 v56, 3, v{vLANE}"); R("v_lshlrev_b32 v56, 7, v56")
        R(f"v_cmp_gt_u32 vcc, {4*qr}, v{vLANE}"); R("v_lshl_add_u32 v55, v55, 13, v56"); R("s_nop 0")
        R("v_cndmask_b32 v55, v57, v55, vcc")
    R("s_waitcnt lgkmcnt(0)")
    R("s_mul_i32 s40, s48, 100352")
    R(f"s_add_u32 s{sSRD_X}, s8, s40"); R(f"s_addc_u32 s{sSRD_X+1}, s9, 0")
    R(f"s_mov_b32 s{sSRD_X+2}, 100352"); R(f"s_mov_b32 s{sSRD_X+3}, 0x20000")
    R("s_lshl_b32 s40, s49, 9")
    R(f"s_add_u32 s{sSRD_WQ}, s14, s40"); R(f"s_addc_u32 s{sSRD_WQ+1}, s15, 0")
    R(f"s_sub_u32 s{sSRD_WQ+2}, {448*8192}, s40"); R(f"s_mov_b32 s{sSRD_WQ+3}, 0x20000")
    npro = cfg.get("npro", 3); npro2 = cfg.get("npro2", 6); npro3 = max(npro2, cfg.get("npro3", 0))
    km = cfg.get("kmap", 2)
    def prefetch_round(r):
        R(f"s_mov_b32 s40, {512*r}")
        E.emit(Ins(f"buffer_load_dword v56, v54, {srd(sSRD_X)}, s40 offen", "vmem", tag="pf")) if r == 0 else None
        if r == 1:
            R(f"v_cmp_gt_u32 vcc, 3, v{vW}"); R("v_mov_b32 v57, 0x7ffffff0"); R("s_nop 0"); R("v_cndmask_b32 v54, v57, v54, vcc")
            E.emit(Ins(f"buffer_load_dword v56, v54, {srd(sSRD_X)}, s40 offen", "vmem", tag="pf"))
        R(f"s_mov_b32 s40, {256*8192*r}")
        E.emit(Ins(f"buffer_load_dword v56, v55, {srd(sSRD_WQ)}, s40 offen", "vmem", tag="pf"))
    if cfg.get("ppf"): prefetch_round(0)
    for u, L in DQ[:npro]:
        for x in L: E.emit(x)
    R("s_lshl_b32 s40, s48, 3"); R("s_add_u32 s40, s40, s50"); R("s_lshl_b32 s40, s40, 18")
    R(f"s_add_u32 s{sSRD_K}, s10, s40"); R(f"s_addc_u32 s{sSRD_K+1}, s11, 0")
    R(f"s_mov_b32 s{sSRD_K+2}, 262144"); R(f"s_mov_b32 s{sSRD_K+3}, 0x20000")
    R(f"s_add_u32 s{sSRD_V}, s12, s40"); R(f"s_addc_u32 s{sSRD_V+1}, s13, 0")
    R(f"s_mov_b32 s{sSRD_V+2}, 262144"); R(f"s_mov_b32 s{sSRD_V+3}, 0x20000")
    if STG == 32:
        R(f"s_sub_u32 s{sSRD_V}, s{sSRD_V}, 4096"); R(f"s_subb_u32 s{sSRD_V+1}, s{sSRD_V+1}, 0"); R(f"s_mov_b32 s{sSRD_V+2}, {262144+4096}")
    R("s_mul_i32 s40, s49, 229376")
    R(f"s_add_u32 s{sSRD_WO}, s4, s40"); R(f"s_addc_u32 s{sSRD_WO+1}, s5, 0")
    R(f"s_mov_b32 s{sSRD_WO+2}, 229376"); R(f"s_mov_b32 s{sSRD_WO+3}, 0x20000")
    R("s_lshl_b32 s40, s48, 4"); R("s_add_u32 s40, s40, s49"); R("s_lshl_b32 s40, s40, 2"); R(f"s_add_u32 s40, s40, s{sW}")
    R("s_mul_i32 s40, s40, 25088")
    R(f"s_add_u32 s{sSRD_WS}, s6, s40"); R(f"s_addc_u32 s{sSRD_WS+1}, s7, 0")
    R(f"s_mov_b32 s{sSRD_WS+2}, 25088"); R(f"s_mov_b32 s{sSRD_WS+3}, 0x20000")
    R(f"s_mov_b32 s{sH}, s49"); R(f"s_mov_b32 s{sBB}, s48")
    R("s_mul_i32 s40, s48, 100352")
    R(f"s_add_u32 s{sSRD_OUT}, s{sSRD_OUT}, s40"); R(f"s_addc_u32 s{sSRD_OUT+1}, s{sSRD_OUT+1}, 0")
    R(f"s_mov_b32 s{sSRD_OUT+2}, 100352"); R(f"s_mov_b32 s{sSRD_OUT+3}, 0x20000")
    R("s_lshl_b32 s40, s40, 4")
    R(f"s_add_u32 s{sSRD_PB}, s6, s40"); R(f"s_addc_u32 s{sSRD_PB+1}, s7, 0")
    R(f"s_mov_b32 s{sSRD_PB+2}, 1605632"); R(f"s_mov_b32 s{sSRD_PB+3}, 0x20000")
    R(f"s_lshr_b32 s40, s49, 2"); R(f"s_mul_i32 s{sRO}, s40, 25088"); R("s_and_b32 s40, s49, 3"); R("s_mul_i32 s40, s40, 896"); R(f"s_add_u32 s{sRO}, s{sRO}, s40")
    R(f"s_mov_b32 s{sC}, {f2u(math.log2(math.e) / 16.0):#x}")
    R(f"s_lshl_b32 s{sW2K}, s{sW}, 11")
    R(f"s_mul_i32 s40, s{sSQ}, {16*km}"); R(f"v_lshrrev_b32 v58, 3, v{vLANE}"); R(f"v_add_u32 v58, s40, v58")
    R(f"v_mul_u32_u24 v59, {4*km}, v{vW}"); R("v_add_u32 v58, v58, v59"); R("v_mul_u32_u24 v58, 896, v58")
    R(f"v_lshl_add_u32 v{vPFV}, v{vP8}, 7, v58")
    R(f"v_cmp_gt_u32 vcc, {32*km}, v{vLANE}"); R("v_mov_b32 v59, 0x7ffffff0"); R("s_nop 0"); R(f"v_cndmask_b32 v{vPFV}, v59, v{vPFV}, vcc")
    for p in range(7): R(f"s_mov_b32 s{sSTO+p}, {p*3584}")

    R(f"v_bfe_u32 v{vR}, v{vLANE}, 2, 2")
    R(f"v_and_b32 v{vC4}, 3, v{vLANE}")
    R(f"v_lshlrev_b32 v{vST}, 4, v{vLANE}")
    R(f"v_bfe_u32 v{t2}, v{vLANE}, 1, 3")
    R(f"v_xor_b32 v{t2}, v{t2}, v{vG}")
    R(f"v_lshlrev_b32 v{t2}, 4, v{t2}")
    R(f"v_lshl_add_u32 v{t2}, v{vP16}, 7, v{t2}")
    R(f"v_add_u32 v{rX}, {EB}, v{t2}")
    R(f"v_xor_b32 v{rX+1}, 64, v{rX}")
    R(f"v_lshrrev_b32 v{t4}, 1, v{vR}")
    R(f"v_and_b32 v{t2}, 1, v{vG}")
    R(f"v_lshl_add_u32 v{t5}, v{t2}, 1, v{t4}")
    R(f"v_lshlrev_b32 v{t3}, 3, v{vC4}")
    R(f"v_lshl_add_u32 v{t3}, v{t5}, 5, v{t3}")
    R(f"v_add_u32 v{t4}, s{sRB}, v{t3}")
    R(f"v_lshl_add_u32 v{t2}, v{vG}, 3, v{vR}")
    R(f"v_lshl_add_u32 v{rWQ}, v{t2}, 7, v{t4}")
    for m in range(1, 4): R(f"v_xor_b32 v{rWQ+m}, {32*m}, v{rWQ}")
    for u, L in DQ[npro:npro2]:
        for x in L: E.emit(x)
    if cfg.get("ppf"): prefetch_round(1)
    for u, L in DQ[npro2:npro3]:
        for x in L: E.emit(x)
    R(f"v_lshl_add_u32 v{t2}, v{vG}, 2, v{vR}")
    R(f"v_lshl_add_u32 v{rV}, v{t2}, 7, v{t4}")
    for m in range(1, 4): R(f"v_xor_b32 v{rV+m}, {32*m}, v{rV}")
    R(f"v_lshl_add_u32 v{rWO}, v{t2}, 7, v{t3}")
    R(f"v_lshlrev_b32 v{t2}, 5, v{vW}")
    R(f"v_xor_b32 v{rWO}, v{rWO}, v{t2}")
    R(f"v_add_u32 v{rWO+1}, {2*RING}, v{rWO}")
    R(f"v_xor_b32 v{t2}, v{vG}, v{vP16}")
    R(f"v_lshlrev_b32 v{t2}, 4, v{t2}")
    R(f"v_lshl_add_u32 v{t2}, v{vP16}, 8, v{t2}")
    R(f"v_add_u32 v{rK}, s{sRB}, v{t2}")
    for k in range(1, 4): R(f"v_xor_b32 v{rK+k}, {64*k}, v{rK}")
    R(f"v_lshl_add_u32 v{t2}, v{vW}, 5, v{vG}")
    if STG == 32:
        R("s_lshl_b32 s40, s46, 6"); R(f"v_xor_b32 v{t2}, s40, v{t2}")
    R(f"v_xor_b32 v{t3}, v{vP16}, v{vG}")
    R(f"v_lshlrev_b32 v{t3}, 4, v{t3}")
    R(f"v_lshl_add_u32 v{dK}, v{t2}, 9, v{t3}")
    for j in range(1, 4):
        R(f"v_xor_b32 v{dK+j}, {64*j}, v{dK}")
        R(f"v_add_u32 v{dK+j}, {1024*j}, v{dK+j}")
    R(f"v_lshlrev_b32 v{t2}, 1, v{vG}")
    R(f"v_xor_b32 v{t2}, v{vP8}, v{t2}")
    R(f"v_lshlrev_b32 v{t2}, 4, v{t2}")
    R(f"v_add_u32 v{dWO}, v{t1}, v{t2}")
    R(f"v_lshl_add_u32 v{t2}, v{vW}, 7, v{t2}")
    R(f"v_lshl_add_u32 v{dV}, v{vA}, 9, v{t2}")
    if STG == 32:
        for j in range(3, -1, -1):
            R(f"s_xor_b32 s40, s{sSTG}, {4096*j}"); R(f"s_add_u32 s40, s40, {4096-1024*j}")
            R(f"v_add_u32 v{dV+j}, s40, v{dV}")
    else:
        for j in range(1, 4): R(f"v_add_u32 v{dV+j}, {3072*j}, v{dV}")
    R(f"v_add_u32 v{rE}, {EB}, v{vST}")
    R(f"v_mul_u32_u24 v{t2}, 7168, v{vW}")
    R(f"v_add_u32 v{wP}, v{rE}, v{t2}")
    R(f"v_add_u32 v{wO}, v{wP}, v{t2}")
    R(f"v_lshrrev_b32 v{t3}, 1, v{vG}")
    R(f"v_lshl_add_u32 v{t3}, v{t3}, 4, v{vP16}")
    R(f"v_and_b32 v{t4}, 1, v{vG}")
    R(f"v_lshlrev_b32 v{t4}, 3, v{t4}")
    R(f"v_lshl_add_u32 v{t3}, v{t3}, 4, v{t4}")
    R(f"v_lshl_add_u32 v{t3}, v{t2}, 1, v{t3}")
    R(f"v_add_u32 v{wQ}, {EB}, v{t3}")
    if cfg.get("cpf"):
        R("s_getpc_b64 s[8:9]")
        E.label("L_pc")
        R("s_mov_b32 s10, L_exit-L_pc"); R("s_mov_b32 s11, 0x20000")
        R(f"v_lshlrev_b32 v54, 7, v0"); R("s_lshr_b32 s40, s2, 3"); R("s_lshl_b32 s40, s40, 11")
        R(f"v_mov_b32 v55, 0x7ffffff0"); R(f"v_cmp_gt_u32 vcc, 16, v0"); R("s_nop 1"); R(f"v_cndmask_b32 v54, v55, v54, vcc")
        E.emit(Ins(f"buffer_load_dword v56, v54, s[8:11], s40 offen", "vmem", tag="pf"))
    R(f"s_lshl_b32 s40, s{sBB}, 2"); R(f"s_lshr_b32 s12, s{sH}, 2"); R("s_add_u32 s40, s40, s12"); R("s_lshl_b32 s40, s40, 11"); R(f"s_add_u32 s40, s40, {FLOFF}")
    R(f"s_add_u32 s{sSRD_FL}, s6, s40"); R(f"s_addc_u32 s{sSRD_FL+1}, s7, 0"); R(f"s_mov_b32 s{sSRD_FL+2}, 2048"); R(f"s_mov_b32 s{sSRD_FL+3}, 0x20000")
    R(f"s_lshl_b32 s40, s{sBB}, 2"); R(f"s_add_u32 s40, s40, s{sW}"); R("s_lshl_b32 s40, s40, 4"); R(f"s_add_u32 s40, s40, s{sH}"); R("s_lshl_b32 s40, s40, 7"); R(f"s_add_u32 s40, s40, {FLOFF}")
    R(f"s_add_u32 s{sSRD_FM}, s6, s40"); R(f"s_addc_u32 s{sSRD_FM+1}, s7, 0"); R(f"s_mov_b32 s{sSRD_FM+2}, 128"); R(f"s_mov_b32 s{sSRD_FM+3}, 0x20000")
    dq = [x for u, L in DQ[npro3:] for x in L]

    stamp_n = [1]
    def stamp():
        k = stamp_n[0]; stamp_n[0] += 1
        R(f"{'s_memrealtime' if cfg.get('rt', 1) and k != len(stamps) + 5 else 's_memtime'} s[{sSTAMP+2*k}:{sSTAMP+2*k+1}]")
    def skipf(i):
        if cfg.get("nodma") and i.kind == "vmem" and i.tag != "store": return True
        if cfg.get("nost") and i.tag == "store": return True
        if cfg.get("novalu") and i.kind in ("valu", "trans", "perm"): return True
        return False

    wgap = {}
    def emit(x):
        if x.tag == "read":
            reads_left[x.res] -= 1; last_read[x.res] = now[0]
        if x.kind == "salu" and x.res is not None: E.wait_ds_res(lambda r: r == x.res)
        E.emit(x)
        for r in x.wr: wgap[r] = (now[0], x.kind)
    def ok(x, i): return x.after <= i and (x.pre is None or x.pre())
    def run_events(idx):
        for name, fn in events.get(idx, []):
            fn(); ev_done.add(name)
    def conflicts(x, y): return bool(x.rd & y.wr or x.wr & y.rd or x.wr & y.wr)
    def force_fifo(st, i, what):
        k = 0
        for kk, x in enumerate(st[:64]):
            if x.before <= i: k = kk + 1
        c = 0
        for x in st[:k]:
            assert ok(x, i), f"forced {what} not eligible at {i}: {x.text}"
            emit(x); c += x.cost
        del st[:k]
        return c
    c2 = [0]
    def force_vs(i):
        c2[0] = 0
        need = [False] * min(len(VS), 600)
        for k in range(len(need) - 1, -1, -1):
            if VS[k].before <= i: need[k] = True
            if need[k]:
                for kk in range(k):
                    if not need[kk] and conflicts(VS[k], VS[kk]): need[kk] = True
        c = 0
        sel = [VS[k] for k in range(len(need)) if need[k]]
        for x in sel:
            assert ok(x, i), f"forced valu not eligible at {i}: {x.text}"
            VS.remove(x); emit(x); c += x.cost
            c2[0] += x.cost
            if c2[0] >= 96 and dq and ok(dq[0], i):
                c2[0] = 0
                while dq and ok(dq[0], i):
                    y = dq.pop(0); emit(y); c += y.cost
                    if y.kind == "vmem": break
        return c
    WIN = cfg.get("win", 150)
    def ready(x, i):
        if not ok(x, i) or E.need_nops(x) > 0: return False
        k = E.ds_idx(x)
        if k >= 0 and any(wgap.get(r, (-99, 0))[1] == "ds" and i - wgap[r][0] < 10 for r in x.rd | x.wr): return False
        for r in x.rd:
            if r in wgap and wgap[r][1] == "trans" and wgap[r][0] >= i: return False
        return True
    def pick(pred, i):
        blocked = []
        n = 0
        for k, x in enumerate(VS):
            if x.after <= i:
                n += 1
                if n > WIN: return None
            if pred(x) and ready(x, i) and not any(conflicts(x, y) for y in blocked): return x
            blocked.append(x)
            if k > 400: return None
        return None
    ismem = lambda x: x.kind in ("ds", "vmem")
    is4 = lambda x: x.cost == 4 and not ismem(x)

    run_events(-1)
    if stamps: stamp()
    E.skip = skipf
    over = {}; lastdma = -10; lastb128 = -10; lastw = -10; idle = {}
    for i in range(END):
        now[0] = i
        ph = "QSPO"[(i >= S0) + (i >= P0) + (i >= O0)]
        if i % 28 == 0:
            E.comment(f"---- step {i//28} {units[i//28]}")
            if i // 28 in stamps: stamp()
        c = force_fifo(RA, i - 4, "read") + force_fifo(RB, i - 4, "read") if i > 0 else force_fifo(RA, 0, "read") + force_fifo(RB, 0, "read")
        if i in (S0, O0): c += force_fifo(RB, i, "read")
        over[ph] = over.get(ph, 0) + c
        E.emit(mfma(i))
        bud = BUD
        if any(x.before <= i + 1 for x in VS[:600]):
            c = force_vs(i + 1); over[ph] = over.get(ph, 0) + max(0, c - bud); bud -= c
        run_events(i)
        if bud < BUD:
            continue
        cand = [q for q in (RA, RB) if q and ok(q[0], i)]
        cand.sort(key=lambda q: q[0].before)
        urgent = [q for q in cand if q[0].before <= i + 1 + sum(1 for x in q[:6] if x.before <= i + 6)]
        sp = cfg.get("dmasp", 4)
        if dq and dq[0].kind == "vmem" and dq[0].tag[0] == "K" and i < S0: sp = cfg.get("ksp", 8)
        dma_due = dq and dq[0].kind == "vmem" and i - lastdma >= sp and E.need_nops(dq[0]) == 0
        x = None
        if dma_due and (not urgent or i - lastdma >= sp + 2):
            x = dq.pop(0); lastdma = i
            if urgent:
                emit(urgent[0].pop(0)); over[ph] = over.get(ph, 0) + 4
        elif urgent: x = urgent[0].pop(0)
        elif PF and PF[0].after <= i and i - lastdma >= 2: x = PF.pop(0)
        else:
            cand = [q for q in cand if not ("b128" in q[0].text and i - lastb128 < cfg.get("b128sp", 2))]
            if cand: x = cand[0].pop(0)
        if x is None:
            big = lambda z: not is4(z) and not (ismem(z) and z.cost > 8 and i - lastw < (cfg.get("wsp", 3) if z.kind == "ds" else cfg.get("ssp", 6)))
            y4 = pick(is4, i); y8 = pick(big, i)
            y = y8
            if y4 is not None and y8 is not None and VS.index(y4) < VS.index(y8):
                load = sum(z.cost for z in VS[:600] if z.before <= y4.before)
                if load / 8.0 > (y4.before - i) * cfg.get("urg", 0.6): y = y4
            if y is not None and not is4(y):
                VS.remove(y); x = y
                if ismem(y) and y.cost > 8: lastw = i
        if x is not None:
            if "read_b128" in x.text: lastb128 = i
            emit(x); bud -= x.cost
            if x.cost > BUD: over[ph] = over.get(ph, 0) + x.cost - BUD
        while bud >= 4:
            if dq and dq[0].kind == "salu" and ok(dq[0], i):
                emit(dq.pop(0)); bud -= 4; continue
            y = pick(is4, i)
            if y is None: break
            VS.remove(y); emit(y); bud -= 4
        if bud > 0: idle[ph] = idle.get(ph, 0) + bud
    now[0] = END
    over["tail"] = sum(x.cost for x in VS)
    for x in VS: emit(x)
    assert not RA and not RB and not dq and not PF
    INK = cfg.get("ink", 1)
    if INK:
        if stamps: stamp()
        E.skip = None
        reduce_setup()
        R("s_waitcnt vmcnt(0)")
        if stamps: stamp()
        publish(7)
        R("s_mov_b32 s28, 0")
        E.label("L_poll")
        R(f"buffer_load_dword v{vFN}, v{vFA}, {srd(sSRD_FL)}, 0 offen sc1")
        R("s_waitcnt vmcnt(0)")
        R(f"v_cmp_ne_u32 vcc, v{vFN}, v{vFO}")
        R(f"v_and_b32 v{vFN}, 15, v{vFN}")
        R(f"v_cmp_le_u32 s[26:27], 7, v{vFN}")
        R("s_and_b64 vcc, vcc, s[26:27]")
        R("s_cmp_eq_u64 vcc, -1")
        R("s_cbranch_scc1 L_polled")
        publish(7)
        R("s_add_u32 s28, s28, 1")
        R("s_cmp_lt_u32 s28, 200000")
        R("s_cbranch_scc1 L_poll")
        E.label("L_polled")
        if stamps: stamp()
        for p in range(7):
            for g in range(4):
                R(f"s_add_u32 s40, s{sRO}, {g*4*100352 + p*3584}")
                R(f"buffer_load_dwordx4 {ar(16*p+4*g,4)}, v{vRA}, {srd(sSRD_PB)}, s40 offen sc1")
        for p in range(7):
            for g in range(4):
                R(f"s_waitcnt vmcnt({27 - 4*p - g + max(0, (p >> 1) - 1) + (1 if p >= 3 and (p & 1) else 0)})")
                d = 64 + 4 * (p >> 1)
                sel = 32 + 4 * (p & 1)
                c = "0" if (p & 1) == 0 and g == 0 else vr(d, 4)
                R(f"v_mfma_f32_16x16x32_bf16 {vr(d,4)}, {vr(sel,4)}, {ar(16*p+4*g,4)}, {c}")
            if p >= 2 and (p & 1) == 0:
                d = 64 + 4 * ((p >> 1) - 1)
                R(f"v_cvt_pk_bf16_f32 v{d}, v{d}, v{d+1}"); R(f"v_cvt_pk_bf16_f32 v{d+1}, v{d+2}, v{d+3}")
                R(f"buffer_store_dwordx2 {vr(d,2)}, v{vOA}, {srd(sSRD_OUT)}, 0 offen offset:{256*((p>>1)-1)}")
        R("s_nop 7")
        R(f"v_cvt_pk_bf16_f32 v76, v76, v77"); R(f"v_cvt_pk_bf16_f32 v77, v78, v79")
        R(f"buffer_store_dwordx2 v[76:77], v{vOA2}, {srd(sSRD_OUT)}, 0 offen offset:768")
    if stamps:
        if not INK: stamp(); stamp(); stamp()
        R("s_waitcnt vmcnt(0)")
        stamp()
        R(f"s_memrealtime s[{sSTAMP+32}:{sSTAMP+33}]")
        R("s_waitcnt lgkmcnt(0)")
        n = stamp_n[0]
        R("s_add_u32 s8, s6, 0x8000000"); R("s_addc_u32 s9, s7, 0"); R("s_mov_b32 s10, 0x100000"); R("s_mov_b32 s11, 0x20000")
        R("s_lshl_b32 s12, s2, 2"); R(f"s_add_u32 s12, s12, s{sW}"); R("s_lshl_b32 s12, s12, 7")
        R("v_mov_b32 v2, s12")
        R(f"v_cmp_eq_u32 vcc, 0, v{vST}")
        R("s_and_saveexec_b64 s[14:15], vcc")
        for k in range(1, n):
            R(f"s_sub_u32 s13, s{sSTAMP+2*k}, s{sSTAMP+30 if cfg.get('rt', 1) and k != len(stamps) + 5 else sSTAMP}")
            R("v_mov_b32 v3, s13")
            R(f"buffer_store_dword v3, v2, s[8:11], 0 offen offset:{4*(k-1)}")
        R(f"v_mov_b32 v3, s{sSTAMP+30}")
        R(f"buffer_store_dword v3, v2, s[8:11], 0 offen offset:{4*30}")
        R(f"v_mov_b32 v3, s{sSTAMP+32}")
        R(f"buffer_store_dword v3, v2, s[8:11], 0 offen offset:{4*31}")
    R("s_waitcnt vmcnt(0)")
    E.label("L_exit")
    R("s_endpgm")
    print(f"main: nops {E.nops}, over {over}, idle {idle}, instrs {E.pos}", file=sys.stderr)

    KD = """.p2align 6
.amdhsa_kernel %s
  .amdhsa_next_free_vgpr %d
  .amdhsa_next_free_sgpr %d
  .amdhsa_accum_offset %d
  .amdhsa_group_segment_fixed_size 0
  .amdhsa_kernarg_size 64
  .amdhsa_user_sgpr_count 2
  .amdhsa_user_sgpr_kernarg_segment_ptr 1
  .amdhsa_system_sgpr_workgroup_id_x 1
.end_amdhsa_kernel
"""
    if INK:
        E.out.append('.section .rodata,"a"\n' + KD % (KN, 512, 102, 256))
        return "\n".join(E.out)
    E.out.append(""".globl gqa_reduce_kernel
.p2align 8
.type gqa_reduce_kernel,@function
gqa_reduce_kernel:""")
    R("s_cmp_ge_u32 s2, 448")
    R("s_cbranch_scc1 LR_exit")
    R("s_load_dwordx2 s[4:5], s[0:1], 40")
    R("s_load_dwordx2 s[6:7], s[0:1], 56")
    R("v_lshrrev_b32 v2, 6, v0")
    R("v_and_b32 v1, 63, v0")
    R("v_readfirstlane_b32 s3, v2")
    R(f"s_mul_hi_u32 s8, s2, {(2**32 + 27)//28}")
    R("s_mul_i32 s9, s8, 28")
    R("s_sub_u32 s9, s2, s9")
    R(f"s_mul_hi_u32 s10, s9, {(2**32 + 6)//7}")
    R("s_mul_i32 s11, s10, 7")
    R("s_sub_u32 s11, s9, s11")
    R("v_lshlrev_b32 v5, 4, v1")
    R("v_and_b32 v3, 15, v1"); R("v_lshrrev_b32 v4, 4, v1")
    R("s_mov_b32 s24, 14336")
    R("s_cmp_eq_u32 s3, 3")
    R("s_cbranch_scc0 LR_a")
    R("v_lshlrev_b32 v3, 1, v1"); R("v_and_b32 v3, 15, v3"); R("v_lshrrev_b32 v4, 3, v1")
    R("s_mov_b32 s24, 896")
    R("v_mov_b32 v6, 0x40000000")
    R("v_cmp_lt_u32 vcc, 31, v1")
    R("s_nop 1")
    R("v_cndmask_b32 v5, v5, v6, vcc")
    R("v_cndmask_b32 v3, v3, v6, vcc")
    R("v_min_u32 v3, 0x10000, v3")
    E.label("LR_a")
    R("v_mul_u32_u24 v7, 896, v3")
    R("v_lshl_add_u32 v7, v4, 3, v7")
    R("s_mul_i32 s13, s8, 1605632")
    R("s_mul_i32 s14, s9, 3584")
    R("s_add_u32 s13, s13, s14")
    R("s_lshl_b32 s14, s3, 10")
    R("s_add_u32 s13, s13, s14")
    R("s_waitcnt lgkmcnt(0)")
    R("s_add_u32 s16, s6, s13"); R("s_addc_u32 s17, s7, 0"); R("s_mov_b32 s18, 1605632"); R("s_mov_b32 s19, 0x20000")
    for h in range(16):
        R(f"s_mov_b32 s15, {h*100352}")
        R(f"buffer_load_dwordx4 v[{8+4*h}:{11+4*h}], v5, s[16:19], s15 offen {cfg.get('rlfl','')}")
    R("s_mul_i32 s13, s8, 100352")
    R("s_add_u32 s20, s4, s13"); R("s_addc_u32 s21, s5, 0"); R("s_mov_b32 s22, 100352"); R("s_mov_b32 s23, 0x20000")
    R("s_mul_i32 s14, s3, 28672")
    R("s_lshl_b32 s15, s11, 7"); R("s_add_u32 s14, s14, s15")
    R("s_lshl_b32 s15, s10, 5"); R("s_add_u32 s14, s14, s15")
    R("s_add_u32 s24, s24, s14")
    for h in range(16):
        R(f"s_waitcnt vmcnt({15-h})")
        for r in range(4):
            src = 8 + 4 * h + r
            if h == 0:
                R(f"v_lshlrev_b32 v{72+2*r}, 16, v{src}"); R(f"v_and_b32 v{73+2*r}, 0xffff0000, v{src}")
            else:
                R(f"v_lshlrev_b32 v80, 16, v{src}"); R(f"v_and_b32 v81, 0xffff0000, v{src}")
                R(f"v_add_f32 v{72+2*r}, v{72+2*r}, v80"); R(f"v_add_f32 v{73+2*r}, v{73+2*r}, v81")
    for r in range(4): R(f"v_cvt_pk_bf16_f32 v{84+r}, v{72+2*r}, v{73+2*r}")
    R("buffer_store_dwordx2 v[84:85], v7, s[20:23], s14 offen")
    R("buffer_store_dwordx2 v[86:87], v7, s[20:23], s24 offen")
    if stamps:
        R("s_waitcnt vmcnt(0)")
        R("s_memrealtime s[24:25]")
        R("s_waitcnt lgkmcnt(0)")
        R("s_add_u32 s16, s6, 0x8100000"); R("s_addc_u32 s17, s7, 0"); R("s_mov_b32 s18, 0x100000"); R("s_mov_b32 s19, 0x20000")
        R("s_lshl_b32 s12, s2, 2"); R("v_mov_b32 v2, s12"); R("v_mov_b32 v3, s24")
        R("v_cmp_eq_u32 vcc, 0, v0")
        R("s_and_saveexec_b64 s[14:15], vcc")
        R("buffer_store_dword v3, v2, s[16:19], 0 offen")
    R("s_waitcnt vmcnt(0)")
    E.label("LR_exit")
    R("s_endpgm")
    E.out.append(""".section .rodata,"a"
.p2align 6
.amdhsa_kernel gqa_main_kernel
  .amdhsa_next_free_vgpr 512
  .amdhsa_next_free_sgpr 102
  .amdhsa_accum_offset 256
  .amdhsa_group_segment_fixed_size 0
  .amdhsa_kernarg_size 64
  .amdhsa_user_sgpr_count 2
  .amdhsa_user_sgpr_kernarg_segment_ptr 1
  .amdhsa_system_sgpr_workgroup_id_x 1
.end_amdhsa_kernel
.p2align 6
.amdhsa_kernel gqa_reduce_kernel
  .amdhsa_next_free_vgpr 88
  .amdhsa_next_free_sgpr 32
  .amdhsa_accum_offset 88
  .amdhsa_group_segment_fixed_size 0
  .amdhsa_kernarg_size 64
  .amdhsa_user_sgpr_count 2
  .amdhsa_user_sgpr_kernarg_segment_ptr 1
  .amdhsa_system_sgpr_workgroup_id_x 1
.end_amdhsa_kernel
""")
    return "\n".join(E.out)

if __name__ == "__main__":
    ap = argparse.ArgumentParser()
    ap.add_argument("-o", default="a16.s")
    ap.add_argument("kv", nargs="*")
    a = ap.parse_args()
    cfg = {}
    for kv in a.kv:
        k, v = kv.split("=", 1)
        try: cfg[k] = eval(v)
        except Exception: cfg[k] = v
    txt = build(cfg)
    open(a.o, "w").write(txt)
```

```python
import sys, math, struct, argparse

def f2u(x): return struct.unpack("<I", struct.pack("<f", x))[0]
def V(lo, n=1): return {("v", lo + i) for i in range(n)}
def Ac(lo, n=1): return {("a", lo + i) for i in range(n)}
def vr(lo, n): return f"v[{lo}:{lo+n-1}]" if n > 1 else f"v{lo}"
def ar(lo, n): return f"a[{lo}:{lo+n-1}]"
INF = 1 << 30

class Ins:
    def __init__(s, text, kind, rd=(), wr=(), cost=4, after=-1, before=INF, tag=None, rdc=(), pre=None, res=None, passes=4):
        s.text, s.kind, s.rd, s.wr, s.cost = text, kind, set(rd), set(wr), cost
        s.after, s.before, s.tag, s.rdc = after, before, tag, set(rdc)
        s.pre = pre
        s.res = res
        s.passes = passes

class Emitter:
    def __init__(s):
        s.out = []; s.pos = 0
        s.dsq = []
        s.vmq = []
        s.lastw = {}; s.lastc = {}; s.lastst = {}
        s.nops = 0; s.skip = None
    def raw(s, text, n=1):
        s.out.append("    " + text); s.pos += n
    def label(s, l): s.out.append(l + ":")
    def comment(s, c): s.out.append("    ; " + c)
    def need_nops(s, i):
        need = 0
        def req(p, d):
            nonlocal need
            need = max(need, d - (s.pos - p - 1))
        for r in i.rd | i.wr:
            if r in s.lastw:
                k, p = s.lastw[r]
                if k == "mfma":
                    if i.kind == "mfma":
                        if r in i.rd and r not in i.rdc: req(p, 8)
                    else: req(p, 8)
                if r in i.rd:
                    if k in ("valu", "trans") and i.kind == "mfma": req(p, 2)
                    if k == "trans" and i.kind in ("valu", "trans", "perm", "vmem", "ds"): req(p, 1)
                    if k in ("valu", "trans") and i.kind == "perm": req(p, 2)
                    if k == "salu" and r == ("s", "m0") and i.kind == "vmem": req(p, 1)
        if i.kind in ("valu", "trans", "perm"):
            for r in i.wr:
                if r in s.lastc: req(s.lastc[r], 3)
                if r in s.lastst: req(s.lastst[r], 2)
        if i.kind == "mfma":
            for r in i.wr:
                if r in s.lastst: req(s.lastst[r], 2)
        return need
    def ds_idx(s, i):
        idx = -1
        for k, (d, _) in enumerate(s.dsq):
            if d & (i.rd | i.wr): idx = k
        return idx
    def wait_ds_idx(s, idx):
        n = len(s.dsq) - idx - 1
        if n > 15:
            idx += n - 15; n = 15
        s.raw(f"s_waitcnt lgkmcnt({n})")
        s.dsq = s.dsq[idx + 1:]
    def wait_ds_res(s, pred):
        idx = -1
        for k, (_, r) in enumerate(s.dsq):
            if r is not None and pred(r): idx = k
        if idx >= 0: s.wait_ds_idx(idx)
    def emit(s, i):
        idx = s.ds_idx(i)
        if idx >= 0: s.wait_ds_idx(idx)
        if i.kind == "ds" and len(s.dsq) >= 13: s.wait_ds_idx(len(s.dsq) - 1 - 9)
        n = s.need_nops(i)
        if n > 0:
            s.nops += n
            while n > 0:
                k = min(n, 16); s.raw(f"s_nop {k-1}", k); n -= k
        if not (s.skip and s.skip(i)): s.out.append("    " + i.text)
        p = s.pos; s.pos += 1
        kind = "valu" if i.kind == "perm" else i.kind
        for r in i.wr: s.lastw[r] = (kind, p)
        if i.kind == "mfma":
            for r in i.rdc: s.lastc[r] = p
        if i.kind == "ds": s.dsq.append((set(i.wr), i.res))
        if i.kind == "vmem":
            s.vmq.append(i.tag)
            if i.tag == "store":
                for r in i.rd: s.lastst[r] = p
    def wait_vm(s, tags):
        idx = -1
        for k, t in enumerate(s.vmq):
            if t in tags: idx = k
        for t in tags:
            assert s.vmq.count(t) == 4, f"unit {t} not fully issued before its wait ({s.vmq.count(t)})"
        n = min(63, len(s.vmq) - idx - 1)
        if n < getattr(s, "vm_known", 1 << 30) + (len(s.vmq) - getattr(s, "vm_len", 0)):
            s.raw(f"s_waitcnt vmcnt({n})")
            s.vm_known = n; s.vm_len = len(s.vmq)

RING = 24576; NU = 6; UNIT = 4096
EB = 4 * RING
LB = EB + 57344
vLANE = 53
dK = 1
dV = 5
dWO = 9
vST = 10
vST2 = 5
rK = 12
rV = 16
rWO = 20
rE = 22
wP = 23
wO = 24
vL = 25
SACC = [32, 60]; PR = [88, 116]; OACC = 144
dX = 116
dWQ = 120
rX = 124
rWQ = 126
wQ = 130
AQ = 0
AK = 224
sSRD_X, sSRD_WQ, sSRD_K, sSRD_V, sSRD_WO, sSRD_WS = 16, 20, 24, 28, 32, 36
sRB = 42; sOFF = 43; sC = 44; sXB = 45; sW = 3; sST = 47
sSTAMP = 68
sSRD_FL, sSRD_FM, sSRD_PB, sSRD_OUT = 8, 12, 60, 64
sH = 56; sRO = 57; sBB = 58
FLOFF = 0x2000000
sSTO = 48
sPFO = 55
sW2K = 59
sSQ = 47; sSX = 51; sSTG = 41; sSTV = 55
vPFK = 11; vPFV = 11
def srd(n): return f"s[{n}:{n+3}]"
assert vL + 7 <= 32

def build(cfg):
    BUD = cfg.get("budget", 8)
    stamps = cfg.get("stamps", [])
    ntKV = "nt" if cfg.get("ntkv", 1) else ""
    ntW = "nt" if cfg.get("ntw", 0) else ""
    ntX = "nt" if cfg.get("ntx", 0) else ""
    stfl = cfg.get("stfl", "sc1")
    DMIN = cfg.get("dmin", 8)
    E = Emitter(); R = E.raw
    BL = 56
    Q0, S0, P0, O0, END = 0, 7 * BL, 15 * BL, 23 * BL, 30 * BL

    units = [("WQ", t) for t in range(14)] + [("K", i, h) for i in range(8) for h in range(2)] \
          + [("V", k) for k in range(16)] + [("WO", p, kh) for p in range(7) for kh in range(2)]
    uidx = {u: k for k, u in enumerate(units)}
    ESLOT = {8: 0, 9: 1, 10: 2, 11: 3}
    def uoff(u):
        if u[0] == "WO" and 2 * u[1] + u[2] >= 12: return ((uidx[u] - 10) % NU) * UNIT
        return (uidx[u] % NU) * UNIT
    rWOE = rK

    M = []
    def qa(j, ks, mt): return 32 * (j & 1) + 16 * ks + 4 * mt
    def qb(j, ks, nu): return 64 + 56 * (j & 1) + 28 * ks + 4 * nu
    def oacc(mt, nu): return OACC + 4 * (4 * nu + mt)
    first_use = {}; last_use = {}
    def use(name, i):
        first_use.setdefault(name, i); last_use[name] = i
    done_at = {}
    for j in range(7):
        for nu in range(7):
            for mt in range(4):
                for ks in range(2):
                    i = len(M)
                    M.append((oacc(mt, nu), qa(j, ks, mt), qb(j, ks, nu), j == 0 and ks == 0))
                    use(("QA", j, ks, mt), i); use(("QB", j, ks, nu), i); done_at[("Q", mt, nu)] = i
    def ka(step, k): return AK + 16 * (step & 1) + 4 * k
    SX = OACC + 112 - 28
    sbuf = [SACC[0], SACC[1], SX, SACC[0], SACC[1], SX, SACC[0], SACC[1]] if cfg.get("s3", 1) else [SACC[b & 1] for b in range(8)]
    for b in range(8):
        for h in range(2):
            for nu in range(7):
                for k in range(4):
                    i = len(M)
                    M.append((sbuf[b] + 4 * nu, ka(2 * b + h, k), AQ + 4 * ((4 * h + k) * 7 + nu), h == 0 and k == 0))
                    use(("SA", b, h, k), i); use(("SB", 4 * h + k, nu), i); done_at[("S", b, nu)] = i
                    use(("Sacc", b, nu), i)
    for j in range(8):
        for nu in range(7):
            for mt in range(4):
                for ks in range(2):
                    i = len(M)
                    M.append((oacc(mt, nu), qa(j, ks, mt), qb(j, ks, nu), j == 0 and ks == 0))
                    use(("VA", j, ks, mt), i); use(("VB", j, ks, nu), i); done_at[("O", mt, nu)] = i
    def oa(p, kap): return ("a", AK + 4 * kap) if p % 2 == 0 else ("v", PR[0] + 4 * kap)
    for p in range(7):
        for nu in range(7):
            for kap in range(8):
                i = len(M)
                M.append((SACC[p & 1] + 4 * nu, oa(p, kap), AQ + 4 * (kap * 7 + nu), kap == 0))
                use(("OA", p, kap >> 2, kap & 3), i); use(("OB", kap, nu), i); done_at[("Y", p, nu)] = i
                use(("Yacc", p, nu), i)
    assert len(M) == END
    def mfma(i):
        acc, a, b, cz = M[i]
        Cs = set() if cz else V(acc, 4)
        if not isinstance(a, tuple): a = ("a", a)
        at, as_ = (ar(a[1], 4), Ac(a[1], 4)) if a[0] == "a" else (vr(a[1], 4), V(a[1], 4))
        return Ins(f"v_mfma_f32_16x16x32_bf16 {vr(acc,4)}, {at}, {ar(b,4)}, {'0' if cz else vr(acc,4)}", "mfma",
                   rd=as_ | Ac(b, 4) | Cs, wr=V(acc, 4), rdc=Cs, cost=8)

    ev_done = set()
    events = {}
    def add_event(idx, name, fn): events.setdefault(idx, []).append((name, fn))
    def after_ev(*names): return lambda: all(n in ev_done for n in names)

    M0 = {("s", "m0")}
    reads_left = {}
    last_read = {}; now = [0]
    def res_idle(res):
        return reads_left.get(res, 0) == 0 and not any(r == res for _, r in E.dsq)

    def dma_unit(u, pre=None):
        L = []
        k = u[0]
        if k == "X":
            L.append(Ins(f"s_add_u32 m0, s{sXB}, {(u[1] % 4) * 16384}", "salu", wr=M0, pre=pre))
        elif k == "WO" and 2 * u[1] + u[2] in ESLOT:
            L.append(Ins(f"s_add_u32 m0, s{sXB}, {ESLOT[2 * u[1] + u[2]] * 16384}", "salu", wr=M0, pre=pre))
        else:
            L.append(Ins(f"s_add_u32 m0, s{sRB}, {uoff(u)}", "salu", wr=M0, pre=pre))
        def smov(val): L.append(Ins(f"s_mov_b32 s{sOFF}, {val}", "salu"))
        def sxor(val):
            if cfg.get("stag"): L.append(Ins(f"s_xor_b32 s{sOFF}, s{sSTG if k == 'K' else sSTV}, {val}", "salu"))
            else: smov(val)
        def ld(vreg, sr, j, fl):
            L.append(Ins(f"buffer_load_dwordx4 v{vreg}, {srd(sr)}, s{sOFF} offen offset:{j*1024} {fl} lds".replace("  ", " "),
                         "vmem", rd=M0 | V(vreg), tag=u, cost=8))
        if k == "X":
            smov(128 * u[1])
            for j in range(4): ld(dX + j, sSRD_X, j, ntX)
        elif k == "WQ":
            smov(u[1] * 32 * 8192)
            for j in range(4): ld(dWQ + j, sSRD_WQ, j, ntW)
        elif k == "K":
            sxor((u[1] >> 1) * 65536 + (u[1] & 1) * 8192 + u[2] * 256)
            for j in range(4): ld(dK + j, sSRD_K, j, ntKV)
        elif k == "V":
            sxor(u[1] * 16384)
            for j in range(4): ld(dV + j, sSRD_V, j, ntKV)
        elif k == "WO":
            for j in range(4):
                smov(u[2] * 128 * 896 + u[1] * 128 + j * (8 * 896 - 1024)); ld(dWO, sSRD_WO, j, ntW)
        return L

    def rd(kind, dst, n, areg, off, res, after, before, pre=None):
        assert 0 <= off < 65536
        reads_left[res] = reads_left.get(res, 0) + 1
        if not isinstance(dst, tuple): dst = ("a", dst)
        dt, ds_ = (ar(dst[1], n), Ac(dst[1], n)) if dst[0] == "a" else (vr(dst[1], n), V(dst[1], n))
        return Ins(f"{kind} {dt}, v{areg} offset:{off}", "ds", rd=V(areg), wr=ds_, res=res,
                   after=after, before=max(before, after + 1), pre=pre, tag="read")

    RA = []; RB = []
    MID = cfg.get("mid", 40)
    A1, A2 = cfg.get("a1", 6), cfg.get("a2", 30)
    def vmwait(tags): return lambda: E.wait_vm(tags)
    def bar(tags=(), wres=None, idle=()):
        def f():
            for r in idle: assert reads_left.get(r, 0) == 0, f"barrier releases {r} with reads pending"
            if wres is not None:
                assert not any(x.kind == "ds" and x.res is not None and wres(x.res) for x in VS), "publishing barrier before all writes were emitted"
            E.wait_ds_res(lambda r: r in idle or (wres is not None and wres(r)))
            if tags: E.wait_vm(list(tags))
            if not cfg.get("nobar"): R("s_barrier")
        return f
    def areads(base, j, kind, fu, areg, estride, busy=None):
        for ks in range(2):
            u = (kind, 2 * j + ks)
            at = base + (j - 1) * BL + (A1, A2)[ks]
            if base == 0 and j == 0: at = -1
            name = ("Wa", u)
            add_event(at, name, vmwait([u]))
            for mt in range(4):
                a0 = at if busy is None else max(at, busy(qa(j, ks, mt)))
                for e in range(2):
                    RA.append(rd("ds_read_b64_tr_b16", qa(j, ks, mt) + 2 * e, 2, areg + mt, uoff(u) + e * estride, u, a0,
                                 first_use[(fu, j, ks, mt)] - DMIN, after_ev(name)))
    for j in range(7):
        at = (j - 1) * BL + MID if j > 0 else -1
        name = ("Bx", j)
        add_event(at, name, bar(tags=[("X", j)], idle=[("X", j - 1)] if j > 0 else []))
        areads(0, j, "WQ", "QA", rWQ, 512)
        for nu in range(7):
            for ks in range(2):
                RB.append(rd("ds_read_b128", qb(j, ks, nu), 4, rX + ks, (j % 4) * 16384 + nu * 2048, ("X", j), at,
                             min(first_use[("QB", j, ks, nu)] - DMIN, j * BL + (MID - 6 if j < 6 else cfg.get("xe", 12) - 4)), after_ev(name)))
    add_event(6 * BL + cfg.get("xe", 12), "Bxe", bar(idle=[("X", 6)]))
    for st in range(16):
        b, h = st >> 1, st & 1
        at = S0 + (st - 1) * 28 + cfg.get("kat", 10)
        name = ("Wk", st)
        add_event(at, name, vmwait([("K", b, h)]))
        RA += [rd("ds_read_b128", ka(st, k), 4, rK + k, uoff(("K", b, h)), ("K", b, h), at,
                  first_use[("SA", b, h, k)] - DMIN, after_ev(name)) for k in range(4)]
    add_event(S0 - 1, "Bq", bar(wres=lambda r: r == "qw"))
    for h in range(2):
        for nu in range(7):
            for k in range(4):
                kap = 4 * h + k
                RB.append(rd("ds_read_b128", AQ + 4 * (kap * 7 + nu), 4, rE, (kap * 7 + nu) * 1024, "q", S0 - 1,
                             first_use[("SB", kap, nu)] - DMIN, after_ev("Bq")))
    add_event(S0 + BL + 4, "Bqe", bar(idle=["q"]))
    def qbusy(reg): return last_use[("SB",) + divmod((reg - AQ) // 4, 7)]
    for j in range(8):
        at = P0 + (j - 1) * BL + MID
        c = j >> 1
        name = ("Bp", j & ~1)
        if j == 0: add_event(at, name, bar(wres=lambda r: r in (("pw", 0), ("pw", 1))))
        elif j == 2: add_event(at, name, bar(idle=[("P", 0)]))
        elif j == 4: add_event(at, name, bar(idle=[("P", 1)], wres=lambda r: r == ("pw", 2)))
        elif j == 6: add_event(at, name, bar(idle=[("P", 2)], wres=lambda r: r in (("pw", 3), "lw")))
        areads(P0, j, "V", "VA", rV, 2048, qbusy if j < 2 else None)
        if j & 1: at = P0 + (j - 1) * BL + cfg.get("mid2", 30)
        for nu in range(7):
            for ks in range(2):
                a0 = max(at, qbusy(qb(j, ks, nu))) if j < 2 else at
                wprod = 2 * (j & 1) + ks
                RB.append(rd("ds_read_b128", qb(j, ks, nu), 4, rE, (c & 1) * 28672 + (wprod * 7 + nu) * 1024, ("P", c), a0,
                             min(first_use[("VB", j, ks, nu)] - DMIN, P0 + j * BL + (MID - 6 if j < 7 else cfg.get("xe", 12) - 4)), after_ev(name)))
    add_event(P0 + 7 * BL + cfg.get("xe", 12), "Bpe", bar(idle=[("P", 3)]))
    add_event(O0 - 1, "Bo_x", bar(wres=lambda r: r == "ow", idle=[("WO", 0, 0), ("WO", 0, 1)], tags=[("WO", 1, 0), ("WO", 1, 1)]))
    for p in range(7):
        at = O0 + (p - 1) * BL + cfg.get("oat", 24)
        name = ("Bo", p)
        if p == 1: name = "Bo_x"; at = O0 + cfg.get("oat1", 0)
        elif p == 2:
            at = O0 + BL - 2
            add_event(at, name, bar(tags=[("WO", p, 0), ("WO", p, 1)], idle=["o", ("WO", 1, 0), ("WO", 1, 1)]))
        else: add_event(at, name, bar(tags=[("WO", p, 0), ("WO", p, 1)]))
        if p == 2: at = O0 + BL + 8
        for h in range(2):
            st = 2 * p + h
            for k in range(4):
                for e in range(2):
                    if st in ESLOT: areg, off = rWOE, ESLOT[st] * 16384 + k * 4096 + e * 2048
                    else: areg, off = rWO + (k >> 1), (k & 1) * RING + uoff(("WO", p, h)) + e * 2048
                    d = oa(p, 4 * h + k)
                    bef = first_use[("OA", p, h, k)] - DMIN
                    if p == 0: bef = min(bef, O0 - 8)
                    if p == 1: bef = min(bef, O0 + 3 * (8 * h + 2 * k + e) + 4)
                    RA.append(rd("ds_read_b64_tr_b16", (d[0], d[1] + 2 * e), 2, areg, off, ("WO", p, h), at, bef, after_ev(name)))
    for nu in range(7):
        for kap in range(8):
            RB.append(rd("ds_read_b128", AQ + 4 * (kap * 7 + nu), 4, rE, (kap * 7 + nu) * 1024, "o", O0 - 1,
                         first_use[("OB", kap, nu)] - DMIN, after_ev("Bo_x")))

    DQ = []
    order = []
    xs = [("X", j) for j in range(7)]
    order = [xs[0], units[0], units[1], xs[1], units[2], units[3], xs[2], units[4], units[5], xs[3]]
    k = 6
    for j in range(4, 7):
        order += [units[k], units[k + 1], xs[j]]; k += 2
    order += units[k:]
    for u in order:
        if u[0] == "X":
            pre = after_ev(("Bx", u[1] - 3)) if u[1] >= 4 else None
        else:
            k = uidx[u]
            if k < NU: pre = None
            elif units[k - NU][0] == "WO":
                st = 2 * u[1] + u[2]
                pre = after_ev("Bo_x") if st < 8 else after_ev(("Bo", 2))
            else:
                pre = (lambda r: (lambda: reads_left[r] == 0 and now[0] - last_read[r] >= cfg.get("rel", 7)))(units[k - NU])
        L = dma_unit(u, pre)
        if u[0] != "X" and uidx[u] >= NU and units[uidx[u] - NU][0] != "WO": L[0].res = units[uidx[u] - NU]
        DQ.append((u, L))

    def valu(text, rd_, wr_, after, before=INF, kind="valu", cost=4, pre=None):
        return Ins(text, kind, rd=rd_, wr=wr_, after=after, before=before, cost=cost, pre=pre)
    VS = []
    for nu in range(7):
        aft = done_at[("Q", 3, nu)]
        for mt in range(4):
            r = oacc(mt, nu)
            for x in range(4): VS.append(valu(f"v_mul_f32 v{r+x}, s{sC}, v{r+x}", V(r + x), V(r + x), aft, S0))
        for mt in range(4):
            r = oacc(mt, nu)
            VS.append(valu(f"v_cvt_pk_bf16_f32 v{r}, v{r}, v{r+1}", V(r, 2), V(r), aft, S0))
            VS.append(valu(f"v_cvt_pk_bf16_f32 v{r+1}, v{r+2}, v{r+3}", V(r + 2, 2), V(r + 1), aft, S0))
        for mt in range(4):
            r = oacc(mt, nu)
            off = ((mt >> 1) * 7 + nu) * 1024 + (mt & 1) * 512
            VS.append(Ins(f"ds_write_b64 v{wQ}, {vr(r,2)} offset:{off}", "ds", rd=V(wQ) | V(r, 2), res="qw",
                          after=aft, before=S0, pre=after_ev("Bxe"), cost=12))
    def pw(c, nu, hf, aft, bef, evn):
        r = PR[c & 1] + 4 * nu + 2 * hf
        return Ins(f"ds_write_b64 v{wP}, {vr(r,2)} offset:{(c&1)*28672+nu*1024+8*hf}", "ds", rd=V(wP) | V(r, 2), res=("pw", c),
                   after=aft, before=bef, pre=after_ev(evn), cost=12)
    pend = []
    WS = []
    pvfirst = {}
    for i in range(P0, P0 + BL): pvfirst.setdefault(M[i][0], i)
    for b in range(8):
        c, hf = b >> 1, b & 1
        for nu in range(7):
            acc = sbuf[b] + 4 * nu
            aft = done_at[("S", b, nu)]
            nxt = [bb for bb in range(b + 1, 8) if sbuf[bb] == sbuf[b]]
            pdead = (P0 - BL + MID, P0 - BL + MID, P0 + 3 * BL + MID, P0 + 5 * BL + MID)[c]
            if nxt: bef = first_use[("Sacc", nxt[0], nu)]
            elif acc in pvfirst: bef = pvfirst[acc]
            else: bef = INF
            bef = min(bef, pdead - 2)
            pr = PR[c & 1] + 4 * nu + 2 * hf
            ex = [valu(f"v_exp_f32 v{acc+x}, v{acc+x}", V(acc + x), V(acc + x), aft, bef, kind="trans", cost=8) for x in range(4)]
            if b == 0:
                ad = [valu(f"v_add_f32 v{vL+nu}, v{acc}, v{acc+1}", V(acc, 2), V(vL + nu), aft, bef)]
                ad += [valu(f"v_add_f32 v{vL+nu}, v{vL+nu}, v{acc+x}", V(vL + nu) | V(acc + x), V(vL + nu), aft, bef) for x in (2, 3)]
                ad = [None] + ad
            else:
                ad = [valu(f"v_add_f32 v{vL+nu}, v{vL+nu}, v{acc+x}", V(vL + nu) | V(acc + x), V(vL + nu), aft, bef) for x in range(4)]
            cv = [valu(f"v_cvt_pk_bf16_f32 v{pr}, v{acc}, v{acc+1}", V(acc, 2), V(pr), aft, bef),
                  valu(f"v_cvt_pk_bf16_f32 v{pr+1}, v{acc+2}, v{acc+3}", V(acc + 2, 2), V(pr + 1), aft, bef)]
            tail = [ad[0], cv[0], ad[1], cv[1], ad[2], ad[3]]
            tail = [x for x in tail if x is not None]
            tail.append(pw(c, nu, hf, aft, pdead, ("Bqe", "Bqe", ("Bp", 2), ("Bp", 4))[c]))
            seq = []
            for x in range(4):
                seq.append(ex[x])
                seq += pend[:2]; pend = pend[2:]
            seq += pend
            pend = tail
            VS += seq
    VS += pend
    lbef = P0 + 5 * BL + MID
    T0 = SACC[0]
    aft = done_at[("S", 7, 6)]
    for nu in range(7): VS.append(valu(f"v_mov_b32 v{T0+nu}, v{vL+nu}", V(vL + nu), V(T0 + nu), aft, lbef))
    for nu in range(7): VS.append(valu(f"v_permlane32_swap_b32 v{vL+nu}, v{T0+nu}", V(vL + nu) | V(T0 + nu), V(vL + nu) | V(T0 + nu), aft, lbef, kind="perm", cost=8))
    for nu in range(7): VS.append(valu(f"v_add_f32 v{vL+nu}, v{vL+nu}, v{T0+nu}", V(vL + nu) | V(T0 + nu), V(vL + nu), aft, lbef))
    for nu in range(7): VS.append(valu(f"v_mov_b32 v{T0+nu}, v{vL+nu}", V(vL + nu), V(T0 + nu), aft, lbef))
    for nu in range(7): VS.append(valu(f"v_permlane16_swap_b32 v{vL+nu}, v{T0+nu}", V(vL + nu) | V(T0 + nu), V(vL + nu) | V(T0 + nu), aft, lbef, kind="perm", cost=8))
    for nu in range(7): VS.append(valu(f"v_add_f32 v{T0+8+nu}, v{vL+nu}, v{T0+nu}", V(vL + nu) | V(T0 + nu), V(T0 + 8 + nu), aft, lbef))
    VS.append(valu(f"v_add_u32 v{T0+7}, s{sXB}, v{vST}", V(vST), V(T0+7), aft, lbef))
    VS.append(valu(f"v_subrev_u32 v{T0+7}, s{sW2K}, v{T0+7}", V(T0+7), V(T0+7), aft, lbef))
    for hh in range(2):
        VS.append(Ins(f"ds_write_b128 v{T0+7}, {vr(T0+8+4*hh,4)} offset:{57344+hh*1024}", "ds", rd=V(T0+7) | V(T0 + 8 + 4 * hh, 4),
                      res="lw", after=aft, before=lbef, cost=20))
    rb = P0 + 7 * BL
    for w in range(4):
        for hh in range(2):
            d = T0 + 8 * w + 4 * hh
            VS.append(Ins(f"ds_read_b128 {vr(d,4)}, v{rE} offset:{57344+w*2048+hh*1024}", "ds", rd=V(rE), wr=V(d, 4), res="lr",
                          after=0, before=rb, pre=after_ev(("Bp", 6))))
    la = P0 + 6 * BL + 20
    for nu in range(7): VS.append(valu(f"v_add_f32 v{T0+nu}, v{T0+nu}, v{T0+8+nu}", V(T0 + nu) | V(T0 + 8 + nu), V(T0 + nu), la, O0))
    for nu in range(7): VS.append(valu(f"v_add_f32 v{T0+16+nu}, v{T0+16+nu}, v{T0+24+nu}", V(T0 + 16 + nu) | V(T0 + 24 + nu), V(T0 + 16 + nu), la, O0))
    for nu in range(7): VS.append(valu(f"v_add_f32 v{T0+nu}, v{T0+nu}, v{T0+16+nu}", V(T0 + nu) | V(T0 + 16 + nu), V(T0 + nu), la, O0))
    for nu in range(7): VS.append(valu(f"v_rcp_f32 v{vL+nu}, v{T0+nu}", V(T0 + nu), V(vL + nu), la, O0, kind="trans", cost=8))
    VS.append(valu(f"v_add_u32 v{rWOE}, {EB}, v{rWO}", V(rWO), V(rWOE), P0 + 6 * BL, O0))
    VS.append(valu(f"v_lshrrev_b32 v{vST2}, 1, v{vST}", V(vST), V(vST2), P0 + 6 * BL, O0))
    for nu in range(7):
        aft = done_at[("O", 3, nu)]
        for al in range(2):
            r = oacc(2 * al, nu)
            for x in range(4):
                VS.append(valu(f"v_cvt_pk_bf16_f32 v{r+x}, v{r+2*x}, v{r+2*x+1}", V(r + 2 * x, 2), V(r + x), aft, O0))
        for al in range(2):
            r = oacc(2 * al, nu)
            VS.append(Ins(f"ds_write_b128 v{wO}, {vr(r,4)} offset:{(al*7+nu)*1024}", "ds", rd=V(wO) | V(r, 4), res="ow",
                          after=aft, before=O0, pre=after_ev("Bpe"), cost=20))
    SQ = []
    for p in range(7):
        stg = OACC + 16 * p
        for nu in range(7):
            acc = SACC[p & 1] + 4 * nu
            aft = done_at[("Y", p, nu)]
            bef = first_use[("Yacc", p + 2, nu)] if p < 5 else INF
            for x in range(4): VS.append(valu(f"v_mul_f32 v{acc+x}, v{vL+nu}, v{acc+x}", V(acc + x) | V(vL + nu), V(acc + x), aft, bef))
            d = stg + 2 * nu
            VS.append(valu(f"v_cvt_pk_bf16_f32 v{d}, v{acc}, v{acc+1}", V(acc, 2), V(d), aft, bef))
            VS.append(valu(f"v_cvt_pk_bf16_f32 v{d+1}, v{acc+2}, v{acc+3}", V(acc + 2, 2), V(d + 1), aft, bef))
            gate = (lambda: not dq) if cfg.get("gate", 1) else None
            if nu & 1:
                VS.append(Ins(f"buffer_store_dwordx4 {vr(d-2,4)}, v{vST}, {srd(sSRD_WS)}, s{sSTO+p} offen offset:{(nu>>1)*1024} {stfl}",
                              "vmem", rd=V(d - 2, 4) | V(vST), tag="store", after=aft, cost=32, pre=gate))
            if nu == 6:
                VS.append(Ins(f"buffer_store_dwordx2 {vr(d,2)}, v{vST2}, {srd(sSRD_WS)}, s{sSTO+p} offen offset:3072 {stfl}",
                              "vmem", rd=V(d, 2) | V(vST2), tag="store", after=aft, cost=18, pre=gate))

    vFA, vFO, vFN, vFV, vRA, vOA, vOA2, vZ = dK, dK + 1, dK + 2, dK + 3, 40, 41, 42, 43
    def publish(cnt):
        R(f"v_and_b32 v{vFV}, -16, v{vFV}")
        R(f"v_add_u32 v{vFV}, {16 + cnt}, v{vFV}")
        R(f"buffer_store_dword v{vFV}, v{vZ}, {srd(sSRD_FM)}, 0 offen sc1")
    def reduce_setup():
        t = 44
        R(f"v_lshrrev_b32 v{t}, 4, v{vST}")
        R(f"v_and_b32 v{t+1}, 15, v{t}")
        R(f"v_lshrrev_b32 v{t+2}, 4, v{t}")
        R(f"v_lshlrev_b32 v{vZ}, 24, v{t}")
        for s_ in range(2):
            for io in range(4):
                R(f"v_mov_b32 v{32+4*s_+io}, 0")
                R(f"v_mov_b32 v{t+3}, 0x3f80"); R(f"v_cmp_eq_u32 vcc, {8*s_+2*io}, v{t+1}"); R("s_nop 1")
                R(f"v_cndmask_b32 v{32+4*s_+io}, v{32+4*s_+io}, v{t+3}, vcc")
                R(f"v_mov_b32 v{t+3}, 0x3f800000"); R(f"v_cmp_eq_u32 vcc, {8*s_+2*io+1}, v{t+1}"); R("s_nop 1")
                R(f"v_cndmask_b32 v{32+4*s_+io}, v{32+4*s_+io}, v{t+3}, vcc")
        R(f"s_lshl_b32 s40, s{sW}, 4"); R(f"v_add_u32 v{t+3}, s40, v{t+1}")
        R(f"v_cmp_gt_u32 s[24:25], 56, v{t+3}")
        R(f"v_mul_u32_u24 v{vRA}, 100352, v{t+2}"); R(f"v_lshl_add_u32 v{vRA}, v{t+3}, 4, v{vRA}")
        R(f"v_mov_b32 v{t+4}, 0x7ffffff0")
        R(f"v_cndmask_b32 v{vRA}, v{t+4}, v{vRA}, s[24:25]")
        R(f"s_and_b32 s40, s{sH}, 3"); R("s_mul_i32 s40, s40, 56"); R(f"v_add_u32 v{t+3}, s40, v{t+3}")
        R(f"v_and_b32 v{t+5}, 1, v{t+2}")
        R(f"v_lshrrev_b32 v{t+6}, 6, v{t+3}"); R(f"v_and_b32 v{t+7}, 15, v{t+3}")
        R(f"v_lshl_add_u32 v{t+6}, v{t+6}, 5, v{t+7}"); R(f"v_lshl_add_u32 v{t+6}, v{t+5}, 4, v{t+6}")
        R(f"v_bfe_u32 v{t+7}, v{t+3}, 4, 2")
        R(f"v_and_b32 v{t+8}, 7, v{t+3}"); R(f"v_lshl_add_u32 v{t+8}, v{t+8}, 1, v{t+5}"); R(f"v_add_u32 v{t+8}, 96, v{t+8}")
        R(f"v_bfe_u32 v{t+9}, v{t+3}, 3, 2")
        R(f"v_cmp_lt_u32 vcc, 191, v{t+3}"); R("s_nop 1")
        R(f"v_cndmask_b32 v{t+6}, v{t+6}, v{t+8}, vcc"); R(f"v_cndmask_b32 v{t+7}, v{t+7}, v{t+9}, vcc")
        R(f"v_mul_u32_u24 v{vOA}, 896, v{t+6}"); R(f"v_lshl_add_u32 v{vOA}, v{t+7}, 3, v{vOA}")
        R(f"v_lshrrev_b32 v{t+5}, 1, v{t+2}"); R(f"v_lshl_add_u32 v{vOA}, v{t+5}, 7, v{vOA}")
        R(f"s_lshr_b32 s40, s{sH}, 2"); R("s_lshl_b32 s40, s40, 5"); R(f"v_add_u32 v{vOA}, s40, v{vOA}")
        R(f"v_cndmask_b32 v{vOA}, v{t+4}, v{vOA}, s[24:25]")
        R(f"v_cmp_gt_u32 vcc, 32, v{t}"); R("s_nop 1")
        R(f"v_cndmask_b32 v{vOA2}, v{t+4}, v{vOA}, vcc")
    if cfg.get("ink", 1):
        fa = P0 - BL
        VS.insert(0, valu(f"v_and_b32 v{vFA}, 0xf0, v{vST}", V(vST), V(dK, 4), fa, P0 + BL, pre=lambda: not any(x.kind == "vmem" and x.tag[0] == "K" for x in dq)))
        VS.insert(1, valu(f"v_lshlrev_b32 v{vFA}, 3, v{vFA}", V(vFA), V(vFA), fa, P0 + BL))
        VS.insert(2, valu(f"v_mov_b32 v{vFN}, 0", set(), V(vFN), fa, P0 + BL))
        VS.insert(3, Ins(f"buffer_load_dword v{vFO}, v{vFA}, {srd(sSRD_FL)}, 0 offen sc1", "vmem", rd=V(vFA), wr=V(vFO), tag="pf", after=fa, before=P0 + BL, cost=8))
        VS.insert(4, Ins(f"buffer_load_dword v{vFV}, v{vFN}, {srd(sSRD_FM)}, 0 offen sc1", "vmem", rd=V(vFN), wr=V(vFV), tag="pf", after=fa, before=P0 + BL, cost=8))

    PF = []
    if cfg.get("wopf") is not None:
        PF.append(Ins(f"buffer_load_dword v0, v{vPFV}, {srd(sSRD_WO)}, 0 offen", "vmem", rd=V(vPFV), tag="pf",
                      after=int(cfg["wopf"] * 28), cost=8))

    KN = "standalone__gqa_block_cached__near_ridge_kernel" if cfg.get("ink", 1) else "gqa_main_kernel"
    if cfg.get("ink", 1):
        E.out.append("; fused GQA block: q-proj + attention + out-proj + cross-workgroup head reduction")
        E.out.append("; @launch grid=(256,1,1) block=(256,1,1) lds=163840")
    else:
        E.out.append("""; fused GQA block: q-proj + attention + out-proj partials (main), then head reduction (reduce)
; @launch kernel=gqa_main_kernel grid=(256,1,1) block=(256,1,1) lds=163840
; @launch kernel=gqa_reduce_kernel grid=(448,1,1) block=(256,1,1) lds=0""")
    E.out.append(f""".amdgcn_target "amdgcn-amd-amdhsa--gfx950"
.text
.globl {KN}
.p2align 8
.type {KN},@function
{KN}:""")
    R("s_cmp_ge_u32 s2, 256")
    R("s_cbranch_scc1 L_exit")
    R("s_load_dwordx8 s[8:15], s[0:1], 0")
    R("s_load_dwordx2 s[4:5], s[0:1], 32")
    R(f"s_load_dwordx2 s[{sSRD_OUT}:{sSRD_OUT+1}], s[0:1], 40")
    R("s_load_dwordx2 s[6:7], s[0:1], 56")
    if cfg.get("padT") or cfg.get("padstep") is not None: R("s_memrealtime s[68:69]")
    if stamps:
        R(f"s_memtime s[{sSTAMP}:{sSTAMP+1}]"); R(f"s_memrealtime s[{sSTAMP+30}:{sSTAMP+31}]")
    t0, t1, t2, t3, t4, t5 = 40, 41, 42, 43, 44, 45
    vA, vP8, vG, vP16, vW, vR, vC4 = 46, 47, 48, 49, 50, 51, 52
    R(f"v_lshrrev_b32 v{vW}, 6, v0")
    R(f"v_and_b32 v{vLANE}, 63, v0")
    R(f"v_readfirstlane_b32 s{sW}, v{vW}")
    R(f"v_lshrrev_b32 v{vA}, 3, v{vLANE}")
    R(f"v_and_b32 v{vP8}, 7, v{vLANE}")
    R(f"v_lshrrev_b32 v{vG}, 4, v{vLANE}")
    R(f"v_and_b32 v{vP16}, 15, v{vLANE}")
    R("s_bfe_u32 s46, s2, 0x10003")
    if cfg.get("kmap", 2) == 1:
        R("s_and_b32 s50, s2, 7")
        R("s_lshr_b32 s48, s2, 4")
        R(f"s_mov_b32 s{sSQ}, s48"); R(f"s_mov_b32 s{sSX}, s46")
    else:
        R("s_and_b32 s50, s2, 3"); R("s_lshl_b32 s50, s50, 1"); R("s_bfe_u32 s40, s2, 0x10004"); R("s_add_u32 s50, s50, s40")
        R(f"s_lshr_b32 s{sSQ}, s2, 5"); R("s_bfe_u32 s40, s2, 0x10002"); R("s_lshl_b32 s48, s40, 3"); R(f"s_add_u32 s48, s48, s{sSQ}")
        R(f"s_bfe_u32 s{sSX}, s2, 0x20003")
    R("s_lshl_b32 s49, s50, 1")
    R("s_add_u32 s49, s49, s46")
    STG = cfg.get("stag", 0)
    if STG == 64: R(f"s_lshl_b32 s{sSTG}, s46, 16"); R(f"s_lshl_b32 s{sSTV}, s46, 16")
    else: R(f"s_lshl_b32 s{sSTG}, s46, 13"); R(f"s_lshl_b32 s{sSTV}, s46, 15")
    R(f"s_mul_i32 s{sRB}, s{sW}, {RING}")
    R(f"s_lshl_b32 s{sXB}, s{sW}, 12"); R(f"s_add_u32 s{sXB}, s{sXB}, {EB}")
    R(f"v_lshl_add_u32 v{t0}, v{vW}, 5, v{vA}")
    R(f"v_mul_u32_u24 v{t1}, 896, v{t0}")
    R(f"v_xor_b32 v{t2}, v{vP8}, v{vG}")
    R(f"v_lshlrev_b32 v{t2}, 4, v{t2}")
    R(f"v_xor_b32 v{t3}, 64, v{t2}")
    R(f"v_add_u32 v{dX}, v{t1}, v{t2}")
    R(f"v_add_u32 v{dX+1}, v{t1}, v{t3}")
    R(f"v_add_u32 v{dX+2}, {2*6144}, v{dX}")
    R(f"v_add_u32 v{dX+3}, {3*6144}, v{dX+1}")
    R(f"v_add_u32 v{dX+1}, {6144}, v{dX+1}")
    R(f"v_and_b32 v{t2}, 1, v{vG}")
    R(f"v_lshlrev_b32 v{t2}, 1, v{t2}")
    R(f"v_xor_b32 v{t2}, v{vP8}, v{t2}")
    R(f"v_lshlrev_b32 v{t2}, 4, v{t2}")
    R(f"v_lshl_add_u32 v{t2}, v{vW}, 7, v{t2}")
    R(f"v_lshl_add_u32 v{dWQ}, v{vA}, 13, v{t2}")
    R(f"v_xor_b32 v{dWQ+1}, 64, v{dWQ}")
    R(f"v_add_u32 v{dWQ+2}, {2*64512}, v{dWQ}")
    R(f"v_add_u32 v{dWQ+3}, {3*64512}, v{dWQ+1}")
    R(f"v_add_u32 v{dWQ+1}, {64512}, v{dWQ+1}")
    if cfg.get("ppf"):
        km = cfg.get("kmap", 2)
        xr = 56 // km; qr = 4 * km
        R(f"s_mul_i32 s40, s{sSX}, {xr}"); R(f"v_add_u32 v54, s40, v{vLANE}"); R(f"v_mul_u32_u24 v54, 896, v54")
        R(f"v_lshl_add_u32 v54, v{vW}, 7, v54")
        R("v_mov_b32 v57, 0x7ffffff0"); R(f"v_cmp_gt_u32 vcc, {xr}, v{vLANE}")
        R(f"v_lshrrev_b32 v55, 2, v{vLANE}"); R(f"v_lshl_add_u32 v55, v{vW}, 6, v55")
        R("v_cndmask_b32 v54, v57, v54, vcc")
        R(f"s_mul_i32 s40, s{sSQ}, {qr}"); R("v_add_u32 v55, s40, v55"); R(f"v_and_b32 v56, 3, v{vLANE}"); R("v_lshlrev_b32 v56, 7, v56")
        R(f"v_cmp_gt_u32 vcc, {4*qr}, v{vLANE}"); R("v_lshl_add_u32 v55, v55, 13, v56"); R("s_nop 0")
        R("v_cndmask_b32 v55, v57, v55, vcc")
    R("s_waitcnt lgkmcnt(0)")
    R("s_mul_i32 s40, s48, 100352")
    R(f"s_add_u32 s{sSRD_X}, s8, s40"); R(f"s_addc_u32 s{sSRD_X+1}, s9, 0")
    R(f"s_mov_b32 s{sSRD_X+2}, 100352"); R(f"s_mov_b32 s{sSRD_X+3}, 0x20000")
    R("s_lshl_b32 s40, s49, 9")
    R(f"s_add_u32 s{sSRD_WQ}, s14, s40"); R(f"s_addc_u32 s{sSRD_WQ+1}, s15, 0")
    R(f"s_sub_u32 s{sSRD_WQ+2}, {448*8192}, s40"); R(f"s_mov_b32 s{sSRD_WQ+3}, 0x20000")
    npro = cfg.get("npro", 3); npro2 = cfg.get("npro2", 6); npro3 = max(npro2, cfg.get("npro3", 0))
    km = cfg.get("kmap", 2)
    def prefetch_round(r):
        R(f"s_mov_b32 s40, {512*r}")
        E.emit(Ins(f"buffer_load_dword v56, v54, {srd(sSRD_X)}, s40 offen", "vmem", tag="pf")) if r == 0 else None
        if r == 1:
            R(f"v_cmp_gt_u32 vcc, 3, v{vW}"); R("v_mov_b32 v57, 0x7ffffff0"); R("s_nop 0"); R("v_cndmask_b32 v54, v57, v54, vcc")
            E.emit(Ins(f"buffer_load_dword v56, v54, {srd(sSRD_X)}, s40 offen", "vmem", tag="pf"))
        R(f"s_mov_b32 s40, {256*8192*r}")
        E.emit(Ins(f"buffer_load_dword v56, v55, {srd(sSRD_WQ)}, s40 offen", "vmem", tag="pf"))
    if cfg.get("ppf"): prefetch_round(0)
    for u, L in DQ[:npro]:
        for x in L: E.emit(x)
    R("s_lshl_b32 s40, s48, 3"); R("s_add_u32 s40, s40, s50"); R("s_lshl_b32 s40, s40, 18")
    R(f"s_add_u32 s{sSRD_K}, s10, s40"); R(f"s_addc_u32 s{sSRD_K+1}, s11, 0")
    R(f"s_mov_b32 s{sSRD_K+2}, 262144"); R(f"s_mov_b32 s{sSRD_K+3}, 0x20000")
    R(f"s_add_u32 s{sSRD_V}, s12, s40"); R(f"s_addc_u32 s{sSRD_V+1}, s13, 0")
    R(f"s_mov_b32 s{sSRD_V+2}, 262144"); R(f"s_mov_b32 s{sSRD_V+3}, 0x20000")
    if STG == 32:
        R(f"s_sub_u32 s{sSRD_V}, s{sSRD_V}, 4096"); R(f"s_subb_u32 s{sSRD_V+1}, s{sSRD_V+1}, 0"); R(f"s_mov_b32 s{sSRD_V+2}, {262144+4096}")
    R("s_mul_i32 s40, s49, 229376")
    R(f"s_add_u32 s{sSRD_WO}, s4, s40"); R(f"s_addc_u32 s{sSRD_WO+1}, s5, 0")
    R(f"s_mov_b32 s{sSRD_WO+2}, 229376"); R(f"s_mov_b32 s{sSRD_WO+3}, 0x20000")
    R("s_lshl_b32 s40, s48, 4"); R("s_add_u32 s40, s40, s49"); R("s_lshl_b32 s40, s40, 2"); R(f"s_add_u32 s40, s40, s{sW}")
    R("s_mul_i32 s40, s40, 25088")
    R(f"s_add_u32 s{sSRD_WS}, s6, s40"); R(f"s_addc_u32 s{sSRD_WS+1}, s7, 0")
    R(f"s_mov_b32 s{sSRD_WS+2}, 25088"); R(f"s_mov_b32 s{sSRD_WS+3}, 0x20000")
    R(f"s_mov_b32 s{sH}, s49"); R(f"s_mov_b32 s{sBB}, s48")
    R("s_mul_i32 s40, s48, 100352")
    R(f"s_add_u32 s{sSRD_OUT}, s{sSRD_OUT}, s40"); R(f"s_addc_u32 s{sSRD_OUT+1}, s{sSRD_OUT+1}, 0")
    R(f"s_mov_b32 s{sSRD_OUT+2}, 100352"); R(f"s_mov_b32 s{sSRD_OUT+3}, 0x20000")
    R("s_lshl_b32 s40, s40, 4")
    R(f"s_add_u32 s{sSRD_PB}, s6, s40"); R(f"s_addc_u32 s{sSRD_PB+1}, s7, 0")
    R(f"s_mov_b32 s{sSRD_PB+2}, 1605632"); R(f"s_mov_b32 s{sSRD_PB+3}, 0x20000")
    R(f"s_lshr_b32 s40, s49, 2"); R(f"s_mul_i32 s{sRO}, s40, 25088"); R("s_and_b32 s40, s49, 3"); R("s_mul_i32 s40, s40, 896"); R(f"s_add_u32 s{sRO}, s{sRO}, s40")
    R(f"s_mov_b32 s{sC}, {f2u(math.log2(math.e) / 16.0):#x}")
    R(f"s_lshl_b32 s{sW2K}, s{sW}, 11")
    R(f"s_mul_i32 s40, s{sSQ}, {16*km}"); R(f"v_lshrrev_b32 v58, 3, v{vLANE}"); R(f"v_add_u32 v58, s40, v58")
    R(f"v_mul_u32_u24 v59, {4*km}, v{vW}"); R("v_add_u32 v58, v58, v59"); R("v_mul_u32_u24 v58, 896, v58")
    R(f"v_lshl_add_u32 v{vPFV}, v{vP8}, 7, v58")
    R(f"v_cmp_gt_u32 vcc, {32*km}, v{vLANE}"); R("v_mov_b32 v59, 0x7ffffff0"); R("s_nop 0"); R(f"v_cndmask_b32 v{vPFV}, v59, v{vPFV}, vcc")
    for p in range(7): R(f"s_mov_b32 s{sSTO+p}, {p*3584}")

    R(f"v_bfe_u32 v{vR}, v{vLANE}, 2, 2")
    R(f"v_and_b32 v{vC4}, 3, v{vLANE}")
    R(f"v_lshlrev_b32 v{vST}, 4, v{vLANE}")
    R(f"v_bfe_u32 v{t2}, v{vLANE}, 1, 3")
    R(f"v_xor_b32 v{t2}, v{t2}, v{vG}")
    R(f"v_lshlrev_b32 v{t2}, 4, v{t2}")
    R(f"v_lshl_add_u32 v{t2}, v{vP16}, 7, v{t2}")
    R(f"v_add_u32 v{rX}, {EB}, v{t2}")
    R(f"v_xor_b32 v{rX+1}, 64, v{rX}")
    R(f"v_lshrrev_b32 v{t4}, 1, v{vR}")
    R(f"v_and_b32 v{t2}, 1, v{vG}")
    R(f"v_lshl_add_u32 v{t5}, v{t2}, 1, v{t4}")
    R(f"v_lshlrev_b32 v{t3}, 3, v{vC4}")
    R(f"v_lshl_add_u32 v{t3}, v{t5}, 5, v{t3}")
    R(f"v_add_u32 v{t4}, s{sRB}, v{t3}")
    R(f"v_lshl_add_u32 v{t2}, v{vG}, 3, v{vR}")
    R(f"v_lshl_add_u32 v{rWQ}, v{t2}, 7, v{t4}")
    for m in range(1, 4): R(f"v_xor_b32 v{rWQ+m}, {32*m}, v{rWQ}")
    for u, L in DQ[npro:npro2]:
        for x in L: E.emit(x)
    if cfg.get("ppf"): prefetch_round(1)
    for u, L in DQ[npro2:npro3]:
        for x in L: E.emit(x)
    R(f"v_lshl_add_u32 v{t2}, v{vG}, 2, v{vR}")
    R(f"v_lshl_add_u32 v{rV}, v{t2}, 7, v{t4}")
    for m in range(1, 4): R(f"v_xor_b32 v{rV+m}, {32*m}, v{rV}")
    R(f"v_lshl_add_u32 v{rWO}, v{t2}, 7, v{t3}")
    R(f"v_lshlrev_b32 v{t2}, 5, v{vW}")
    R(f"v_xor_b32 v{rWO}, v{rWO}, v{t2}")
    R(f"v_add_u32 v{rWO+1}, {2*RING}, v{rWO}")
    R(f"v_xor_b32 v{t2}, v{vG}, v{vP16}")
    R(f"v_lshlrev_b32 v{t2}, 4, v{t2}")
    R(f"v_lshl_add_u32 v{t2}, v{vP16}, 8, v{t2}")
    R(f"v_add_u32 v{rK}, s{sRB}, v{t2}")
    for k in range(1, 4): R(f"v_xor_b32 v{rK+k}, {64*k}, v{rK}")
    R(f"v_lshl_add_u32 v{t2}, v{vW}, 5, v{vG}")
    if STG == 32:
        R("s_lshl_b32 s40, s46, 6"); R(f"v_xor_b32 v{t2}, s40, v{t2}")
    R(f"v_xor_b32 v{t3}, v{vP16}, v{vG}")
    R(f"v_lshlrev_b32 v{t3}, 4, v{t3}")
    R(f"v_lshl_add_u32 v{dK}, v{t2}, 9, v{t3}")
    for j in range(1, 4):
        R(f"v_xor_b32 v{dK+j}, {64*j}, v{dK}")
        R(f"v_add_u32 v{dK+j}, {1024*j}, v{dK+j}")
    R(f"v_lshlrev_b32 v{t2}, 1, v{vG}")
    R(f"v_xor_b32 v{t2}, v{vP8}, v{t2}")
    R(f"v_lshlrev_b32 v{t2}, 4, v{t2}")
    R(f"v_add_u32 v{dWO}, v{t1}, v{t2}")
    R(f"v_lshl_add_u32 v{t2}, v{vW}, 7, v{t2}")
    R(f"v_lshl_add_u32 v{dV}, v{vA}, 9, v{t2}")
    if STG == 32:
        for j in range(3, -1, -1):
            R(f"s_xor_b32 s40, s{sSTG}, {4096*j}"); R(f"s_add_u32 s40, s40, {4096-1024*j}")
            R(f"v_add_u32 v{dV+j}, s40, v{dV}")
    else:
        for j in range(1, 4): R(f"v_add_u32 v{dV+j}, {3072*j}, v{dV}")
    R(f"v_add_u32 v{rE}, {EB}, v{vST}")
    R(f"v_mul_u32_u24 v{t2}, 7168, v{vW}")
    R(f"v_add_u32 v{wP}, v{rE}, v{t2}")
    R(f"v_add_u32 v{wO}, v{wP}, v{t2}")
    R(f"v_lshrrev_b32 v{t3}, 1, v{vG}")
    R(f"v_lshl_add_u32 v{t3}, v{t3}, 4, v{vP16}")
    R(f"v_and_b32 v{t4}, 1, v{vG}")
    R(f"v_lshlrev_b32 v{t4}, 3, v{t4}")
    R(f"v_lshl_add_u32 v{t3}, v{t3}, 4, v{t4}")
    R(f"v_lshl_add_u32 v{t3}, v{t2}, 1, v{t3}")
    R(f"v_add_u32 v{wQ}, {EB}, v{t3}")
    if cfg.get("cpf"):
        R("s_getpc_b64 s[8:9]")
        E.label("L_pc")
        R("s_mov_b32 s10, L_exit-L_pc"); R("s_mov_b32 s11, 0x20000")
        R(f"v_lshlrev_b32 v54, 7, v0"); R("s_lshr_b32 s40, s2, 3"); R("s_lshl_b32 s40, s40, 11")
        R(f"v_mov_b32 v55, 0x7ffffff0"); R(f"v_cmp_gt_u32 vcc, 16, v0"); R("s_nop 1"); R(f"v_cndmask_b32 v54, v55, v54, vcc")
        E.emit(Ins(f"buffer_load_dword v56, v54, s[8:11], s40 offen", "vmem", tag="pf"))
    R(f"s_lshl_b32 s40, s{sBB}, 2"); R(f"s_lshr_b32 s12, s{sH}, 2"); R("s_add_u32 s40, s40, s12"); R("s_lshl_b32 s40, s40, 11"); R(f"s_add_u32 s40, s40, {FLOFF}")
    R(f"s_add_u32 s{sSRD_FL}, s6, s40"); R(f"s_addc_u32 s{sSRD_FL+1}, s7, 0"); R(f"s_mov_b32 s{sSRD_FL+2}, 2048"); R(f"s_mov_b32 s{sSRD_FL+3}, 0x20000")
    R(f"s_lshl_b32 s40, s{sBB}, 2"); R(f"s_add_u32 s40, s40, s{sW}"); R("s_lshl_b32 s40, s40, 4"); R(f"s_add_u32 s40, s40, s{sH}"); R("s_lshl_b32 s40, s40, 7"); R(f"s_add_u32 s40, s40, {FLOFF}")
    R(f"s_add_u32 s{sSRD_FM}, s6, s40"); R(f"s_addc_u32 s{sSRD_FM+1}, s7, 0"); R(f"s_mov_b32 s{sSRD_FM+2}, 128"); R(f"s_mov_b32 s{sSRD_FM+3}, 0x20000")
    dq = [x for u, L in DQ[npro3:] for x in L]

    stamp_n = [1]
    def stamp():
        k = stamp_n[0]; stamp_n[0] += 1
        R(f"{'s_memrealtime' if cfg.get('rt', 1) and k != len(stamps) + 5 else 's_memtime'} s[{sSTAMP+2*k}:{sSTAMP+2*k+1}]")
    def skipf(i):
        if cfg.get("nodma") and i.kind == "vmem" and i.tag != "store": return True
        if cfg.get("nost") and i.tag == "store": return True
        if cfg.get("novalu") and i.kind in ("valu", "trans", "perm"): return True
        return False

    wgap = {}
    def emit(x):
        if x.tag == "read":
            reads_left[x.res] -= 1; last_read[x.res] = now[0]
        if x.kind == "salu" and x.res is not None: E.wait_ds_res(lambda r: r == x.res)
        E.emit(x)
        for r in x.wr: wgap[r] = (now[0], x.kind)
    def ok(x, i): return x.after <= i and (x.pre is None or x.pre())
    def run_events(idx):
        for name, fn in events.get(idx, []):
            fn(); ev_done.add(name)
    def conflicts(x, y): return bool(x.rd & y.wr or x.wr & y.rd or x.wr & y.wr)
    def force_fifo(st, i, what):
        k = 0
        for kk, x in enumerate(st[:64]):
            if x.before <= i: k = kk + 1
        c = 0
        for x in st[:k]:
            assert ok(x, i), f"forced {what} not eligible at {i}: {x.text}"
            emit(x); c += x.cost
        del st[:k]
        return c
    c2 = [0]
    def force_vs(i):
        c2[0] = 0
        need = [False] * min(len(VS), 600)
        for k in range(len(need) - 1, -1, -1):
            if VS[k].before <= i: need[k] = True
            if need[k]:
                for kk in range(k):
                    if not need[kk] and conflicts(VS[k], VS[kk]): need[kk] = True
        c = 0
        sel = [VS[k] for k in range(len(need)) if need[k]]
        for x in sel:
            assert ok(x, i), f"forced valu not eligible at {i}: {x.text}"
            VS.remove(x); emit(x); c += x.cost
            c2[0] += x.cost
            if c2[0] >= 96 and dq and ok(dq[0], i):
                c2[0] = 0
                while dq and ok(dq[0], i):
                    y = dq.pop(0); emit(y); c += y.cost
                    if y.kind == "vmem": break
        return c
    WIN = cfg.get("win", 150)
    def ready(x, i):
        if not ok(x, i) or E.need_nops(x) > 0: return False
        k = E.ds_idx(x)
        if k >= 0 and any(wgap.get(r, (-99, 0))[1] == "ds" and i - wgap[r][0] < 10 for r in x.rd | x.wr): return False
        for r in x.rd:
            if r in wgap and wgap[r][1] == "trans" and wgap[r][0] >= i: return False
        return True
    def pick(pred, i):
        blocked = []
        n = 0
        for k, x in enumerate(VS):
            if x.after <= i:
                n += 1
                if n > WIN: return None
            if pred(x) and ready(x, i) and not any(conflicts(x, y) for y in blocked): return x
            blocked.append(x)
            if k > 400: return None
        return None
    ismem = lambda x: x.kind in ("ds", "vmem")
    is4 = lambda x: x.cost == 4 and not ismem(x)

    run_events(-1)
    if stamps: stamp()
    E.skip = skipf
    over = {}; lastdma = -10; lastb128 = -10; lastw = -10; idle = {}
    for i in range(END):
        now[0] = i
        ph = "QSPO"[(i >= S0) + (i >= P0) + (i >= O0)]
        if i % 28 == 0:
            E.comment(f"---- step {i//28} {units[i//28]}")
            if i // 28 in stamps: stamp()
            if cfg.get("padstep") == i // 28: R("s_memrealtime s[70:71]")
        c = force_fifo(RA, i - 4, "read") + force_fifo(RB, i - 4, "read") if i > 0 else force_fifo(RA, 0, "read") + force_fifo(RB, 0, "read")
        if i in (S0, O0): c += force_fifo(RB, i, "read")
        over[ph] = over.get(ph, 0) + c
        E.emit(mfma(i))
        bud = BUD
        if any(x.before <= i + 1 for x in VS[:600]):
            c = force_vs(i + 1); over[ph] = over.get(ph, 0) + max(0, c - bud); bud -= c
        run_events(i)
        if bud < BUD:
            continue
        cand = [q for q in (RA, RB) if q and ok(q[0], i)]
        cand.sort(key=lambda q: q[0].before)
        urgent = [q for q in cand if q[0].before <= i + 1 + sum(1 for x in q[:6] if x.before <= i + 6)]
        sp = cfg.get("dmasp", 4)
        if dq and dq[0].kind == "vmem" and dq[0].tag[0] == "K" and i < S0: sp = cfg.get("ksp", 8)
        dma_due = dq and dq[0].kind == "vmem" and i - lastdma >= sp and E.need_nops(dq[0]) == 0
        x = None
        if dma_due and (not urgent or i - lastdma >= sp + 2):
            x = dq.pop(0); lastdma = i
            if urgent:
                emit(urgent[0].pop(0)); over[ph] = over.get(ph, 0) + 4
        elif urgent: x = urgent[0].pop(0)
        elif PF and PF[0].after <= i and i - lastdma >= 2: x = PF.pop(0)
        else:
            cand = [q for q in cand if not ("b128" in q[0].text and i - lastb128 < cfg.get("b128sp", 2))]
            if cand: x = cand[0].pop(0)
        if x is None:
            big = lambda z: not is4(z) and not (ismem(z) and z.cost > 8 and i - lastw < (cfg.get("wsp", 3) if z.kind == "ds" else cfg.get("ssp", 6)))
            y4 = pick(is4, i); y8 = pick(big, i)
            y = y8
            if y4 is not None and y8 is not None and VS.index(y4) < VS.index(y8):
                load = sum(z.cost for z in VS[:600] if z.before <= y4.before)
                if load / 8.0 > (y4.before - i) * cfg.get("urg", 0.6): y = y4
            if y is not None and not is4(y):
                VS.remove(y); x = y
                if ismem(y) and y.cost > 8: lastw = i
        if x is not None:
            if "read_b128" in x.text: lastb128 = i
            emit(x); bud -= x.cost
            if x.cost > BUD: over[ph] = over.get(ph, 0) + x.cost - BUD
        while bud >= 4:
            if dq and dq[0].kind == "salu" and ok(dq[0], i):
                emit(dq.pop(0)); bud -= 4; continue
            y = pick(is4, i)
            if y is None: break
            VS.remove(y); emit(y); bud -= 4
        if bud > 0: idle[ph] = idle.get(ph, 0) + bud
    now[0] = END
    over["tail"] = sum(x.cost for x in VS)
    for x in VS: emit(x)
    assert not RA and not RB and not dq and not PF
    INK = cfg.get("ink", 1)
    if cfg.get("padstep") == 60: R("s_memrealtime s[70:71]")
    if INK:
        if stamps: stamp()
        E.skip = None
        reduce_setup()
        R("s_waitcnt vmcnt(0)")
        if stamps: stamp()
        publish(7)
        R("s_mov_b32 s28, 0")
        E.label("L_poll")
        R(f"buffer_load_dword v{vFN}, v{vFA}, {srd(sSRD_FL)}, 0 offen sc1")
        R("s_waitcnt vmcnt(0)")
        R(f"v_cmp_ne_u32 vcc, v{vFN}, v{vFO}")
        R(f"v_and_b32 v{vFN}, 15, v{vFN}")
        R(f"v_cmp_le_u32 s[26:27], 7, v{vFN}")
        R("s_and_b64 vcc, vcc, s[26:27]")
        R("s_cmp_eq_u64 vcc, -1")
        R("s_cbranch_scc1 L_polled")
        publish(7)
        R("s_add_u32 s28, s28, 1")
        R("s_cmp_lt_u32 s28, 200000")
        R("s_cbranch_scc1 L_poll")
        E.label("L_polled")
        if stamps: stamp()
        for p in range(7):
            for g in range(4):
                R(f"s_add_u32 s40, s{sRO}, {g*4*100352 + p*3584}")
                R(f"buffer_load_dwordx4 {ar(16*p+4*g,4)}, v{vRA}, {srd(sSRD_PB)}, s40 offen sc1")
        for p in range(7):
            for g in range(4):
                R(f"s_waitcnt vmcnt({27 - 4*p - g + max(0, (p >> 1) - 1) + (1 if p >= 3 and (p & 1) else 0)})")
                d = 64 + 4 * (p >> 1)
                sel = 32 + 4 * (p & 1)
                c = "0" if (p & 1) == 0 and g == 0 else vr(d, 4)
                R(f"v_mfma_f32_16x16x32_bf16 {vr(d,4)}, {vr(sel,4)}, {ar(16*p+4*g,4)}, {c}")
            if p >= 2 and (p & 1) == 0:
                d = 64 + 4 * ((p >> 1) - 1)
                R(f"v_cvt_pk_bf16_f32 v{d}, v{d}, v{d+1}"); R(f"v_cvt_pk_bf16_f32 v{d+1}, v{d+2}, v{d+3}")
                R(f"buffer_store_dwordx2 {vr(d,2)}, v{vOA}, {srd(sSRD_OUT)}, 0 offen offset:{256*((p>>1)-1)}")
        R("s_nop 7")
        R(f"v_cvt_pk_bf16_f32 v76, v76, v77"); R(f"v_cvt_pk_bf16_f32 v77, v78, v79")
        R(f"buffer_store_dwordx2 v[76:77], v{vOA2}, {srd(sSRD_OUT)}, 0 offen offset:768")
    if stamps:
        if not INK: stamp(); stamp(); stamp()
        R("s_waitcnt vmcnt(0)")
        stamp()
        R(f"s_memrealtime s[{sSTAMP+32}:{sSTAMP+33}]")
        R("s_waitcnt lgkmcnt(0)")
        n = stamp_n[0]
        R("s_add_u32 s8, s6, 0x8000000"); R("s_addc_u32 s9, s7, 0"); R("s_mov_b32 s10, 0x100000"); R("s_mov_b32 s11, 0x20000")
        R("s_lshl_b32 s12, s2, 2"); R(f"s_add_u32 s12, s12, s{sW}"); R("s_lshl_b32 s12, s12, 7")
        R("v_mov_b32 v2, s12")
        R(f"v_cmp_eq_u32 vcc, 0, v{vST}")
        R("s_and_saveexec_b64 s[14:15], vcc")
        for k in range(1, n):
            R(f"s_sub_u32 s13, s{sSTAMP+2*k}, s{sSTAMP+30 if cfg.get('rt', 1) and k != len(stamps) + 5 else sSTAMP}")
            R("v_mov_b32 v3, s13")
            R(f"buffer_store_dword v3, v2, s[8:11], 0 offen offset:{4*(k-1)}")
        R(f"v_mov_b32 v3, s{sSTAMP+30}")
        R(f"buffer_store_dword v3, v2, s[8:11], 0 offen offset:{4*30}")
        R(f"v_mov_b32 v3, s{sSTAMP+32}")
        R(f"buffer_store_dword v3, v2, s[8:11], 0 offen offset:{4*31}")
    R("s_waitcnt vmcnt(0)")
    if cfg.get("padT") or cfg.get("padstep") is not None:
        R("s_memrealtime s[72:73]"); R("s_waitcnt lgkmcnt(0)")
        if cfg.get("padT"): R(f"s_add_u32 s74, s68, {cfg['padT']}")
        else: R("s_sub_u32 s74, s70, s68"); R("s_add_u32 s74, s74, s72")
        E.label("L_pad")
        R("s_memrealtime s[72:73]"); R("s_waitcnt lgkmcnt(0)")
        R("s_sub_u32 s75, s72, s74"); R("s_cmp_lt_i32 s75, 0"); R("s_cbranch_scc1 L_pad")
    E.label("L_exit")
    R("s_endpgm")
    print(f"main: nops {E.nops}, over {over}, idle {idle}, instrs {E.pos}", file=sys.stderr)

    KD = """.p2align 6
.amdhsa_kernel %s
  .amdhsa_next_free_vgpr %d
  .amdhsa_next_free_sgpr %d
  .amdhsa_accum_offset %d
  .amdhsa_group_segment_fixed_size 0
  .amdhsa_kernarg_size 64
  .amdhsa_user_sgpr_count 2
  .amdhsa_user_sgpr_kernarg_segment_ptr 1
  .amdhsa_system_sgpr_workgroup_id_x 1
.end_amdhsa_kernel
"""
    if INK:
        E.out.append('.section .rodata,"a"\n' + KD % (KN, 512, 102, 256))
        return "\n".join(E.out)
    E.out.append(""".globl gqa_reduce_kernel
.p2align 8
.type gqa_reduce_kernel,@function
gqa_reduce_kernel:""")
    R("s_cmp_ge_u32 s2, 448")
    R("s_cbranch_scc1 LR_exit")
    R("s_load_dwordx2 s[4:5], s[0:1], 40")
    R("s_load_dwordx2 s[6:7], s[0:1], 56")
    R("v_lshrrev_b32 v2, 6, v0")
    R("v_and_b32 v1, 63, v0")
    R("v_readfirstlane_b32 s3, v2")
    R(f"s_mul_hi_u32 s8, s2, {(2**32 + 27)//28}")
    R("s_mul_i32 s9, s8, 28")
    R("s_sub_u32 s9, s2, s9")
    R(f"s_mul_hi_u32 s10, s9, {(2**32 + 6)//7}")
    R("s_mul_i32 s11, s10, 7")
    R("s_sub_u32 s11, s9, s11")
    R("v_lshlrev_b32 v5, 4, v1")
    R("v_and_b32 v3, 15, v1"); R("v_lshrrev_b32 v4, 4, v1")
    R("s_mov_b32 s24, 14336")
    R("s_cmp_eq_u32 s3, 3")
    R("s_cbranch_scc0 LR_a")
    R("v_lshlrev_b32 v3, 1, v1"); R("v_and_b32 v3, 15, v3"); R("v_lshrrev_b32 v4, 3, v1")
    R("s_mov_b32 s24, 896")
    R("v_mov_b32 v6, 0x40000000")
    R("v_cmp_lt_u32 vcc, 31, v1")
    R("s_nop 1")
    R("v_cndmask_b32 v5, v5, v6, vcc")
    R("v_cndmask_b32 v3, v3, v6, vcc")
    R("v_min_u32 v3, 0x10000, v3")
    E.label("LR_a")
    R("v_mul_u32_u24 v7, 896, v3")
    R("v_lshl_add_u32 v7, v4, 3, v7")
    R("s_mul_i32 s13, s8, 1605632")
    R("s_mul_i32 s14, s9, 3584")
    R("s_add_u32 s13, s13, s14")
    R("s_lshl_b32 s14, s3, 10")
    R("s_add_u32 s13, s13, s14")
    R("s_waitcnt lgkmcnt(0)")
    R("s_add_u32 s16, s6, s13"); R("s_addc_u32 s17, s7, 0"); R("s_mov_b32 s18, 1605632"); R("s_mov_b32 s19, 0x20000")
    for h in range(16):
        R(f"s_mov_b32 s15, {h*100352}")
        R(f"buffer_load_dwordx4 v[{8+4*h}:{11+4*h}], v5, s[16:19], s15 offen {cfg.get('rlfl','')}")
    R("s_mul_i32 s13, s8, 100352")
    R("s_add_u32 s20, s4, s13"); R("s_addc_u32 s21, s5, 0"); R("s_mov_b32 s22, 100352"); R("s_mov_b32 s23, 0x20000")
    R("s_mul_i32 s14, s3, 28672")
    R("s_lshl_b32 s15, s11, 7"); R("s_add_u32 s14, s14, s15")
    R("s_lshl_b32 s15, s10, 5"); R("s_add_u32 s14, s14, s15")
    R("s_add_u32 s24, s24, s14")
    for h in range(16):
        R(f"s_waitcnt vmcnt({15-h})")
        for r in range(4):
            src = 8 + 4 * h + r
            if h == 0:
                R(f"v_lshlrev_b32 v{72+2*r}, 16, v{src}"); R(f"v_and_b32 v{73+2*r}, 0xffff0000, v{src}")
            else:
                R(f"v_lshlrev_b32 v80, 16, v{src}"); R(f"v_and_b32 v81, 0xffff0000, v{src}")
                R(f"v_add_f32 v{72+2*r}, v{72+2*r}, v80"); R(f"v_add_f32 v{73+2*r}, v{73+2*r}, v81")
    for r in range(4): R(f"v_cvt_pk_bf16_f32 v{84+r}, v{72+2*r}, v{73+2*r}")
    R("buffer_store_dwordx2 v[84:85], v7, s[20:23], s14 offen")
    R("buffer_store_dwordx2 v[86:87], v7, s[20:23], s24 offen")
    if stamps:
        R("s_waitcnt vmcnt(0)")
        R("s_memrealtime s[24:25]")
        R("s_waitcnt lgkmcnt(0)")
        R("s_add_u32 s16, s6, 0x8100000"); R("s_addc_u32 s17, s7, 0"); R("s_mov_b32 s18, 0x100000"); R("s_mov_b32 s19, 0x20000")
        R("s_lshl_b32 s12, s2, 2"); R("v_mov_b32 v2, s12"); R("v_mov_b32 v3, s24")
        R("v_cmp_eq_u32 vcc, 0, v0")
        R("s_and_saveexec_b64 s[14:15], vcc")
        R("buffer_store_dword v3, v2, s[16:19], 0 offen")
    R("s_waitcnt vmcnt(0)")
    E.label("LR_exit")
    R("s_endpgm")
    E.out.append(""".section .rodata,"a"
.p2align 6
.amdhsa_kernel gqa_main_kernel
  .amdhsa_next_free_vgpr 512
  .amdhsa_next_free_sgpr 102
  .amdhsa_accum_offset 256
  .amdhsa_group_segment_fixed_size 0
  .amdhsa_kernarg_size 64
  .amdhsa_user_sgpr_count 2
  .amdhsa_user_sgpr_kernarg_segment_ptr 1
  .amdhsa_system_sgpr_workgroup_id_x 1
.end_amdhsa_kernel
.p2align 6
.amdhsa_kernel gqa_reduce_kernel
  .amdhsa_next_free_vgpr 88
  .amdhsa_next_free_sgpr 32
  .amdhsa_accum_offset 88
  .amdhsa_group_segment_fixed_size 0
  .amdhsa_kernarg_size 64
  .amdhsa_user_sgpr_count 2
  .amdhsa_user_sgpr_kernarg_segment_ptr 1
  .amdhsa_system_sgpr_workgroup_id_x 1
.end_amdhsa_kernel
""")
    return "\n".join(E.out)

if __name__ == "__main__":
    ap = argparse.ArgumentParser()
    ap.add_argument("-o", default="a16.s")
    ap.add_argument("kv", nargs="*")
    a = ap.parse_args()
    cfg = {}
    for kv in a.kv:
        k, v = kv.split("=", 1)
        try: cfg[k] = eval(v)
        except Exception: cfg[k] = v
    txt = build(cfg)
    open(a.o, "w").write(txt)
```

```python
import sys, math, struct, argparse

def f2u(x):
    return struct.unpack("<I", struct.pack("<f", x))[0]

def V(lo, n=1): return {("v", lo + i) for i in range(n)}
def Ac(lo, n=1): return {("a", lo + i) for i in range(n)}
def vr(lo, n): return f"v[{lo}:{lo+n-1}]"
def ar(lo, n): return f"a[{lo}:{lo+n-1}]"

class Ins:
    def __init__(s, text, kind, rd=(), wr=(), cost=4, after=-1, before=1 << 30, tag=None, rdc=()):
        s.text, s.kind, s.rd, s.wr, s.cost = text, kind, set(rd), set(wr), cost
        s.after, s.before, s.tag, s.rdc = after, before, tag, set(rdc)

class Emitter:
    def __init__(s):
        s.out = []; s.pos = 0
        s.dsq = []
        s.vmq = []
        s.lastw = {}
        s.lastc = {}
        s.lastst = {}
        s.nops = 0
        s.maxds = 0
    def raw(s, text, n=1):
        s.out.append("    " + text); s.pos += n
    def label(s, l): s.out.append(l + ":")
    def comment(s, c): s.out.append("    ; " + c)
    def need_nops(s, i):
        need = 0
        def req(p, d):
            nonlocal need
            need = max(need, d - (s.pos - p - 1))
        for r in i.rd | i.wr:
            if r in s.lastw:
                k, p = s.lastw[r]
                if k == "mfma":
                    if i.kind == "mfma":
                        if r in i.rd and r not in i.rdc: req(p, 12)
                    else:
                        req(p, 12)
                if r in i.rd:
                    if k in ("valu", "trans") and i.kind == "mfma": req(p, 2)
                    if k == "trans" and i.kind in ("valu", "trans", "perm", "vmem", "ds"): req(p, 1)
                    if k in ("valu", "trans") and i.kind == "perm": req(p, 2)
                    if k == "salu" and r == ("s", "m0") and i.kind == "vmem": req(p, 1)
        if i.kind in ("valu", "trans", "perm"):
            for r in i.wr:
                if r in s.lastc: req(s.lastc[r], 7)
                if r in s.lastst: req(s.lastst[r], 2)
        return need
    def ds_wait_needed(s, i):
        idx = -1
        for k, d in enumerate(s.dsq):
            if d & (i.rd | i.wr): idx = k
        return idx
    def emit(s, i):
        idx = s.ds_wait_needed(i)
        if idx >= 0:
            n = len(s.dsq) - idx - 1
            assert n <= 15
            s.raw(f"s_waitcnt lgkmcnt({n})")
            s.dsq = s.dsq[idx + 1:]
        n = s.need_nops(i)
        if n > 0:
            s.nops += n
            while n > 0:
                k = min(n, 16); s.raw(f"s_nop {k-1}", k); n -= k
        if not (getattr(s, "skip", None) and s.skip(i)):
            s.out.append("    " + i.text)
        p = s.pos; s.pos += 1
        kind = "valu" if i.kind == "perm" else i.kind
        for r in i.wr: s.lastw[r] = (kind, p)
        if i.kind == "mfma":
            for r in i.rdc: s.lastc[r] = p
        if i.kind == "ds":
            s.dsq.append(set(i.wr)); s.maxds = max(s.maxds, len(s.dsq))
            assert len(s.dsq) <= 15, "too many outstanding ds"
        if i.kind == "vmem":
            s.vmq.append(i.tag)
            if i.tag == "store":
                for r in i.rd: s.lastst[r] = p
    def wait_vm(s, tags):
        idx = -1
        for k, t in enumerate(s.vmq):
            if t in tags: idx = k
        for t in tags:
            assert s.vmq.count(t) == 4, f"tile {t} not fully issued before its wait ({s.vmq.count(t)})"
        n = min(63, len(s.vmq) - idx - 1)
        s.raw(f"s_waitcnt vmcnt({n})")

vLANE = 1
vX = 2
vWQ = 6
vWT = 10
vK = 11
vV = 13
vWO = 14
vS = [15, 125, 127, 0]
aX = 16
aWQ = 20
aK = 24
PVACC = [32, 64]
SACC = [64, 80]
NEGM = 96
aWO = 112
aWT = 114
aV = 116
vL = 118; vMX = 119; vT0 = 120; vT1 = 121; vRINV = 122; vT2 = 123; vT3 = 124; vT4 = 125; vL2 = 126
QACC = 128
PREG = 128
OUTACC = [128, 160]
AQ = 0; AO = 64; AXF = 64; AFR = 176; NFR = 8
sSRD_X, sSRD_WQ, sSRD_K, sSRD_V, sSRD_WO, sSRD_WS = 16, 20, 24, 28, 32, 36
sLINK = 40; sWB = 42; sOFF = 43; sC = 44; sT = 45; sW = 3; sPAR = 46
sSTAMP = 50
def srd(n): return f"s[{n}:{n+3}]"

NSLOT = 10
SLOT = 16384

def build(cfg):
    D = cfg.get("D", 4)
    BUD = cfg.get("budget", 24)
    stamps = cfg.get("stamps", [])
    ntKV = "nt" if cfg.get("ntkv", 1) else ""
    ntW = "nt" if cfg.get("ntw", 0) else ""
    ntX = "nt" if cfg.get("ntx", 0) else ""
    stfl = cfg.get("stfl", "sc1")
    E = Emitter()
    R = E.raw

    steps = [("WQ", t) for t in range(10)] + [("WT", q) for q in range(4)] + [("K", i) for i in range(16)] \
          + [("V", q, kt) for q in range(4) for kt in range(4)] + [("WO", p, kh) for p in range(7) for kh in range(2)]
    NS = len(steps)
    vis = {}; rel = {}
    for s_, t in enumerate(steps):
        vis[t] = s_ - 1
        rel[t] = s_ + 1
    for j in range(7):
        vis[("X", j)] = min(2 * j - 1, 9)
        rel[("X", j)] = min(2 * j, 10)
    order = cfg.get("order")
    if order is None:
        kearly = cfg.get("kearly", 3)
        xw = []
        for j in range(5):
            xw += [("X", j), ("WQ", 2 * j), ("WQ", 2 * j + 1)]
        xw += [("X", 5), ("X", 6)] + [("WT", q) for q in range(4)]
        first = NSLOT - kearly
        order = xw[:first] + [("K", i) for i in range(kearly)] + xw[first:] + [("K", i) for i in range(kearly, 16)] \
              + [t for t in steps if t[0] in ("V", "WO")]
    assert sorted(map(str, order)) == sorted(map(str, list(steps) + [("X", j) for j in range(7)]))
    slot_of = {}; issue_at = {}
    free = list(range(NSLOT)); qi = 0
    held = {}
    for bar in range(-2, NS):
        if bar >= -1:
            for t, sl in list(held.items()):
                if rel[t] <= bar:
                    free.append(sl); del held[t]
        free.sort()
        while free and qi < len(order):
            t = order[qi]; qi += 1
            sl = free.pop(0); slot_of[t] = sl; held[t] = sl; issue_at[t] = bar
    for t in order:
        assert issue_at[t] < vis[t], f"tile {t} issued at {issue_at[t]} but needed at {vis[t]}"
    if cfg.get("verbose"):
        for t in order: print(t, "slot", slot_of[t], "issue", issue_at[t], "vis", vis[t], file=sys.stderr)

    M0 = {("s", "m0")}
    def dma_tile(t):
        L = []
        sl = slot_of[t]
        L.append(Ins(f"s_add_u32 m0, s{sWB}, {sl*SLOT}", "salu", wr=M0))
        def smov(val):
            L.append(Ins(f"s_mov_b32 s{sOFF}, {val}", "salu"))
        def ld(vreg, sr, j, fl):
            L.append(Ins(f"buffer_load_dwordx4 v{vreg}, {srd(sr)}, s{sOFF} offen offset:{j*1024} {fl} lds".replace("  ", " "),
                         "vmem", rd=M0 | V(vreg), tag=t, cost=cfg.get("dmacost", 4)))
        k = t[0]
        if k == "X":
            smov(128 * t[1])
            for j in range(4): ld(vX + j, sSRD_X, j, ntX)
        elif k == "WQ":
            smov(t[1] * 32 * 8192)
            for j in range(4): ld(vWQ + j, sSRD_WQ, j, ntW)
        elif k == "WT":
            for j in range(4):
                smov(320 * 8192 + t[1] * 128 + j * (8 * 8192 - 1024)); ld(vWT, sSRD_WQ, j, ntW)
        elif k == "K":
            smov(t[1] * 16384)
            for j in range(4): ld(vK + (j & 1), sSRD_K, j, ntKV)
        elif k == "V":
            smov(t[2] * 65536 + t[1] * 128)
            for j in range(4): ld(vV, sSRD_V, j, ntKV)
        elif k == "WO":
            for j in range(4):
                smov(t[2] * 128 * 896 + t[1] * 128 + j * (8 * 896 - 1024)); ld(vWO, sSRD_WO, j, ntW)
        return L

    win = {}
    pend = []
    def ds_read(kind, dst_lo, n, areg, byteoff):
        L = []
        wneed = byteoff >> 16
        cur = win.get(areg, 0)
        if cur != wneed:
            d = (wneed - cur) * 65536
            L.append(Ins(f"v_add_u32 v{areg}, {d & 0xffffffff:#x}, v{areg}", "valu", rd=V(areg), wr=V(areg)))
            win[areg] = wneed
        L.append(Ins(f"{kind} {ar(dst_lo, n)}, v{areg} offset:{byteoff & 0xffff}", "ds", rd=V(areg), wr=Ac(dst_lo, n) | {("slot", byteoff // SLOT, len(pend))}))
        pend.append(0)
        return L

    def frag_reads(i):
        s_, g = divmod(i, 16)
        t = steps[s_]; base = slot_of[t] * SLOT
        fr = AFR + 4 * (i % NFR)
        k = t[0]
        if k == "K":
            return ds_read("ds_read_b128", fr, 4, aK + (g & 7), base + (g >> 3) * 256)
        L = []
        for e in range(2):
            if k == "WQ":
                ks, mt = g >> 3, g & 7
                a_, off = aWQ + (mt & 3), ks * 8192 + e * 2048 + (mt >> 2) * 256
            elif k == "WT":
                a_, off = aWT + (g & 1), (g >> 1) * 2048 + e * 512
            elif k == "V":
                a_, off = aV + (g & 1), (g >> 1) * 2048 + e * 1024
            else:
                a_, off = aWO + (g & 1), (g >> 1) * 2048 + e * 1024
            L += ds_read("ds_read_b64_tr_b16", fr + 2 * e, 2, a_, base + off)
        return L

    def mfma(i):
        s_, g = divmod(i, 16)
        t = steps[s_]; k = t[0]
        fr = AFR + 4 * (i % NFR)
        czero = False; cneg = False
        if k == "WQ":
            ks, mt = g >> 3, g & 7
            kap = 2 * t[1] + ks
            acc = QACC + 16 * mt; B = ("a", AXF + 4 * kap); czero = kap == 0
        elif k == "WT":
            kap = 20 + (g >> 1)
            acc = QACC + 16 * (2 * t[1] + (g & 1)); B = ("a", AXF + 4 * kap)
        elif k == "K":
            acc = SACC[t[1] & 1]; B = ("a", AQ + 4 * g)
            if g == 0:
                if t[1] < 2: czero = True
                else: cneg = True
        elif k == "V":
            acc = PVACC[t[1] & 1] + 16 * (g & 1); B = ("v", PREG + 4 * (8 * t[2] + (g >> 1)))
            czero = t[2] == 0 and (g >> 1) == 0
        else:
            acc = OUTACC[t[1] & 1] + 16 * (g & 1); B = ("a", AO + 4 * (8 * t[2] + (g >> 1)))
            czero = t[2] == 0 and (g >> 1) == 0
        Bt = ar(B[1], 4) if B[0] == "a" else vr(B[1], 4)
        Bs = Ac(B[1], 4) if B[0] == "a" else V(B[1], 4)
        if czero: Ct, Cs = "0", set()
        elif cneg: Ct, Cs = vr(NEGM, 16), V(NEGM, 16)
        else: Ct, Cs = vr(acc, 16), V(acc, 16)
        return Ins(f"v_mfma_f32_32x32x16_bf16 {vr(acc,16)}, {ar(fr,4)}, {Bt}, {Ct}", "mfma",
                   rd=Ac(fr, 4) | Bs | Cs, wr=V(acc, 16), rdc=Cs, cost=8)

    def valu(text, rd, wr, after, before, kind="valu", cost=4):
        return Ins(text, kind, rd=rd, wr=wr, after=after, before=before, cost=cost)
    streams = []
    stubs = []
    S0 = 14 * 16; P0 = 30 * 16; O0 = 46 * 16; END = 60 * 16
    L = []
    for q in range(4):
        aft = (10 + q) * 16 + 15
        for m in range(2):
            T = 2 * q + m
            for t in range(2):
                ts = 2 * T + t
                bef = S0 + ts
                r0 = QACC + 16 * T + 8 * t
                for r in range(r0, r0 + 8):
                    L.append(valu(f"v_mul_f32 v{r}, s{sC}, v{r}", V(r), V(r), aft, bef))
                for io in range(4):
                    r = r0 + 2 * io
                    L.append(valu(f"v_cvt_pk_bf16_f32 v{r}, v{r}, v{r+1}", V(r, 2), V(r), aft, bef))
                for io in range(4):
                    r = r0 + 2 * io
                    L.append(valu(f"v_accvgpr_write_b32 a{AQ+4*ts+io}, v{r}", V(r), Ac(AQ + 4 * ts + io), aft, bef))
    streams.append(L)
    L = []
    for i in range(16):
        acc = SACC[i & 1]
        aft = (14 + i) * 16 + 15
        bef = min((16 + i) * 16, P0 + 16 * 3) if i < 14 else P0 + 16 * 3
        if i >= 14: bef = P0 + 48 + 2 * (2 * (i - 12))
        def mx(first):
            L.append(valu(f"v_max3_f32 v{vMX}, v{acc}, v{acc+1}, v{acc+2}", V(acc, 3), V(vMX), aft, bef))
            L.append(valu(f"v_max3_f32 v{vT2}, v{acc+3}, v{acc+4}, v{acc+5}", V(acc+3, 3), V(vT2), aft, bef))
            L.append(valu(f"v_max3_f32 v{vT3}, v{acc+6}, v{acc+7}, v{acc+8}", V(acc+6, 3), V(vT3), aft, bef))
            L.append(valu(f"v_max3_f32 v{vMX}, v{vMX}, v{acc+9}, v{acc+10}", V(vMX) | V(acc+9, 2), V(vMX), aft, bef))
            L.append(valu(f"v_max3_f32 v{vT2}, v{vT2}, v{acc+11}, v{acc+12}", V(vT2) | V(acc+11, 2), V(vT2), aft, bef))
            L.append(valu(f"v_max3_f32 v{vT3}, v{vT3}, v{acc+13}, v{acc+14}", V(vT3) | V(acc+13, 2), V(vT3), aft, bef))
            L.append(valu(f"v_max_f32 v{vMX}, v{vMX}, v{acc+15}", V(vMX) | V(acc + 15), V(vMX), aft, bef))
            L.append(valu(f"v_max3_f32 v{vMX}, v{vMX}, v{vT2}, v{vT3}", V(vMX) | V(vT2) | V(vT3), V(vMX), aft, bef))
        if i == 0:
            b2 = 16 * 16
            mx(True)
            L.append(valu(f"v_mov_b32 v{vT0}, v{vMX}", V(vMX), V(vT0), aft, b2))
            L.append(valu(f"v_mov_b32 v{vL}, 0", set(), V(vL), aft, b2))
            L.append(valu(f"v_mov_b32 v{vL2}, 0", set(), V(vL2), aft, b2))
            L.append(valu(f"v_permlane32_swap_b32 v{vMX}, v{vT0}", V(vMX) | V(vT0), V(vMX) | V(vT0), aft, b2, kind="perm"))
            L.append(valu(f"v_max_f32 v{vMX}, v{vMX}, v{vT0}", V(vMX) | V(vT0), V(vMX), aft, b2))
            L.append(valu(f"v_sub_f32 v{NEGM}, 0, v{vMX}", V(vMX), V(NEGM), aft, b2))
            for r in range(1, 16):
                L.append(valu(f"v_sub_f32 v{NEGM+r}, 0, v{vMX}", V(vMX), V(NEGM + r), aft, b2))
        if i < 2:
            for r in range(16):
                L.append(valu(f"v_add_f32 v{acc+r}, v{acc+r}, v{NEGM}", V(acc + r) | V(NEGM), V(acc + r), aft, bef))
        if i >= 1:
            mx(False)
            L.append(valu(f"v_cmp_lt_f32 vcc, s{sT}, v{vMX}", V(vMX), set(), aft, bef))
            L.append(Ins(f"s_cbranch_vccnz LF_stub{i}\nLF_ret{i}:", "salu", after=aft, before=bef))
            stubs.append(i)
        def ex(r): L.append(valu(f"v_exp_f32 v{acc+r}, v{acc+r}", V(acc + r), V(acc + r), aft, bef, kind="trans", cost=8))
        def ad(r):
            l = vL if r % 2 == 0 else vL2
            L.append(valu(f"v_add_f32 v{l}, v{l}, v{acc+r}", V(l) | V(acc + r), V(l), aft, bef))
        def cv(r): L.append(valu(f"v_cvt_pk_bf16_f32 v{PREG+8*i+r//2}, v{acc+r}, v{acc+r+1}", V(acc + r, 2), V(PREG + 8 * i + r // 2), aft, bef))
        for r in range(16 + 3):
            if r < 16: ex(r)
            if 2 <= r < 18: ad(r - 2)
            if r >= 3 and (r - 3) % 2 == 0 and r - 3 < 16: cv(r - 3)
    bef = P0 + 64
    aft = P0
    L.append(valu(f"v_add_f32 v{vL}, v{vL}, v{vL2}", V(vL) | V(vL2), V(vL), aft, bef))
    L.append(valu(f"v_mov_b32 v{vT0}, v{vL}", V(vL), V(vT0), aft, bef))
    L.append(valu(f"v_permlane32_swap_b32 v{vL}, v{vT0}", V(vL) | V(vT0), V(vL) | V(vT0), aft, bef, kind="perm"))
    L.append(valu(f"v_add_f32 v{vL}, v{vL}, v{vT0}", V(vL) | V(vT0), V(vL), aft, bef))
    L.append(valu(f"v_rcp_f32 v{vRINV}, v{vL}", V(vL), V(vRINV), aft, bef, kind="trans", cost=8))
    for q in range(4):
        aft = (30 + 4 * q + 3) * 16 + 15
        for m in range(2):
            for t in range(2):
                ko = 4 * q + 2 * m + t
                bef = O0 + (2 * ko if ko < 8 else 16 + 2 * (ko - 8))
                if q < 2: bef = min(bef, (30 + 4 * (q + 2)) * 16)
                r0 = PVACC[q & 1] + 16 * m + 8 * t
                for r in range(r0, r0 + 8):
                    L.append(valu(f"v_mul_f32 v{r}, v{vRINV}, v{r}", V(r) | V(vRINV), V(r), aft, bef))
                for io in range(4):
                    r = r0 + 2 * io
                    L.append(valu(f"v_cvt_pk_bf16_f32 v{r}, v{r}, v{r+1}", V(r, 2), V(r), aft, bef))
                for io in range(4):
                    r = r0 + 2 * io
                    L.append(valu(f"v_accvgpr_write_b32 a{AO+4*ko+io}, v{r}", V(r), Ac(AO + 4 * ko + io), aft, bef))
    for p in range(7):
        aft = (46 + 2 * p + 1) * 16 + 15
        bef = (46 + 2 * (p + 2)) * 16 if p < 5 else 1 << 30
        for m in range(2):
            L.append(Ins(f"s_mov_b32 s{sPAR+1}, {m*50176 + p*3584}", "salu", after=aft, before=bef))
            for u in range(2):
                r = OUTACC[p & 1] + 16 * m + 8 * u
                d = r
                for io in range(4):
                    L.append(valu(f"v_cvt_pk_bf16_f32 v{d+io}, v{r+2*io}, v{r+2*io+1}", V(r + 2 * io, 2), V(d + io), aft, bef))
                for z in range(2):
                    L.append(Ins(f"buffer_store_dwordx2 {vr(d+2*z,2)}, v{vS[2*u+z]}, {srd(sSRD_WS)}, s{sPAR+1} offen sc1",
                                 "vmem", rd=V(d + 2 * z, 2) | V(vS[2 * u + z]), tag="store", after=aft, before=bef, cost=8))
    streams.append(L)

    R("s_load_dwordx2 s[68:69], s[0:1], 8")
    t0, t1, t2, t3, t4, t5 = 32, 33, 34, 35, 36, 37
    vA, vP8, vB2, vP32, vG4, vW = 38, 39, 40, 41, 42, 43
    R(f"v_lshrrev_b32 v{vW}, 6, v0")
    R(f"v_and_b32 v{vLANE}, 63, v0")
    R(f"v_readfirstlane_b32 s{sW}, v{vW}")
    R(f"v_lshrrev_b32 v{vA}, 3, v{vLANE}")
    R(f"v_and_b32 v{vP8}, 7, v{vLANE}")
    R(f"v_lshrrev_b32 v{vB2}, 5, v{vLANE}")
    R(f"v_and_b32 v{vP32}, 31, v{vLANE}")
    R(f"v_lshrrev_b32 v{vG4}, 4, v{vLANE}")
    R(f"s_lshl_b32 s{sWB}, s{sW}, 12")
    R(f"v_lshl_add_u32 v{t0}, v{vW}, 5, v{vA}")
    R(f"v_mul_u32_u24 v{t1}, 896, v{t0}")
    R(f"v_xor_b32 v{t2}, v{vP8}, v{vG4}")
    R(f"v_lshlrev_b32 v{t2}, 4, v{t2}")
    R(f"v_xor_b32 v{t3}, 64, v{t2}")
    R(f"v_add_u32 v{vX}, v{t1}, v{t2}")
    R(f"v_add_u32 v{vX+1}, v{t1}, v{t3}")
    R(f"v_add_u32 v{vX+2}, {2*6144}, v{vX}")
    R(f"v_add_u32 v{vX+3}, {3*6144}, v{vX+1}")
    R(f"v_add_u32 v{vX+1}, {6144}, v{vX+1}")
    R(f"v_lshl_add_u32 v{t4}, v{vW}, 3, v{vB2}")
    R(f"v_lshlrev_b32 v{t2}, 2, v{vB2}")
    R(f"v_xor_b32 v{t2}, v{vP32}, v{t2}")
    R(f"v_lshlrev_b32 v{t2}, 4, v{t2}")
    R(f"v_xor_b32 v{t3}, 128, v{t2}")
    R(f"v_lshl_add_u32 v{vWQ}, v{t4}, 13, v{t2}")
    R(f"v_lshl_add_u32 v{vWQ+1}, v{t4}, 13, v{t3}")
    R(f"v_add_u32 v{vWQ+2}, {2*15360}, v{vWQ}")
    R(f"v_add_u32 v{vWQ+3}, {3*15360}, v{vWQ+1}")
    R(f"v_add_u32 v{vWQ+1}, {15360}, v{vWQ+1}")
    R(f"v_lshl_add_u32 v{t2}, v{vW}, 1, v{vB2}")
    R(f"v_xor_b32 v{t2}, v{vP32}, v{t2}")
    R(f"v_lshlrev_b32 v{t2}, 4, v{t2}")
    R(f"v_xor_b32 v{t3}, 128, v{t2}")
    R(f"v_lshl_add_u32 v{vK}, v{t4}, 9, v{t2}")
    R(f"v_lshl_add_u32 v{vK+1}, v{t4}, 9, v{t3}")
    R("s_waitcnt lgkmcnt(0)")
    SB, SH = cfg["sB"], cfg["sH"]
    R(f"s_lshl_b32 s70, s{SB}, 3"); R(f"s_lshr_b32 s71, s{SH}, 1"); R("s_add_u32 s70, s70, s71"); R("s_lshl_b32 s70, s70, 18")
    R(f"s_add_u32 s{sSRD_K}, s68, s70"); R(f"s_addc_u32 s{sSRD_K+1}, s69, 0")
    R(f"s_mov_b32 s{sSRD_K+2}, 262144"); R(f"s_mov_b32 s{sSRD_K+3}, 0x20000")
    R(f"v_and_b32 v{t2}, 1, v{vG4}")
    R(f"v_lshlrev_b32 v{t2}, 2, v{t2}")
    R(f"v_xor_b32 v{t2}, v{vP8}, v{t2}")
    R(f"v_lshlrev_b32 v{t5}, 4, v{t2}")
    R(f"v_lshl_add_u32 v{vWT}, v{t0}, 13, v{t5}")
    pro = [t for t in order if issue_at[t] == -2]
    npro = cfg.get("npro", 3)
    for t in pro[:npro]:
        for i in dma_tile(t): E.emit(i)
    R(f"s_lshl_b32 s70, s{SB}, 4"); R(f"s_add_u32 s70, s70, s{SH}"); R("s_mul_i32 s70, s70, 100352")
    R(f"s_add_u32 s{sSRD_WS}, s6, s70"); R(f"s_addc_u32 s{sSRD_WS+1}, s7, 0")
    R(f"s_mov_b32 s{sSRD_WS+2}, 100352"); R(f"s_mov_b32 s{sSRD_WS+3}, 0x20000")
    R(f"s_mov_b32 s{sC}, {f2u(math.log2(math.e) / 16.0):#x}")
    R(f"s_mov_b32 s{sT}, {f2u(cfg.get('T', 20.0)):#x}")
    R(f"v_add_u32 v{vWO}, v{t1}, v{t5}")
    R(f"v_and_b32 v{t2}, 1, v{vA}")
    R(f"v_lshl_add_u32 v{t2}, v{vG4}, 3, v{t2}")
    R(f"v_lshl_add_u32 v{t2}, v{vW}, 5, v{t2}")
    R(f"v_lshl_add_u32 v{vV}, v{t2}, 9, v{t5}")
    R(f"v_and_b32 v{t2}, 15, v{vLANE}"); R(f"v_and_b32 v{t3}, 1, v{vG4}")
    R(f"v_mul_u32_u24 v{vS[0]}, 25088, v{vB2}")
    R(f"s_cmp_eq_u32 s{sW}, 3")
    R("s_cbranch_scc1 LF_w3")
    R(f"v_lshl_add_u32 v{vS[0]}, v{t2}, 4, v{vS[0]}"); R(f"v_lshl_add_u32 v{vS[0]}, v{t3}, 3, v{vS[0]}")
    R(f"v_lshl_add_u32 v{vS[0]}, v{vW}, 10, v{vS[0]}")
    R("s_mov_b32 s70, 256")
    R("s_branch LF_wj")
    E.label("LF_w3")
    R(f"v_lshl_add_u32 v{vS[0]}, v{t2}, 3, v{vS[0]}"); R(f"v_add_u32 v{vS[0]}, 3072, v{vS[0]}")
    R(f"v_lshl_add_u32 v{vS[0]}, v{t3}, 30, v{vS[0]}")
    R("s_mov_b32 s70, 128")
    E.label("LF_wj")
    for g in range(1, 4): R(f"v_add_u32 v{vS[g]}, s70, v{vS[g-1]}")
    R(f"v_bfe_u32 v{t2}, v{vLANE}, 1, 3")
    R(f"v_xor_b32 v{t2}, v{t2}, v{vB2}")
    R(f"v_lshlrev_b32 v{t2}, 4, v{t2}")
    R(f"v_lshl_add_u32 v{t2}, v{vP32}, 7, v{t2}")
    R(f"v_lshl_add_u32 v{aX}, v{vW}, 12, v{t2}")
    for s_ in range(1, 4): R(f"v_xor_b32 v{aX+s_}, {32*s_}, v{aX}")
    vR, vC4, vG1, vSW = 44, 45, 46, 47
    R(f"v_bfe_u32 v{vR}, v{vLANE}, 2, 2")
    R(f"v_and_b32 v{vC4}, 3, v{vLANE}")
    R(f"v_and_b32 v{vG1}, 1, v{vG4}")
    R(f"v_and_b32 v{t2}, 1, v{vC4}")
    R(f"v_lshrrev_b32 v{t3}, 1, v{vC4}")
    R(f"v_lshl_add_u32 v{vSW}, v{t2}, 1, v{t3}")
    R(f"v_lshl_add_u32 v{vSW}, v{vG1}, 2, v{vSW}")
    R(f"v_lshlrev_b32 v{vSW}, 3, v{vSW}")
    R(f"v_lshl_add_u32 v{t4}, v{vB2}, 3, v{vR}")
    R(f"v_lshl_add_u32 v{t0}, v{t4}, 9, v{vSW}")
    R(f"v_lshl_add_u32 v{aWQ}, v{vR}, 6, v{t0}")
    for m in range(1, 4): R(f"v_xor_b32 v{aWQ+m}, {64*m}, v{aWQ}")
    R(f"v_lshrrev_b32 v{t1}, 1, v{vR}")
    R(f"v_lshl_add_u32 v{t0}, v{t4}, 7, v{vSW}")
    R(f"v_lshl_add_u32 v{aWT}, v{t1}, 6, v{t0}")
    R(f"v_xor_b32 v{aWT+1}, 64, v{aWT}")
    R(f"v_lshl_add_u32 v{t4}, v{vB2}, 2, v{vR}")
    R(f"v_lshlrev_b32 v{t4}, 7, v{t4}")
    R(f"v_lshl_add_u32 v{t4}, v{t1}, 6, v{t4}")
    R(f"v_lshl_add_u32 v{t0}, v{vG1}, 2, v{vC4}")
    R(f"v_lshl_add_u32 v{aV}, v{t0}, 3, v{t4}")
    R(f"v_xor_b32 v{aV+1}, 64, v{aV}")
    R(f"v_lshl_add_u32 v{t0}, v{vG1}, 1, v{t3}")
    R(f"v_lshl_add_u32 v{t0}, v{t2}, 2, v{t0}")
    R(f"v_lshl_add_u32 v{aWO}, v{t0}, 3, v{t4}")
    R(f"v_xor_b32 v{aWO+1}, 64, v{aWO}")
    R(f"v_bfe_u32 v{t0}, v{vLANE}, 1, 2")
    R(f"v_bfe_u32 v{t1}, v{vLANE}, 3, 2")
    R(f"v_and_b32 v{t2}, 1, v{vLANE}")
    R(f"v_lshl_add_u32 v{t2}, v{t1}, 1, v{t2}")
    R(f"v_lshl_add_u32 v{t2}, v{t0}, 3, v{t2}")
    R(f"v_and_b32 v{t3}, 15, v{vLANE}")
    R(f"v_xor_b32 v{t3}, v{t3}, v{vB2}")
    R(f"v_lshlrev_b32 v{t3}, 4, v{t3}")
    R(f"v_lshl_add_u32 v{aK}, v{t2}, 9, v{t3}")
    for e in range(1, 8): R(f"v_xor_b32 v{aK+e}, {32*e}, v{aK}")

    def xreads(j):
        L = []
        for s_ in range(4):
            L.append(("xread", j, s_))
        return L
    def barrier(bi):
        tags = [t for t in order if vis[t] == bi]
        for t in order:
            if rel[t] == bi:
                for d in E.dsq:
                    assert not any(r[0] == "slot" and r[1] == slot_of[t] for r in d), f"release of {t} with reads outstanding"
                assert not any(("X", x[0]) == t for x in xq), f"release of {t} with x reads pending"
        if tags and not (cfg.get("novmw") and bi >= 0): E.wait_vm(tags)
        if not (cfg.get("nobar") and bi >= 0): R("s_barrier")
    stamp_n = [1]
    def stamp():
        k = stamp_n[0]; stamp_n[0] += 1
        R(f"s_memtime s[{sSTAMP+2*k}:{sSTAMP+2*k+1}]")

    dmaq = []; xq = []
    npro2 = cfg.get("npro2", 5)
    for t in pro[npro:npro2]:
        for i in dma_tile(t): E.emit(i)
    for t in pro[npro2:]: dmaq += dma_tile(t)
    barrier(-1)
    if stamps: stamp()
    for t in order:
        if issue_at[t] == -1: dmaq += dma_tile(t)
    for i in ds_read("ds_read_b128", AXF, 4, aX, slot_of[("X", 0)] * SLOT): E.emit(i)
    for i in range(D):
        for x in frag_reads(i): E.emit(x)
    xq += [(0, 1, 6), (0, 2, 9), (0, 3, 9)]

    def skipf(i):
        if cfg.get("nodma") and i.kind == "vmem" and i.tag != "store": return True
        if cfg.get("nost") and i.tag == "store": return True
        if cfg.get("novalu") and i.kind in ("valu", "trans", "perm") and "v_add_u32" not in i.text: return True
        return False
    E.skip = skipf
    over = 0
    lastdma = [-10]
    for i in range(END):
        s_, g = divmod(i, 16)
        if g == 0:
            E.comment(f"---- step {s_} {steps[s_]} slot {slot_of[steps[s_]]}")
            if s_ in stamps: stamp()
            if s_ == cfg.get("tlbstep", -1):
                R(f"v_lshlrev_b32 v127, 12, v{vLANE}")
                if cfg.get("tlbst"):
                    E.emit(Ins(f"buffer_store_dword v127, v127, {srd(sSRD_WS)}, 0 offen {stfl}", "vmem", tag="pf"))
                else:
                    E.emit(Ins(f"buffer_load_dword v127, v127, {srd(sSRD_WS)}, 0 offen", "vmem", tag="pf"))
        for st in streams:
            k = 0
            for kk, x in enumerate(st):
                if x.before <= i: k = kk + 1
                if kk > 400: break
            for x in st[:k]:
                E.emit(x); over += x.cost
            del st[:k]
        while xq and xq[0][2] <= i:
            j, s2_, _ = xq.pop(0)
            for x in ds_read("ds_read_b128", AXF + 16 * j + 4 * s2_, 4, aX + s2_, slot_of[("X", j)] * SLOT): E.emit(x)
        E.emit(mfma(i))
        bud = BUD
        if g == 16 - D and s_ < NS - 1:
            need = {t for t in order if vis[t] <= s_}
            while any(x.tag in need for x in dmaq):
                x = dmaq.pop(0); E.emit(x); bud -= x.cost
            barrier(s_); bud -= cfg.get("barcost", 16)
            for t in order:
                if issue_at[t] == s_: dmaq += dma_tile(t)
            for j in range(1, 7):
                if vis[("X", j)] == s_:
                    for s2_ in range(4):
                        kap = 4 * j + s2_
                        need = (kap // 2) * 16 + (kap & 1) * 8 if kap < 20 else 160 + 2 * (kap - 20)
                        xq.append((j, s2_, need - 2))
        if i + D < END:
            for x in frag_reads(i + D): E.emit(x); bud -= x.cost
        if xq and bud >= 4 and len(E.dsq) < 14:
            j, s2_, _ = xq.pop(0)
            for x in ds_read("ds_read_b128", AXF + 16 * j + 4 * s2_, 4, aX + s2_, slot_of[("X", j)] * SLOT):
                E.emit(x); bud -= x.cost
        nq = sum(1 for x in dmaq if x.kind == "vmem")
        spacing = cfg.get("dmasp", 4) if nq <= 4 else 2
        if dmaq and i - lastdma[0] >= spacing and g != 16 - D:
            while dmaq:
                x = dmaq.pop(0); E.emit(x); bud -= x.cost
                if x.kind == "vmem": lastdma[0] = i; break
        for st in streams:
            while st and st[0].after <= i and st[0].cost <= bud and E.need_nops(st[0]) == 0:
                x = st.pop(0); E.emit(x); bud -= x.cost
    for st in streams:
        for x in st: E.emit(x)
    R("s_branch L_ftail")
    for i in stubs:
        E.label(f"LF_stub{i}")
        R(f"s_call_b64 s[{sLINK}:{sLINK+1}], LF_fix")
        R(f"s_branch LF_ret{i}")
    E.label("LF_fix")
    R("s_nop 15"); R("s_nop 15")
    R(f"v_mov_b32 v{vT0}, v{vMX}")
    R("s_nop 1")
    R(f"v_permlane32_swap_b32 v{vMX}, v{vT0}")
    R(f"v_max3_f32 v{vMX}, v{vMX}, v{vT0}, 0")
    R(f"v_ceil_f32 v{vMX}, v{vMX}")
    R(f"v_sub_f32 v{vT1}, 0, v{vMX}")
    R(f"v_exp_f32 v{vT1}, v{vT1}")
    for r in range(SACC[0], NEGM + 16):
        R(f"v_sub_f32 v{r}, v{r}, v{vMX}")
    R(f"v_mul_f32 v{vL}, v{vL}, v{vT1}")
    R(f"v_mul_f32 v{vL2}, v{vL2}, v{vT1}")
    for r in range(PVACC[0], PVACC[0] + 32):
        R(f"v_mul_f32 v{r}, v{r}, v{vT1}")
    for r in range(PREG, PREG + 128):
        R(f"v_lshlrev_b32 v{vT2}, 16, v{r}")
        R(f"v_and_b32 v{vT3}, 0xffff0000, v{r}")
        R(f"v_mul_f32 v{vT2}, v{vT2}, v{vT1}")
        R(f"v_mul_f32 v{vT3}, v{vT3}, v{vT1}")
        R(f"v_cvt_pk_bf16_f32 v{r}, v{vT2}, v{vT3}")
    R("s_nop 1")
    R(f"s_setpc_b64 s[{sLINK}:{sLINK+1}]")
    print(f"fallback: nops inserted {E.nops}, forced cost {over}, max ds outstanding {E.maxds}, instrs {E.pos}", file=sys.stderr)

    return E.out
```

```python
import sys, math, struct, argparse

def f2u(x): return struct.unpack("<I", struct.pack("<f", x))[0]
def V(lo, n=1): return {("v", lo + i) for i in range(n)}
def Ac(lo, n=1): return {("a", lo + i) for i in range(n)}
def vr(lo, n): return f"v[{lo}:{lo+n-1}]" if n > 1 else f"v{lo}"
def ar(lo, n): return f"a[{lo}:{lo+n-1}]"
INF = 1 << 30

class Ins:
    def __init__(s, text, kind, rd=(), wr=(), cost=4, after=-1, before=INF, tag=None, rdc=(), pre=None, res=None, passes=4):
        s.text, s.kind, s.rd, s.wr, s.cost = text, kind, set(rd), set(wr), cost
        s.after, s.before, s.tag, s.rdc = after, before, tag, set(rdc)
        s.pre = pre
        s.res = res
        s.passes = passes

class Emitter:
    def __init__(s):
        s.out = []; s.pos = 0
        s.dsq = []
        s.vmq = []
        s.lastw = {}; s.lastc = {}; s.lastst = {}
        s.nops = 0; s.skip = None
    def raw(s, text, n=1):
        s.out.append("    " + text); s.pos += n
    def label(s, l): s.out.append(l + ":")
    def comment(s, c): s.out.append("    ; " + c)
    def need_nops(s, i):
        need = 0
        def req(p, d):
            nonlocal need
            need = max(need, d - (s.pos - p - 1))
        for r in i.rd | i.wr:
            if r in s.lastw:
                k, p = s.lastw[r]
                if k == "mfma":
                    if i.kind == "mfma":
                        if r in i.rd and r not in i.rdc: req(p, 8)
                    else: req(p, 8)
                if r in i.rd:
                    if k in ("valu", "trans") and i.kind == "mfma": req(p, 2)
                    if k == "trans" and i.kind in ("valu", "trans", "perm", "vmem", "ds"): req(p, 1)
                    if k in ("valu", "trans") and i.kind == "perm": req(p, 2)
                    if k == "salu" and r == ("s", "m0") and i.kind == "vmem": req(p, 1)
        if i.kind in ("valu", "trans", "perm"):
            for r in i.wr:
                if r in s.lastc: req(s.lastc[r], 3)
                if r in s.lastst: req(s.lastst[r], 2)
        if i.kind == "mfma":
            for r in i.wr:
                if r in s.lastst: req(s.lastst[r], 2)
        return need
    def ds_idx(s, i):
        idx = -1
        for k, (d, _) in enumerate(s.dsq):
            if d & (i.rd | i.wr): idx = k
        return idx
    def wait_ds_idx(s, idx):
        n = len(s.dsq) - idx - 1
        if n > 15:
            idx += n - 15; n = 15
        s.raw(f"s_waitcnt lgkmcnt({n})")
        s.dsq = s.dsq[idx + 1:]
    def wait_ds_res(s, pred):
        idx = -1
        for k, (_, r) in enumerate(s.dsq):
            if r is not None and pred(r): idx = k
        if idx >= 0: s.wait_ds_idx(idx)
    def emit(s, i):
        idx = s.ds_idx(i)
        if idx >= 0: s.wait_ds_idx(idx)
        if i.kind == "ds" and len(s.dsq) >= 13: s.wait_ds_idx(len(s.dsq) - 1 - 9)
        n = s.need_nops(i)
        if n > 0:
            s.nops += n
            while n > 0:
                k = min(n, 16); s.raw(f"s_nop {k-1}", k); n -= k
        if not (s.skip and s.skip(i)): s.out.append("    " + i.text)
        p = s.pos; s.pos += 1
        kind = "valu" if i.kind == "perm" else i.kind
        for r in i.wr: s.lastw[r] = (kind, p)
        if i.kind == "mfma":
            for r in i.rdc: s.lastc[r] = p
        if i.kind == "ds": s.dsq.append((set(i.wr), i.res))
        if i.kind == "vmem":
            s.vmq.append(i.tag)
            if "buffer_store" in i.text:
                for r in i.rd: s.lastst[r] = p
    def wait_vm(s, tags, cnt=4):
        idx = -1
        for k, t in enumerate(s.vmq):
            if t in tags: idx = k
        for t in tags:
            assert s.vmq.count(t) == cnt, f"unit {t} not fully issued before its wait ({s.vmq.count(t)})"
        n = min(63, len(s.vmq) - idx - 1)
        if n < getattr(s, "vm_known", 1 << 30) + (len(s.vmq) - getattr(s, "vm_len", 0)):
            s.raw(f"s_waitcnt vmcnt({n})")
            s.vm_known = n; s.vm_len = len(s.vmq)

RING = 24576; NU = 6; UNIT = 4096
EB = 4 * RING
LB = EB + 57344
vLANE = 53
dK = 1
dV = 5
dWO = 9
vST = 10
vST2 = 5
rK = 12
rV = 16
rWO = 20
rE = 22
wP = 23
wO = 24
vL = 25
SACC = [32, 60]; PR = [88, 116]; OACC = 144
dX = 116
dWQ = 120
rX = 124
rWQ = 126
wQ = 130
AQ = 0
AK = 224
sSRD_X, sSRD_WQ, sSRD_K, sSRD_V, sSRD_WO, sSRD_WS = 16, 20, 24, 28, 32, 36
sRB = 42; sOFF = 43; sC = 44; sXB = 45; sW = 3; sST = 47
sSTAMP = 68
sSRD_FL, sSRD_FM, sSRD_PB, sSRD_OUT = 8, 12, 60, 64
sH = 56; sRO = 57; sBB = 58
FLOFF = 0x2000000
sSTO = 48
sPFO = 55
sW2K = 59
sSQ = 47; sSX = 51; sSTG = 41; sSTV = 55
vPFK = 11; vPFV = 11
def srd(n): return f"s[{n}:{n+3}]"
assert vL + 7 <= 32

def build(cfg):
    BUD = cfg.get("budget", 8)
    stamps = cfg.get("stamps", [])
    ntKV = "nt" if cfg.get("ntkv", 1) else ""
    ntW = "nt" if cfg.get("ntw", 0) else ""
    ntX = "nt" if cfg.get("ntx", 0) else ""
    stfl = cfg.get("stfl", "sc1")
    DMIN = cfg.get("dmin", 8)
    E = Emitter(); R = E.raw
    BL = 56
    Q0, S0, P0, O0, END = 0, 7 * BL, 15 * BL, 23 * BL, 30 * BL

    units = [("WQ", t) for t in range(14)] + [("K", i, h) for i in range(8) for h in range(2)] \
          + [("V", k) for k in range(16)] + [("WO", p, kh) for p in range(7) for kh in range(2)]
    uidx = {u: k for k, u in enumerate(units)}
    ESLOT = {8: 0, 9: 1, 10: 2, 11: 3}
    def uoff(u):
        if u[0] == "WO" and 2 * u[1] + u[2] >= 12: return ((uidx[u] - 10) % NU) * UNIT
        return (uidx[u] % NU) * UNIT
    rWOE = rK

    M = []
    def qa(j, ks, mt): return 32 * (j & 1) + 16 * ks + 4 * mt
    def qb(j, ks, nu): return 64 + 56 * (j & 1) + 28 * ks + 4 * nu
    def oacc(mt, nu): return OACC + 4 * (4 * nu + mt)
    first_use = {}; last_use = {}
    def use(name, i):
        first_use.setdefault(name, i); last_use[name] = i
    done_at = {}
    for j in range(7):
        for nu in range(7):
            for mt in range(4):
                for ks in range(2):
                    i = len(M)
                    M.append((oacc(mt, nu), qa(j, ks, mt), qb(j, ks, nu), j == 0 and ks == 0))
                    use(("QA", j, ks, mt), i); use(("QB", j, ks, nu), i); done_at[("Q", mt, nu)] = i
    def ka(step, k): return AK + 16 * (step & 1) + 4 * k
    SX = OACC + 112 - 28
    sbuf = [SACC[0], SACC[1], SX, SACC[0], SACC[1], SX, SACC[0], SACC[1]] if cfg.get("s3", 1) else [SACC[b & 1] for b in range(8)]
    for b in range(8):
        for h in range(2):
            for nu in range(7):
                for k in range(4):
                    i = len(M)
                    M.append((sbuf[b] + 4 * nu, ka(2 * b + h, k), AQ + 4 * ((4 * h + k) * 7 + nu), h == 0 and k == 0))
                    use(("SA", b, h, k), i); use(("SB", 4 * h + k, nu), i); done_at[("S", b, nu)] = i
                    use(("Sacc", b, nu), i)
    for j in range(8):
        for nu in range(7):
            for mt in range(4):
                for ks in range(2):
                    i = len(M)
                    M.append((oacc(mt, nu), qa(j, ks, mt), qb(j, ks, nu), j == 0 and ks == 0))
                    use(("VA", j, ks, mt), i); use(("VB", j, ks, nu), i); done_at[("O", mt, nu)] = i
    def oa(p, kap): return ("a", AK + 4 * kap) if p % 2 == 0 else ("v", PR[0] + 4 * kap)
    for p in range(7):
        for nu in range(7):
            for kap in range(8):
                i = len(M)
                M.append((SACC[p & 1] + 4 * nu, oa(p, kap), AQ + 4 * (kap * 7 + nu), kap == 0))
                use(("OA", p, kap >> 2, kap & 3), i); use(("OB", kap, nu), i); done_at[("Y", p, nu)] = i
                use(("Yacc", p, nu), i)
    assert len(M) == END
    def mfma(i):
        acc, a, b, cz = M[i]
        Cs = set() if cz else V(acc, 4)
        if not isinstance(a, tuple): a = ("a", a)
        at, as_ = (ar(a[1], 4), Ac(a[1], 4)) if a[0] == "a" else (vr(a[1], 4), V(a[1], 4))
        return Ins(f"v_mfma_f32_16x16x32_bf16 {vr(acc,4)}, {at}, {ar(b,4)}, {'0' if cz else vr(acc,4)}", "mfma",
                   rd=as_ | Ac(b, 4) | Cs, wr=V(acc, 4), rdc=Cs, cost=8)

    ev_done = set()
    events = {}
    def add_event(idx, name, fn): events.setdefault(idx, []).append((name, fn))
    def after_ev(*names): return lambda: all(n in ev_done for n in names)

    M0 = {("s", "m0")}
    reads_left = {}
    last_read = {}; now = [0]
    def res_idle(res):
        return reads_left.get(res, 0) == 0 and not any(r == res for _, r in E.dsq)

    def dma_unit(u, pre=None):
        L = []
        k = u[0]
        if k == "X":
            L.append(Ins(f"s_add_u32 m0, s{sXB}, {(u[1] % 4) * 16384}", "salu", wr=M0, pre=pre))
        elif k == "WO" and 2 * u[1] + u[2] in ESLOT:
            L.append(Ins(f"s_add_u32 m0, s{sXB}, {ESLOT[2 * u[1] + u[2]] * 16384}", "salu", wr=M0, pre=pre))
        else:
            L.append(Ins(f"s_add_u32 m0, s{sRB}, {uoff(u)}", "salu", wr=M0, pre=pre))
        def smov(val): L.append(Ins(f"s_mov_b32 s{sOFF}, {val}", "salu"))
        def sxor(val):
            if cfg.get("stag"): L.append(Ins(f"s_xor_b32 s{sOFF}, s{sSTG if k == 'K' else sSTV}, {val}", "salu"))
            else: smov(val)
        def ld(vreg, sr, j, fl):
            L.append(Ins(f"buffer_load_dwordx4 v{vreg}, {srd(sr)}, s{sOFF} offen offset:{j*1024} {fl} lds".replace("  ", " "),
                         "vmem", rd=M0 | V(vreg), tag=u, cost=8))
        if k == "X":
            smov(128 * u[1])
            for j in range(4): ld(dX + j, sSRD_X, j, ntX)
        elif k == "WQ":
            smov(u[1] * 32 * 8192)
            for j in range(4): ld(dWQ + j, sSRD_WQ, j, ntW)
        elif k == "K":
            sxor((u[1] >> 1) * 65536 + (u[1] & 1) * 8192 + u[2] * 256)
            for j in range(4): ld(dK + j, sSRD_K, j, ntKV)
        elif k == "V":
            sxor(u[1] * 16384)
            for j in range(4): ld(dV + j, sSRD_V, j, ntKV)
        elif k == "WO":
            for j in range(4):
                smov(u[2] * 128 * 896 + u[1] * 128 + j * (8 * 896 - 1024)); ld(dWO, sSRD_WO, j, "nt" if cfg.get("nto") else "")
        return L

    def rd(kind, dst, n, areg, off, res, after, before, pre=None):
        assert 0 <= off < 65536
        reads_left[res] = reads_left.get(res, 0) + 1
        if not isinstance(dst, tuple): dst = ("a", dst)
        dt, ds_ = (ar(dst[1], n), Ac(dst[1], n)) if dst[0] == "a" else (vr(dst[1], n), V(dst[1], n))
        return Ins(f"{kind} {dt}, v{areg} offset:{off}", "ds", rd=V(areg), wr=ds_, res=res,
                   after=after, before=max(before, after + 1), pre=pre, tag="read")

    RA = []; RB = []
    MID = cfg.get("mid", 40)
    A1, A2 = cfg.get("a1", 6), cfg.get("a2", 30)
    twait = {}
    def vmwait(tags): return lambda: E.wait_vm(tags)
    def bar(tags=(), wres=None, idle=()):
        def f():
            for r in idle: assert reads_left.get(r, 0) == 0, f"barrier releases {r} with reads pending"
            if wres is not None:
                assert not any(x.kind == "ds" and x.res is not None and wres(x.res) for x in VS), "publishing barrier before all writes were emitted"
            E.wait_ds_res(lambda r: r in idle or (wres is not None and wres(r)))
            if tags: E.wait_vm(list(tags))
            if not cfg.get("nobar"): R("s_barrier")
        return f
    def areads(base, j, kind, fu, areg, estride, busy=None):
        for ks in range(2):
            u = (kind, 2 * j + ks)
            at = base + (j - 1) * BL + ((A1, A2)[ks] if base == 0 else (cfg.get("v1", 6), cfg.get("v2", 30))[ks])
            if base == 0 and j == 0: at = -1
            name = ("Wa", u)
            add_event(at, name, vmwait([u])); twait[u] = at
            for mt in range(4):
                a0 = at if busy is None else max(at, busy(qa(j, ks, mt)))
                for e in range(2):
                    RA.append(rd("ds_read_b64_tr_b16", qa(j, ks, mt) + 2 * e, 2, areg + mt, uoff(u) + e * estride, u, a0,
                                 first_use[(fu, j, ks, mt)] - DMIN, after_ev(name)))
    for j in range(7):
        at = (j - 1) * BL + MID if j > 0 else -1
        name = ("Bx", j)
        add_event(at, name, bar(tags=[("X", j)], idle=[("X", j - 1)] if j > 0 else []))
        areads(0, j, "WQ", "QA", rWQ, 512)
        for nu in range(7):
            for ks in range(2):
                RB.append(rd("ds_read_b128", qb(j, ks, nu), 4, rX + ks, (j % 4) * 16384 + nu * 2048, ("X", j), at,
                             min(first_use[("QB", j, ks, nu)] - DMIN, j * BL + (MID - 6 if j < 6 else cfg.get("xe", 12) - 4)), after_ev(name)))
    add_event(6 * BL + cfg.get("xe", 12), "Bxe", bar(idle=[("X", 6)]))
    for st in range(16):
        b, h = st >> 1, st & 1
        at = S0 + (st - 1) * 28 + cfg.get("kat", 10)
        name = ("Wk", st)
        add_event(at, name, vmwait([("K", b, h)])); twait[("K", b, h)] = at
        RA += [rd("ds_read_b128", ka(st, k), 4, rK + k, uoff(("K", b, h)), ("K", b, h), at,
                  first_use[("SA", b, h, k)] - DMIN, after_ev(name)) for k in range(4)]
    add_event(S0 - 1, "Bq", bar(wres=lambda r: r == "qw"))
    for h in range(2):
        for nu in range(7):
            for k in range(4):
                kap = 4 * h + k
                RB.append(rd("ds_read_b128", AQ + 4 * (kap * 7 + nu), 4, rE, (kap * 7 + nu) * 1024, "q", S0 - 1,
                             first_use[("SB", kap, nu)] - DMIN, after_ev("Bq")))
    add_event(S0 + BL + 4, "Bqe", bar(idle=["q"]))
    def qbusy(reg): return last_use[("SB",) + divmod((reg - AQ) // 4, 7)]
    for j in range(8):
        at = P0 + (j - 1) * BL + MID
        c = j >> 1
        name = ("Bp", j & ~1)
        if j == 0: add_event(at, name, bar(wres=lambda r: r in (("pw", 0), ("pw", 1))))
        elif j == 2: add_event(at, name, bar(idle=[("P", 0)]))
        elif j == 4: add_event(at, name, bar(idle=[("P", 1)], wres=lambda r: r == ("pw", 2)))
        elif j == 6: add_event(at, name, bar(idle=[("P", 2)], wres=lambda r: r in (("pw", 3), "lw")))
        areads(P0, j, "V", "VA", rV, 2048, qbusy if j < 2 else None)
        if j & 1: at = P0 + (j - 1) * BL + cfg.get("mid2", 30)
        for nu in range(7):
            for ks in range(2):
                a0 = max(at, qbusy(qb(j, ks, nu))) if j < 2 else at
                wprod = 2 * (j & 1) + ks
                RB.append(rd("ds_read_b128", qb(j, ks, nu), 4, rE, (c & 1) * 28672 + (wprod * 7 + nu) * 1024, ("P", c), a0,
                             min(first_use[("VB", j, ks, nu)] - DMIN, P0 + j * BL + (MID - 6 if j < 7 else cfg.get("xe", 12) - 4)), after_ev(name)))
    add_event(P0 + 7 * BL + cfg.get("xe", 12), "Bpe", bar(idle=[("P", 3)]))
    O1 = cfg.get("oat1", -1)
    add_event(O0 - 1, "Bo_x", bar(wres=lambda r: r == "ow", idle=[("WO", 0, 0), ("WO", 0, 1)], tags=[("WO", 1, 0), ("WO", 1, 1)] if O1 < 0 else []))
    for p in range(7):
        at = O0 + (p - 1) * BL + cfg.get("oat", 24)
        name = ("Bo", p)
        if p == 0: at = O0 - BL + cfg.get("oat0", 24)
        if p == 1 and O1 < 0: name = "Bo_x"; at = O0
        elif p == 1:
            at = O0 + O1
            add_event(at, name, bar(tags=[("WO", p, 0), ("WO", p, 1)]))
        elif p == 2:
            at = O0 + BL - 2
            add_event(at, name, bar(tags=[("WO", p, 0), ("WO", p, 1)], idle=["o", ("WO", 1, 0), ("WO", 1, 1)]))
        else: add_event(at, name, bar(tags=[("WO", p, 0), ("WO", p, 1)]))
        twait[("WO", p, 0)] = twait[("WO", p, 1)] = at if (p != 1 or O1 >= 0) else O0 - 1
        if p == 2: at = O0 + BL + 8
        for h in range(2):
            st = 2 * p + h
            for k in range(4):
                for e in range(2):
                    if st in ESLOT: areg, off = rWOE, ESLOT[st] * 16384 + k * 4096 + e * 2048
                    else: areg, off = rWO + (k >> 1), (k & 1) * RING + uoff(("WO", p, h)) + e * 2048
                    d = oa(p, 4 * h + k)
                    bef = first_use[("OA", p, h, k)] - DMIN
                    if p == 0: bef = min(bef, O0 - 5)
                    if p == 1: bef = min(bef, O0 + max(O1, 0) + ((48 - max(O1, 0)) * (8 * h + 2 * k + e)) // 16 + 2)
                    RA.append(rd("ds_read_b64_tr_b16", (d[0], d[1] + 2 * e), 2, areg, off, ("WO", p, h), at, bef, after_ev(name)))
    for nu in range(7):
        for kap in range(8):
            RB.append(rd("ds_read_b128", AQ + 4 * (kap * 7 + nu), 4, rE, (kap * 7 + nu) * 1024, "o", O0 - 1,
                         first_use[("OB", kap, nu)] - DMIN, after_ev("Bo_x")))

    DQ = []
    order = []
    xs = [("X", j) for j in range(7)]
    order = [xs[0], units[0], units[1], xs[1], units[2], units[3], xs[2], units[4], units[5], xs[3]]
    k = 6
    for j in range(4, 7):
        order += [units[k], units[k + 1], xs[j]]; k += 2
    order += units[k:]
    for u in order:
        if u[0] == "X":
            pre = after_ev(("Bx", u[1] - 3)) if u[1] >= 4 else None
        else:
            k = uidx[u]
            if k < NU: pre = None
            elif units[k - NU][0] == "WO":
                st = 2 * u[1] + u[2]
                pre = after_ev("Bo_x") if st < 8 else after_ev(("Bo", 2))
            else:
                pre = (lambda r: (lambda: reads_left[r] == 0 and now[0] - last_read[r] >= cfg.get("rel", 7)))(units[k - NU])
        L = dma_unit(u, pre)
        if cfg.get("look") and u[0] in cfg.get("lookk", ("K", "V")):
            k = uidx[u]
            n_ = k - 14
            if n_ >= cfg.get("nfree", 7):
                L[0].after = min(int(S0 + cfg.get("poff", 10) + (n_ - cfg.get("nfree", 7)) * cfg.get("pace", 35)), twait[units[k - cfg["look"]]])
        if u[0] != "X" and uidx[u] >= NU and units[uidx[u] - NU][0] != "WO": L[0].res = units[uidx[u] - NU]
        if cfg.get("wopfq") is not None and u[0] != "X" and uidx[u] == 46 + cfg["wopfq"]:
            L.insert(0, Ins(f"buffer_load_dword v{vPFV}, v{vPFV}, {srd(sSRD_WO)}, 0 offen", "vmem", rd=V(vPFV), tag=("pf",), cost=8))
        DQ.append((u, L))

    def valu(text, rd_, wr_, after, before=INF, kind="valu", cost=4, pre=None):
        return Ins(text, kind, rd=rd_, wr=wr_, after=after, before=before, cost=cost, pre=pre)
    VS = []
    for nu in range(7):
        aft = done_at[("Q", 3, nu)]
        for mt in range(4):
            r = oacc(mt, nu)
            for x in range(4): VS.append(valu(f"v_mul_f32 v{r+x}, s{sC}, v{r+x}", V(r + x), V(r + x), aft, S0))
        for mt in range(4):
            r = oacc(mt, nu)
            VS.append(valu(f"v_cvt_pk_bf16_f32 v{r}, v{r}, v{r+1}", V(r, 2), V(r), aft, S0))
            VS.append(valu(f"v_cvt_pk_bf16_f32 v{r+1}, v{r+2}, v{r+3}", V(r + 2, 2), V(r + 1), aft, S0))
        for mt in range(4):
            r = oacc(mt, nu)
            off = ((mt >> 1) * 7 + nu) * 1024 + (mt & 1) * 512
            VS.append(Ins(f"ds_write_b64 v{wQ}, {vr(r,2)} offset:{off}", "ds", rd=V(wQ) | V(r, 2), res="qw",
                          after=aft, before=S0, pre=after_ev("Bxe"), cost=12))
    def pw(c, nu, hf, aft, bef, evn):
        r = PR[c & 1] + 4 * nu + 2 * hf
        return Ins(f"ds_write_b64 v{wP}, {vr(r,2)} offset:{(c&1)*28672+nu*1024+8*hf}", "ds", rd=V(wP) | V(r, 2), res=("pw", c),
                   after=aft, before=bef, pre=after_ev(evn), cost=12)
    pend = []
    WS = []
    pvfirst = {}
    for i in range(P0, P0 + BL): pvfirst.setdefault(M[i][0], i)
    for b in range(8):
        c, hf = b >> 1, b & 1
        for nu in range(7):
            acc = sbuf[b] + 4 * nu
            aft = done_at[("S", b, nu)]
            nxt = [bb for bb in range(b + 1, 8) if sbuf[bb] == sbuf[b]]
            pdead = (P0 - BL + MID, P0 - BL + MID, P0 + 3 * BL + MID, P0 + 5 * BL + MID)[c]
            if nxt: bef = first_use[("Sacc", nxt[0], nu)]
            elif acc in pvfirst: bef = pvfirst[acc]
            else: bef = INF
            bef = min(bef, pdead - 2)
            pr = PR[c & 1] + 4 * nu + 2 * hf
            ex = [valu(f"v_exp_f32 v{acc+x}, v{acc+x}", V(acc + x), V(acc + x), aft, bef, kind="trans", cost=8) for x in range(4)]
            if b == 0:
                ad = [valu(f"v_add_f32 v{vL+nu}, v{acc}, v{acc+1}", V(acc, 2), V(vL + nu), aft, bef)]
                ad += [valu(f"v_add_f32 v{vL+nu}, v{vL+nu}, v{acc+x}", V(vL + nu) | V(acc + x), V(vL + nu), aft, bef) for x in (2, 3)]
                ad = [None] + ad
            else:
                ad = [valu(f"v_add_f32 v{vL+nu}, v{vL+nu}, v{acc+x}", V(vL + nu) | V(acc + x), V(vL + nu), aft, bef) for x in range(4)]
            cv = [valu(f"v_cvt_pk_bf16_f32 v{pr}, v{acc}, v{acc+1}", V(acc, 2), V(pr), aft, bef),
                  valu(f"v_cvt_pk_bf16_f32 v{pr+1}, v{acc+2}, v{acc+3}", V(acc + 2, 2), V(pr + 1), aft, bef)]
            tail = [ad[0], cv[0], ad[1], cv[1], ad[2], ad[3]]
            tail = [x for x in tail if x is not None]
            tail.append(pw(c, nu, hf, aft, pdead, ("Bqe", "Bqe", ("Bp", 2), ("Bp", 4))[c]))
            seq = []
            for x in range(4):
                seq.append(ex[x])
                seq += pend[:2]; pend = pend[2:]
            seq += pend
            pend = tail
            VS += seq
    VS += pend
    lbef = P0 + 5 * BL + MID
    T0 = SACC[0]
    aft = done_at[("S", 7, 6)]
    for nu in range(7): VS.append(valu(f"v_mov_b32 v{T0+nu}, v{vL+nu}", V(vL + nu), V(T0 + nu), aft, lbef))
    for nu in range(7): VS.append(valu(f"v_permlane32_swap_b32 v{vL+nu}, v{T0+nu}", V(vL + nu) | V(T0 + nu), V(vL + nu) | V(T0 + nu), aft, lbef, kind="perm", cost=8))
    for nu in range(7): VS.append(valu(f"v_add_f32 v{vL+nu}, v{vL+nu}, v{T0+nu}", V(vL + nu) | V(T0 + nu), V(vL + nu), aft, lbef))
    for nu in range(7): VS.append(valu(f"v_mov_b32 v{T0+nu}, v{vL+nu}", V(vL + nu), V(T0 + nu), aft, lbef))
    for nu in range(7): VS.append(valu(f"v_permlane16_swap_b32 v{vL+nu}, v{T0+nu}", V(vL + nu) | V(T0 + nu), V(vL + nu) | V(T0 + nu), aft, lbef, kind="perm", cost=8))
    for nu in range(7): VS.append(valu(f"v_add_f32 v{T0+8+nu}, v{vL+nu}, v{T0+nu}", V(vL + nu) | V(T0 + nu), V(T0 + 8 + nu), aft, lbef))
    VS.append(valu(f"v_add_u32 v{T0+7}, s{sXB}, v{vST}", V(vST), V(T0+7), aft, lbef))
    VS.append(valu(f"v_subrev_u32 v{T0+7}, s{sW2K}, v{T0+7}", V(T0+7), V(T0+7), aft, lbef))
    for hh in range(2):
        VS.append(Ins(f"ds_write_b128 v{T0+7}, {vr(T0+8+4*hh,4)} offset:{57344+hh*1024}", "ds", rd=V(T0+7) | V(T0 + 8 + 4 * hh, 4),
                      res="lw", after=aft, before=lbef, cost=20))
    rb = P0 + 7 * BL
    for w in range(4):
        for hh in range(2):
            d = T0 + 8 * w + 4 * hh
            VS.append(Ins(f"ds_read_b128 {vr(d,4)}, v{rE} offset:{57344+w*2048+hh*1024}", "ds", rd=V(rE), wr=V(d, 4), res="lr",
                          after=0, before=rb, pre=after_ev(("Bp", 6))))
    la = P0 + 6 * BL + 20
    for nu in range(7): VS.append(valu(f"v_add_f32 v{T0+nu}, v{T0+nu}, v{T0+8+nu}", V(T0 + nu) | V(T0 + 8 + nu), V(T0 + nu), la, O0))
    for nu in range(7): VS.append(valu(f"v_add_f32 v{T0+16+nu}, v{T0+16+nu}, v{T0+24+nu}", V(T0 + 16 + nu) | V(T0 + 24 + nu), V(T0 + 16 + nu), la, O0))
    for nu in range(7): VS.append(valu(f"v_add_f32 v{T0+nu}, v{T0+nu}, v{T0+16+nu}", V(T0 + nu) | V(T0 + 16 + nu), V(T0 + nu), la, O0))
    if cfg.get("fb", 1):
        a_, b_ = T0 + 8, T0 + 9
        VCC = {("s", "vcc")}
        VS.append(valu(f"v_max3_f32 v{a_}, v{T0}, v{T0+1}, v{T0+2}", V(T0, 3), V(a_), la, O0))
        VS.append(valu(f"v_min3_f32 v{b_}, v{T0}, v{T0+1}, v{T0+2}", V(T0, 3), V(b_), la, O0))
        for r in (3, 5):
            VS.append(valu(f"v_max3_f32 v{a_}, v{a_}, v{T0+r}, v{T0+r+1}", V(a_) | V(T0 + r, 2), V(a_), la, O0))
            VS.append(valu(f"v_min3_f32 v{b_}, v{b_}, v{T0+r}, v{T0+r+1}", V(b_) | V(T0 + r, 2), V(b_), la, O0))
        hi_, lo_ = f2u(2.0 ** cfg.get("lim", 40)), f2u(2.0 ** -cfg.get("lim", 40))
        VS.append(valu(f"v_cmp_nge_f32 vcc, {hi_:#x}, v{a_}\n    s_cbranch_vccnz L_fallback", V(a_), VCC, la, O0, cost=8))
        VS.append(valu(f"v_cmp_nle_f32 vcc, {lo_:#x}, v{b_}\n    s_cbranch_vccnz L_fallback", V(b_), VCC, la, O0, cost=8))
    for nu in range(7): VS.append(valu(f"v_rcp_f32 v{vL+nu}, v{T0+nu}", V(T0 + nu), V(vL + nu), la, O0, kind="trans", cost=8))
    VS.append(valu(f"v_add_u32 v{rWOE}, {EB}, v{rWO}", V(rWO), V(rWOE), P0 + 6 * BL, O0))
    VS.append(valu(f"v_lshrrev_b32 v{vST2}, 1, v{vST}", V(vST), V(vST2), P0 + 6 * BL, O0))
    for nu in range(7):
        aft = done_at[("O", 3, nu)]
        for al in range(2):
            r = oacc(2 * al, nu)
            for x in range(4):
                VS.append(valu(f"v_cvt_pk_bf16_f32 v{r+x}, v{r+2*x}, v{r+2*x+1}", V(r + 2 * x, 2), V(r + x), aft, O0))
        for al in range(2):
            r = oacc(2 * al, nu)
            VS.append(Ins(f"ds_write_b128 v{wO}, {vr(r,4)} offset:{(al*7+nu)*1024}", "ds", rd=V(wO) | V(r, 4), res="ow",
                          after=aft, before=O0, pre=after_ev("Bpe"), cost=20))
    SQ = []
    for p in range(7):
        stg = OACC + 16 * p
        for nu in range(7):
            acc = SACC[p & 1] + 4 * nu
            aft = done_at[("Y", p, nu)]
            bef = first_use[("Yacc", p + 2, nu)] if p < 5 else INF
            for x in range(4): VS.append(valu(f"v_mul_f32 v{acc+x}, v{vL+nu}, v{acc+x}", V(acc + x) | V(vL + nu), V(acc + x), aft, bef))
            d = stg + 2 * nu
            VS.append(valu(f"v_cvt_pk_bf16_f32 v{d}, v{acc}, v{acc+1}", V(acc, 2), V(d), aft, bef))
            VS.append(valu(f"v_cvt_pk_bf16_f32 v{d+1}, v{acc+2}, v{acc+3}", V(acc + 2, 2), V(d + 1), aft, bef))
            gate = (lambda: not dq) if cfg.get("gate", 1) else None
            if nu & 1:
                VS.append(Ins(f"buffer_store_dwordx4 {vr(d-2,4)}, v{vST}, {srd(sSRD_WS)}, s{sSTO+p} offen offset:{(nu>>1)*1024} {stfl}",
                              "vmem", rd=V(d - 2, 4) | V(vST), tag=("st", p), after=aft, cost=32, pre=gate))
            if nu == 6:
                VS.append(Ins(f"buffer_store_dwordx2 {vr(d,2)}, v{vST2}, {srd(sSRD_WS)}, s{sSTO+p} offen offset:3072 {stfl}",
                              "vmem", rd=V(d, 2) | V(vST2), tag=("st", p), after=aft, cost=18, pre=gate))

    vFA, vFO, vFN, vFV = dK, dK + 1, dK + 2, dK + 3
    vRA, vOA, vOA2, vZ = 6, 7, 8, 0
    SEL = 120; RD_ = 128
    def publish(cnt):
        pubd[0] = cnt
        R(f"v_and_b32 v{vFV}, -16, v{vFV}")
        R(f"v_add_u32 v{vFV}, {16 + cnt}, v{vFV}")
        E.emit(Ins(f"buffer_store_dword v{vFV}, v{vZ}, {srd(sSRD_FM)}, 0 offen {cfg.get('ffl','sc1')}", "vmem", rd=V(vFV) | V(vZ), tag="fl"))
    def reduce_setup():
        t = RD_
        R(f"v_lshrrev_b32 v{t}, 4, v{vST}")
        R(f"v_and_b32 v{t+1}, 15, v{t}")
        R(f"v_lshrrev_b32 v{t+2}, 4, v{t}")
        R(f"v_lshlrev_b32 v{vZ}, 24, v{t}")
        R(f"v_and_b32 v{t+3}, 16, v{vST}")
        R(f"v_mov_b32 v{t+4}, 0x3f80"); R(f"v_lshlrev_b32 v{t+3}, v{t+3}, v{t+4}")
        R(f"v_bfe_u32 v{t+4}, v{t}, 1, 3")
        for io in range(0, 8, 2):
            R(f"v_cmp_eq_u32 vcc, {io}, v{t+4}"); R(f"v_cmp_eq_u32 s[24:25], {io+1}, v{t+4}"); R("s_nop 0")
            R(f"v_cndmask_b32 v{SEL+io}, 0, v{t+3}, vcc"); R(f"v_cndmask_b32 v{SEL+io+1}, 0, v{t+3}, s[24:25]")
        R(f"s_lshl_b32 s40, s{sW}, 4"); R(f"v_add_u32 v{t+3}, s40, v{t+1}")
        R(f"v_cmp_gt_u32 s[24:25], 56, v{t+3}")
        R(f"v_mul_u32_u24 v{vRA}, 100352, v{t+2}"); R(f"v_lshl_add_u32 v{vRA}, v{t+3}, 4, v{vRA}")
        R(f"v_mov_b32 v{t+4}, 0x7ffffff0")
        R(f"v_cndmask_b32 v{vRA}, v{t+4}, v{vRA}, s[24:25]")
        R(f"s_and_b32 s40, s{sH}, 3"); R("s_mul_i32 s40, s40, 56"); R(f"v_add_u32 v{t+3}, s40, v{t+3}")
        R(f"v_and_b32 v{t+5}, 1, v{t+2}")
        R(f"v_lshrrev_b32 v{t+6}, 6, v{t+3}"); R(f"v_and_b32 v{t+7}, 15, v{t+3}")
        R(f"v_lshl_add_u32 v{t+6}, v{t+6}, 5, v{t+7}"); R(f"v_lshl_add_u32 v{t+6}, v{t+5}, 4, v{t+6}")
        R(f"v_bfe_u32 v{t+7}, v{t+3}, 4, 2")
        R(f"v_cmp_lt_u32 vcc, 191, v{t+3}")
        R(f"v_and_b32 v{t+8}, 7, v{t+3}"); R(f"v_lshl_add_u32 v{t+8}, v{t+8}, 1, v{t+5}"); R(f"v_add_u32 v{t+8}, 96, v{t+8}")
        R(f"v_bfe_u32 v{t+9}, v{t+3}, 3, 2")
        R(f"v_cndmask_b32 v{t+6}, v{t+6}, v{t+8}, vcc"); R(f"v_cndmask_b32 v{t+7}, v{t+7}, v{t+9}, vcc")
        R(f"v_mul_u32_u24 v{vOA}, 896, v{t+6}"); R(f"v_lshl_add_u32 v{vOA}, v{t+7}, 3, v{vOA}")
        R(f"v_lshrrev_b32 v{t+5}, 1, v{t+2}"); R(f"v_lshl_add_u32 v{vOA}, v{t+5}, 7, v{vOA}")
        R(f"v_cmp_gt_u32 vcc, 32, v{t}")
        R(f"s_lshr_b32 s40, s{sH}, 2"); R("s_lshl_b32 s40, s40, 5"); R(f"v_add_u32 v{vOA}, s40, v{vOA}")
        R(f"v_cndmask_b32 v{vOA}, v{t+4}, v{vOA}, s[24:25]")
        R(f"v_cndmask_b32 v{vOA2}, v{t+4}, v{vOA}, vcc")
    npoll = [0]; nchk = [0]; pubd = [0]
    spins = []
    def preg(k): return rV + (k & 3)
    def poll():
        npoll[0] += 1
        r = preg(npoll[0])
        E.emit(Ins(f"buffer_load_dword v{r}, v{vFA}, {srd(sSRD_FL)}, 0 offen sc1", "vmem", rd=V(vFA), wr=V(r), tag=("poll", npoll[0])))
    def check_cond(need, r=None):
        r = vFN if r is None else r
        R(f"v_cmp_ne_u32 vcc, v{r}, v{vFO}")
        R(f"v_and_b32 v{vFN}, 15, v{r}")
        R(f"v_cmp_le_u32 s[26:27], {need}, v{vFN}")
        R("s_and_b64 vcc, vcc, s[26:27]")
        R("s_cmp_eq_u64 vcc, -1")
    def check(need, mine):
        nchk[0] += 1
        E.wait_vm([("poll", nchk[0])], 1)
        check_cond(need, preg(nchk[0]))
        k = len(spins); spins.append((need, mine))
        R(f"s_cbranch_scc0 L_spin{k}")
        E.label(f"L_spun{k}")
    def rreg(p, g): return OACC + 16 * p + 4 * g
    def rloads(p):
        L = []
        for g in range(4):
            L.append(Ins(f"s_add_u32 s{sOFF}, s{sRO}, {g*4*100352 + p*3584}", "salu"))
            L.append(Ins(f"buffer_load_dwordx4 {vr(rreg(p,g),4)}, v{vRA}, {srd(sSRD_PB)}, s{sOFF} offen {cfg.get('rfl','sc1')}", "vmem",
                         rd=V(vRA), wr=V(rreg(p, g), 4), tag=("rl", p, g), cost=8))
        return L
    def rsum(p, nxt=None):
        d = RD_ + 4 * (p >> 1); sel = SEL + 4 * (p & 1)
        nl = rloads(nxt) if nxt is not None else None
        for g in range(4):
            if nl:
                E.wait_vm([("rl", p, g)], 1)
                E.emit(nl[2 * g]); E.emit(nl[2 * g + 1])
            E.wait_vm([("rl", p, g)], 1)
            cz = (p & 1) == 0 and g == 0
            E.emit(Ins(f"v_mfma_f32_16x16x32_bf16 {vr(d,4)}, {vr(sel,4)}, {vr(rreg(p,g),4)}, {'0' if cz else vr(d,4)}", "mfma",
                       rd=V(sel, 4) | V(rreg(p, g), 4) | (set() if cz else V(d, 4)), wr=V(d, 4), rdc=set() if cz else V(d, 4)))
    def rstore(q):
        d = RD_ + 4 * q
        E.emit(valu(f"v_cvt_pk_bf16_f32 v{d}, v{d}, v{d+1}", V(d, 2), V(d), 0))
        E.emit(valu(f"v_cvt_pk_bf16_f32 v{d+1}, v{d+2}, v{d+3}", V(d + 2, 2), V(d + 1), 0))
        va = vOA if q < 3 else vOA2
        E.emit(Ins(f"buffer_store_dwordx2 {vr(d,2)}, v{va}, {srd(sSRD_OUT)}, 0 offen offset:{256*q} {cfg.get('ofl','')}", "vmem", rd=V(d, 2) | V(va), tag="ost"))
    PROG = cfg.get("prog", 1) and cfg.get("ink", 1)
    if cfg.get("ink", 1):
        def ev_setup():
            assert not any(x.kind == "vmem" and x.tag[0] == "V" for x in dq)
            assert not any(x.res == ("pw", 3) for x in VS)
            reduce_setup()
        events.setdefault(P0 + 6 * BL + cfg.get("v2", 30), []).insert(0, ("rsetup", ev_setup))
    def act(a_, inline):
        k = a_[0]
        if k == "pub": E.wait_vm([("st", p) for p in range(a_[1])]); publish(a_[1])
        elif k == "poll": poll()
        elif k == "chk": check(a_[1], pubd[0])
        elif k == "ld":
            if inline:
                for x in rloads(a_[1]): E.emit(x)
            else: dq.extend(rloads(a_[1]))
        elif k == "sum": rsum(a_[1])
        elif k == "sl": rsum(a_[1] // 10, a_[1] % 10)
        elif k == "out": rstore(a_[1])
        elif k == "stamp":
            if stamps: stamp()
    MIDS = cfg.get("mids", [(4.2, ("pub", 3))]) if PROG else []
    for n_, (pos, a_) in enumerate(MIDS):
        add_event(O0 + int(pos * BL), ("mid", n_), (lambda z: (lambda: act(z, False)))(a_))
    TAIL = cfg.get("tail", "poll pub7 stamp chk3 ld0 ld1 poll ld2 sum0 sum1 out0 chk7 stamp ld3 ld4 ld5 ld6 sum2 sum3 sum4 out1 sum5 sum6 out2 out3") if PROG \
        else "pub7 stamp poll chk7 stamp ld0 ld1 ld2 ld3 ld4 ld5 ld6 sum0 sum1 sum2 out0 sum3 sum4 out1 sum5 sum6 out2 out3"
    if cfg.get("ink", 1):
        fa = P0 - 28
        VS.insert(0, valu(f"v_and_b32 v{vFA}, 0xf0, v{vST}", V(vST), V(dK, 4), fa, P0 + BL, pre=lambda: not any(x.kind == "vmem" and x.tag[0] == "K" for x in dq)))
        VS.insert(1, valu(f"v_lshlrev_b32 v{vFA}, 3, v{vFA}", V(vFA), V(vFA), fa, P0 + BL))
        VS.insert(2, valu(f"v_mov_b32 v{vFN}, 0", set(), V(vFN), fa, P0 + BL))
        VS.insert(3, Ins(f"buffer_load_dword v{vFO}, v{vFA}, {srd(sSRD_FL)}, 0 offen sc1", "vmem", rd=V(vFA), wr=V(vFO), tag="pf", after=fa, before=P0 + BL, cost=8))
        VS.insert(4, Ins(f"buffer_load_dword v{vFV}, v{vFN}, {srd(sSRD_FM)}, 0 offen sc1", "vmem", rd=V(vFN), wr=V(vFV), tag="pf", after=fa, before=P0 + BL, cost=8))

    PF = []
    if cfg.get("wopf") is not None:
        PF.append(Ins(f"buffer_load_dword v{vPFV}, v{vPFV}, {srd(sSRD_WO)}, 0 offen", "vmem", rd=V(vPFV), tag="pf",
                      after=int(cfg["wopf"] * 28), cost=8))

    KN = "standalone__gqa_block_cached__near_ridge_kernel" if cfg.get("ink", 1) else "gqa_main_kernel"
    if cfg.get("ink", 1):
        E.out.append("; fused GQA block: q-proj + attention + out-proj + cross-workgroup head reduction")
        E.out.append("; @launch grid=(256,1,1) block=(256,1,1) lds=163840")
    else:
        E.out.append("""; fused GQA block: q-proj + attention + out-proj partials (main), then head reduction (reduce)
; @launch kernel=gqa_main_kernel grid=(256,1,1) block=(256,1,1) lds=163840
; @launch kernel=gqa_reduce_kernel grid=(448,1,1) block=(256,1,1) lds=0""")
    E.out.append(f""".amdgcn_target "amdgcn-amd-amdhsa--gfx950"
.text
.globl {KN}
.p2align 8
.type {KN},@function
{KN}:""")
    R("s_cmp_ge_u32 s2, 256")
    R("s_cbranch_scc1 L_exit")
    R("s_load_dwordx8 s[8:15], s[0:1], 0")
    R("s_load_dwordx2 s[4:5], s[0:1], 32")
    R(f"s_load_dwordx2 s[{sSRD_OUT}:{sSRD_OUT+1}], s[0:1], 40")
    R("s_load_dwordx2 s[6:7], s[0:1], 56")
    if cfg.get("padT") or cfg.get("padstep") is not None: R("s_memrealtime s[68:69]")
    if stamps:
        R(f"s_memtime s[{sSTAMP}:{sSTAMP+1}]"); R(f"s_memrealtime s[{sSTAMP+30}:{sSTAMP+31}]")
    t0, t1, t2, t3, t4, t5 = 40, 41, 42, 43, 44, 45
    vA, vP8, vG, vP16, vW, vR, vC4 = 46, 47, 48, 49, 50, 51, 52
    R(f"v_lshrrev_b32 v{vW}, 6, v0")
    R(f"v_and_b32 v{vLANE}, 63, v0")
    R(f"v_readfirstlane_b32 s{sW}, v{vW}")
    R(f"v_lshrrev_b32 v{vA}, 3, v{vLANE}")
    R(f"v_and_b32 v{vP8}, 7, v{vLANE}")
    R(f"v_lshrrev_b32 v{vG}, 4, v{vLANE}")
    R(f"v_and_b32 v{vP16}, 15, v{vLANE}")
    R("s_bfe_u32 s46, s2, 0x10003")
    if cfg.get("kmap", 2) == 1:
        R("s_and_b32 s50, s2, 7")
        R("s_lshr_b32 s48, s2, 4")
        R(f"s_mov_b32 s{sSQ}, s48"); R(f"s_mov_b32 s{sSX}, s46")
    elif cfg.get("kmap", 2) == 8:
        R("s_bfe_u32 s50, s2, 0x30004")
        R("s_and_b32 s48, s2, 7"); R("s_lshl_b32 s48, s48, 1"); R(f"s_lshr_b32 s{sSQ}, s2, 7"); R(f"s_add_u32 s48, s48, s{sSQ}")
        R(f"s_bfe_u32 s{sSX}, s2, 0x40003")
    elif cfg.get("kmap", 2) == 4:
        R("s_and_b32 s50, s2, 1"); R("s_lshl_b32 s50, s50, 2"); R("s_bfe_u32 s40, s2, 0x20004"); R("s_add_u32 s50, s50, s40")
        R(f"s_lshr_b32 s{sSQ}, s2, 6"); R("s_bfe_u32 s40, s2, 0x20001"); R("s_lshl_b32 s48, s40, 2"); R(f"s_add_u32 s48, s48, s{sSQ}")
        R(f"s_bfe_u32 s{sSX}, s2, 0x30003")
    else:
        R("s_and_b32 s50, s2, 3"); R("s_lshl_b32 s50, s50, 1"); R("s_bfe_u32 s40, s2, 0x10004"); R("s_add_u32 s50, s50, s40")
        R(f"s_lshr_b32 s{sSQ}, s2, 5"); R("s_bfe_u32 s40, s2, 0x10002"); R("s_lshl_b32 s48, s40, 3"); R(f"s_add_u32 s48, s48, s{sSQ}")
        R(f"s_bfe_u32 s{sSX}, s2, 0x20003")
    R("s_lshl_b32 s49, s50, 1")
    R("s_add_u32 s49, s49, s46")
    STG = cfg.get("stag", 0)
    if STG == 1:
        R(f"s_bfe_u32 s40, s2, {cfg.get('rotbits', 0x20004):#x}"); R(f"s_lshl_b32 s{sSTG}, s40, 16"); R(f"s_mov_b32 s{sSTV}, s{sSTG}")
    elif STG == 2:
        R(f"s_bfe_u32 s40, s2, 0x40004"); R(f"s_lshl_b32 s{sSTV}, s40, 14"); R(f"s_and_b32 s{sSTG}, s{sSTV}, 0x30000")
    elif STG == 64: R(f"s_lshl_b32 s{sSTG}, s46, 16"); R(f"s_lshl_b32 s{sSTV}, s46, 16")
    else: R(f"s_lshl_b32 s{sSTG}, s46, 13"); R(f"s_lshl_b32 s{sSTV}, s46, 15")
    R(f"s_mul_i32 s{sRB}, s{sW}, {RING}")
    R(f"s_lshl_b32 s{sXB}, s{sW}, 12"); R(f"s_add_u32 s{sXB}, s{sXB}, {EB}")
    R(f"v_lshl_add_u32 v{t0}, v{vW}, 5, v{vA}")
    R(f"v_mul_u32_u24 v{t1}, 896, v{t0}")
    R(f"v_xor_b32 v{t2}, v{vP8}, v{vG}")
    R(f"v_lshlrev_b32 v{t2}, 4, v{t2}")
    R(f"v_xor_b32 v{t3}, 64, v{t2}")
    R(f"v_add_u32 v{dX}, v{t1}, v{t2}")
    R(f"v_add_u32 v{dX+1}, v{t1}, v{t3}")
    R(f"v_add_u32 v{dX+2}, {2*6144}, v{dX}")
    R(f"v_add_u32 v{dX+3}, {3*6144}, v{dX+1}")
    R(f"v_add_u32 v{dX+1}, {6144}, v{dX+1}")
    R(f"v_and_b32 v{t2}, 1, v{vG}")
    R(f"v_lshlrev_b32 v{t2}, 1, v{t2}")
    R(f"v_xor_b32 v{t2}, v{vP8}, v{t2}")
    R(f"v_lshlrev_b32 v{t2}, 4, v{t2}")
    R(f"v_lshl_add_u32 v{t2}, v{vW}, 7, v{t2}")
    R(f"v_lshl_add_u32 v{dWQ}, v{vA}, 13, v{t2}")
    R(f"v_xor_b32 v{dWQ+1}, 64, v{dWQ}")
    R(f"v_add_u32 v{dWQ+2}, {2*64512}, v{dWQ}")
    R(f"v_add_u32 v{dWQ+3}, {3*64512}, v{dWQ+1}")
    R(f"v_add_u32 v{dWQ+1}, {64512}, v{dWQ+1}")
    if cfg.get("ppf"):
        km = cfg.get("kmap", 2)
        xr = 56 // km; qr = 4 * km
        R(f"s_mul_i32 s40, s{sSX}, {xr}"); R(f"v_add_u32 v54, s40, v{vLANE}"); R(f"v_mul_u32_u24 v54, 896, v54")
        R(f"v_lshl_add_u32 v54, v{vW}, 7, v54")
        R("v_mov_b32 v57, 0x7ffffff0"); R(f"v_cmp_gt_u32 vcc, {xr}, v{vLANE}")
        R(f"v_lshrrev_b32 v55, 2, v{vLANE}"); R(f"v_lshl_add_u32 v55, v{vW}, 6, v55")
        R("v_cndmask_b32 v54, v57, v54, vcc")
        R(f"s_mul_i32 s40, s{sSQ}, {qr}"); R("v_add_u32 v55, s40, v55"); R(f"v_and_b32 v56, 3, v{vLANE}"); R("v_lshlrev_b32 v56, 7, v56")
        R(f"v_cmp_gt_u32 vcc, {4*qr}, v{vLANE}"); R("v_lshl_add_u32 v55, v55, 13, v56"); R("s_nop 0")
        R("v_cndmask_b32 v55, v57, v55, vcc")
    R("s_waitcnt lgkmcnt(0)")
    R("s_mul_i32 s40, s48, 100352")
    R(f"s_add_u32 s{sSRD_X}, s8, s40"); R(f"s_addc_u32 s{sSRD_X+1}, s9, 0")
    R(f"s_mov_b32 s{sSRD_X+2}, 100352"); R(f"s_mov_b32 s{sSRD_X+3}, 0x20000")
    R("s_lshl_b32 s40, s49, 9")
    R(f"s_add_u32 s{sSRD_WQ}, s14, s40"); R(f"s_addc_u32 s{sSRD_WQ+1}, s15, 0")
    R(f"s_sub_u32 s{sSRD_WQ+2}, {448*8192}, s40"); R(f"s_mov_b32 s{sSRD_WQ+3}, 0x20000")
    npro = cfg.get("npro", 3); npro2 = cfg.get("npro2", 6); npro3 = max(npro2, cfg.get("npro3", 0))
    km = cfg.get("kmap", 2)
    def prefetch_round(r):
        R(f"s_mov_b32 s40, {512*r}")
        E.emit(Ins(f"buffer_load_dword v56, v54, {srd(sSRD_X)}, s40 offen", "vmem", tag="pf")) if r == 0 else None
        if r == 1:
            R(f"v_cmp_gt_u32 vcc, 3, v{vW}"); R("v_mov_b32 v57, 0x7ffffff0"); R("s_nop 0"); R("v_cndmask_b32 v54, v57, v54, vcc")
            E.emit(Ins(f"buffer_load_dword v56, v54, {srd(sSRD_X)}, s40 offen", "vmem", tag="pf"))
        R(f"s_mov_b32 s40, {256*8192*r}")
        E.emit(Ins(f"buffer_load_dword v56, v55, {srd(sSRD_WQ)}, s40 offen", "vmem", tag="pf"))
    if cfg.get("ppf") == 1: prefetch_round(0)
    for u, L in DQ[:npro]:
        for x in L: E.emit(x)
    R("s_lshl_b32 s40, s48, 3"); R("s_add_u32 s40, s40, s50"); R("s_lshl_b32 s40, s40, 18")
    R(f"s_add_u32 s{sSRD_K}, s10, s40"); R(f"s_addc_u32 s{sSRD_K+1}, s11, 0")
    R(f"s_mov_b32 s{sSRD_K+2}, 262144"); R(f"s_mov_b32 s{sSRD_K+3}, 0x20000")
    R(f"s_add_u32 s{sSRD_V}, s12, s40"); R(f"s_addc_u32 s{sSRD_V+1}, s13, 0")
    R(f"s_mov_b32 s{sSRD_V+2}, 262144"); R(f"s_mov_b32 s{sSRD_V+3}, 0x20000")
    if STG == 32:
        R(f"s_sub_u32 s{sSRD_V}, s{sSRD_V}, 4096"); R(f"s_subb_u32 s{sSRD_V+1}, s{sSRD_V+1}, 0"); R(f"s_mov_b32 s{sSRD_V+2}, {262144+4096}")
    R("s_mul_i32 s40, s49, 229376")
    R(f"s_add_u32 s{sSRD_WO}, s4, s40"); R(f"s_addc_u32 s{sSRD_WO+1}, s5, 0")
    R(f"s_mov_b32 s{sSRD_WO+2}, 229376"); R(f"s_mov_b32 s{sSRD_WO+3}, 0x20000")
    R("s_lshl_b32 s40, s48, 4"); R("s_add_u32 s40, s40, s49"); R("s_lshl_b32 s40, s40, 2"); R(f"s_add_u32 s40, s40, s{sW}")
    R("s_mul_i32 s40, s40, 25088")
    R(f"s_add_u32 s{sSRD_WS}, s6, s40"); R(f"s_addc_u32 s{sSRD_WS+1}, s7, 0")
    R(f"s_mov_b32 s{sSRD_WS+2}, 25088"); R(f"s_mov_b32 s{sSRD_WS+3}, 0x20000")
    R(f"s_mov_b32 s{sH}, s49"); R(f"s_mov_b32 s{sBB}, s48")
    R("s_mul_i32 s40, s48, 100352")
    R(f"s_add_u32 s{sSRD_OUT}, s{sSRD_OUT}, s40"); R(f"s_addc_u32 s{sSRD_OUT+1}, s{sSRD_OUT+1}, 0")
    R(f"s_mov_b32 s{sSRD_OUT+2}, 100352"); R(f"s_mov_b32 s{sSRD_OUT+3}, 0x20000")
    R("s_lshl_b32 s40, s40, 4")
    R(f"s_add_u32 s{sSRD_PB}, s6, s40"); R(f"s_addc_u32 s{sSRD_PB+1}, s7, 0")
    R(f"s_mov_b32 s{sSRD_PB+2}, 1605632"); R(f"s_mov_b32 s{sSRD_PB+3}, 0x20000")
    R(f"s_lshr_b32 s40, s49, 2"); R(f"s_mul_i32 s{sRO}, s40, 25088"); R("s_and_b32 s40, s49, 3"); R("s_mul_i32 s40, s40, 896"); R(f"s_add_u32 s{sRO}, s{sRO}, s40")
    R(f"s_mov_b32 s{sC}, {f2u(math.log2(math.e) / 16.0):#x}")
    R(f"s_lshl_b32 s{sW2K}, s{sW}, 11")
    R(f"s_mul_i32 s40, s{sSQ}, {16*km}"); R(f"v_lshrrev_b32 v58, 3, v{vLANE}"); R(f"v_add_u32 v58, s40, v58")
    R(f"v_mul_u32_u24 v59, {4*km}, v{vW}"); R("v_add_u32 v58, v58, v59"); R("v_mul_u32_u24 v58, 896, v58")
    R(f"v_lshl_add_u32 v{vPFV}, v{vP8}, 7, v58")
    R(f"v_cmp_gt_u32 vcc, {32*km}, v{vLANE}"); R("v_mov_b32 v59, 0x7ffffff0"); R("s_nop 0"); R(f"v_cndmask_b32 v{vPFV}, v59, v{vPFV}, vcc")
    for p in range(7): R(f"s_mov_b32 s{sSTO+p}, {p*3584}")

    R(f"v_bfe_u32 v{vR}, v{vLANE}, 2, 2")
    R(f"v_and_b32 v{vC4}, 3, v{vLANE}")
    R(f"v_lshlrev_b32 v{vST}, 4, v{vLANE}")
    R(f"v_bfe_u32 v{t2}, v{vLANE}, 1, 3")
    R(f"v_xor_b32 v{t2}, v{t2}, v{vG}")
    R(f"v_lshlrev_b32 v{t2}, 4, v{t2}")
    R(f"v_lshl_add_u32 v{t2}, v{vP16}, 7, v{t2}")
    R(f"v_add_u32 v{rX}, {EB}, v{t2}")
    R(f"v_xor_b32 v{rX+1}, 64, v{rX}")
    R(f"v_lshrrev_b32 v{t4}, 1, v{vR}")
    R(f"v_and_b32 v{t2}, 1, v{vG}")
    R(f"v_lshl_add_u32 v{t5}, v{t2}, 1, v{t4}")
    R(f"v_lshlrev_b32 v{t3}, 3, v{vC4}")
    R(f"v_lshl_add_u32 v{t3}, v{t5}, 5, v{t3}")
    R(f"v_add_u32 v{t4}, s{sRB}, v{t3}")
    R(f"v_lshl_add_u32 v{t2}, v{vG}, 3, v{vR}")
    R(f"v_lshl_add_u32 v{rWQ}, v{t2}, 7, v{t4}")
    for m in range(1, 4): R(f"v_xor_b32 v{rWQ+m}, {32*m}, v{rWQ}")
    for u, L in DQ[npro:npro2]:
        for x in L: E.emit(x)
    if cfg.get("ppf") == 2: prefetch_round(0)
    if cfg.get("ppf"): prefetch_round(1)
    for u, L in DQ[npro2:npro3]:
        for x in L: E.emit(x)
    R(f"v_lshl_add_u32 v{t2}, v{vG}, 2, v{vR}")
    R(f"v_lshl_add_u32 v{rV}, v{t2}, 7, v{t4}")
    for m in range(1, 4): R(f"v_xor_b32 v{rV+m}, {32*m}, v{rV}")
    R(f"v_lshl_add_u32 v{rWO}, v{t2}, 7, v{t3}")
    R(f"v_lshlrev_b32 v{t2}, 5, v{vW}")
    R(f"v_xor_b32 v{rWO}, v{rWO}, v{t2}")
    R(f"v_add_u32 v{rWO+1}, {2*RING}, v{rWO}")
    R(f"v_xor_b32 v{t2}, v{vG}, v{vP16}")
    R(f"v_lshlrev_b32 v{t2}, 4, v{t2}")
    R(f"v_lshl_add_u32 v{t2}, v{vP16}, 8, v{t2}")
    R(f"v_add_u32 v{rK}, s{sRB}, v{t2}")
    for k in range(1, 4): R(f"v_xor_b32 v{rK+k}, {64*k}, v{rK}")
    R(f"v_lshl_add_u32 v{t2}, v{vW}, 5, v{vG}")
    if STG == 32:
        R("s_lshl_b32 s40, s46, 6"); R(f"v_xor_b32 v{t2}, s40, v{t2}")
    if STG == 2:
        R(f"s_bfe_u32 s40, s{sSTV}, 0x2000e"); R("s_lshl_b32 s40, s40, 5"); R(f"v_xor_b32 v{t2}, s40, v{t2}")
    R(f"v_xor_b32 v{t3}, v{vP16}, v{vG}")
    R(f"v_lshlrev_b32 v{t3}, 4, v{t3}")
    R(f"v_lshl_add_u32 v{dK}, v{t2}, 9, v{t3}")
    for j in range(1, 4):
        R(f"v_xor_b32 v{dK+j}, {64*j}, v{dK}")
        R(f"v_add_u32 v{dK+j}, {1024*j}, v{dK+j}")
    R(f"v_lshlrev_b32 v{t2}, 1, v{vG}")
    R(f"v_xor_b32 v{t2}, v{vP8}, v{t2}")
    R(f"v_lshlrev_b32 v{t2}, 4, v{t2}")
    R(f"v_add_u32 v{dWO}, v{t1}, v{t2}")
    R(f"v_lshl_add_u32 v{t2}, v{vW}, 7, v{t2}")
    R(f"v_lshl_add_u32 v{dV}, v{vA}, 9, v{t2}")
    if STG == 32:
        for j in range(3, -1, -1):
            R(f"s_xor_b32 s40, s{sSTG}, {4096*j}"); R(f"s_add_u32 s40, s40, {4096-1024*j}")
            R(f"v_add_u32 v{dV+j}, s40, v{dV}")
    else:
        for j in range(1, 4): R(f"v_add_u32 v{dV+j}, {3072*j}, v{dV}")
    R(f"v_add_u32 v{rE}, {EB}, v{vST}")
    R(f"v_mul_u32_u24 v{t2}, 7168, v{vW}")
    R(f"v_add_u32 v{wP}, v{rE}, v{t2}")
    R(f"v_add_u32 v{wO}, v{wP}, v{t2}")
    R(f"v_lshrrev_b32 v{t3}, 1, v{vG}")
    R(f"v_lshl_add_u32 v{t3}, v{t3}, 4, v{vP16}")
    R(f"v_and_b32 v{t4}, 1, v{vG}")
    R(f"v_lshlrev_b32 v{t4}, 3, v{t4}")
    R(f"v_lshl_add_u32 v{t3}, v{t3}, 4, v{t4}")
    R(f"v_lshl_add_u32 v{t3}, v{t2}, 1, v{t3}")
    R(f"v_add_u32 v{wQ}, {EB}, v{t3}")
    if cfg.get("cpf"):
        R("s_getpc_b64 s[8:9]")
        E.label("L_pc")
        R("s_mov_b32 s10, L_end-L_pc"); R("s_mov_b32 s11, 0x20000")
        R(f"v_lshlrev_b32 v54, 7, v0"); R("s_lshr_b32 s40, s2, 3"); R("s_lshl_b32 s40, s40, 11")
        R(f"v_mov_b32 v55, 0x7ffffff0"); R(f"v_cmp_gt_u32 vcc, 16, v0"); R("s_nop 1"); R(f"v_cndmask_b32 v54, v55, v54, vcc")
        E.emit(Ins(f"buffer_load_dword v56, v54, s[8:11], s40 offen", "vmem", tag="pf"))
    R(f"s_lshl_b32 s40, s{sBB}, 2"); R(f"s_lshr_b32 s12, s{sH}, 2"); R("s_add_u32 s40, s40, s12"); R("s_lshl_b32 s40, s40, 11"); R(f"s_add_u32 s40, s40, {FLOFF}")
    R(f"s_add_u32 s{sSRD_FL}, s6, s40"); R(f"s_addc_u32 s{sSRD_FL+1}, s7, 0"); R(f"s_mov_b32 s{sSRD_FL+2}, 2048"); R(f"s_mov_b32 s{sSRD_FL+3}, 0x20000")
    R(f"s_lshl_b32 s40, s{sBB}, 2"); R(f"s_add_u32 s40, s40, s{sW}"); R("s_lshl_b32 s40, s40, 4"); R(f"s_add_u32 s40, s40, s{sH}"); R("s_lshl_b32 s40, s40, 7"); R(f"s_add_u32 s40, s40, {FLOFF}")
    R(f"s_add_u32 s{sSRD_FM}, s6, s40"); R(f"s_addc_u32 s{sSRD_FM+1}, s7, 0"); R(f"s_mov_b32 s{sSRD_FM+2}, 128"); R(f"s_mov_b32 s{sSRD_FM+3}, 0x20000")
    dq = [x for u, L in DQ[npro3:] for x in L]

    stamp_n = [1]
    def stamp():
        k = stamp_n[0]; stamp_n[0] += 1
        R(f"{'s_memrealtime' if cfg.get('rt', 1) and k != len(stamps) + 5 else 's_memtime'} s[{sSTAMP+2*k}:{sSTAMP+2*k+1}]")
    def skipf(i):
        if cfg.get("nodma") and i.kind == "vmem" and "lds" in i.text: return True
        if cfg.get("nost") and "buffer_store" in i.text: return True
        if cfg.get("novalu") and i.kind in ("valu", "trans", "perm"): return True
        return False

    wgap = {}
    def emit(x):
        if x.tag == "read":
            reads_left[x.res] -= 1; last_read[x.res] = now[0]
        if x.kind == "salu" and x.res is not None: E.wait_ds_res(lambda r: r == x.res)
        E.emit(x)
        for r in x.wr: wgap[r] = (now[0], x.kind)
    def ok(x, i): return x.after <= i and (x.pre is None or x.pre())
    def run_events(idx):
        for name, fn in events.get(idx, []):
            fn(); ev_done.add(name)
    def conflicts(x, y): return bool(x.rd & y.wr or x.wr & y.rd or x.wr & y.wr)
    def force_fifo(st, i, what):
        k = 0
        for kk, x in enumerate(st[:64]):
            if x.before <= i: k = kk + 1
        c = 0
        for x in st[:k]:
            assert ok(x, i), f"forced {what} not eligible at {i}: {x.text}"
            emit(x); c += x.cost
        del st[:k]
        return c
    c2 = [0]
    def force_vs(i):
        c2[0] = 0
        need = [False] * min(len(VS), 600)
        for k in range(len(need) - 1, -1, -1):
            if VS[k].before <= i: need[k] = True
            if need[k]:
                for kk in range(k):
                    if not need[kk] and conflicts(VS[k], VS[kk]): need[kk] = True
        c = 0
        sel = [VS[k] for k in range(len(need)) if need[k]]
        for x in sel:
            assert ok(x, i), f"forced valu not eligible at {i}: {x.text}"
            VS.remove(x); emit(x); c += x.cost
            c2[0] += x.cost
            if c2[0] >= 96 and dq and ok(dq[0], i):
                c2[0] = 0
                while dq and ok(dq[0], i):
                    y = dq.pop(0); emit(y); c += y.cost
                    if y.kind == "vmem": break
        return c
    WIN = cfg.get("win", 150)
    def ready(x, i):
        if not ok(x, i) or E.need_nops(x) > 0: return False
        k = E.ds_idx(x)
        if k >= 0 and any(wgap.get(r, (-99, 0))[1] == "ds" and i - wgap[r][0] < 10 for r in x.rd | x.wr): return False
        for r in x.rd:
            if r in wgap and wgap[r][1] == "trans" and wgap[r][0] >= i: return False
        return True
    def pick(pred, i):
        blocked = []
        n = 0
        for k, x in enumerate(VS):
            if x.after <= i:
                n += 1
                if n > WIN: return None
            if pred(x) and ready(x, i) and not any(conflicts(x, y) for y in blocked): return x
            blocked.append(x)
            if k > 400: return None
        return None
    ismem = lambda x: x.kind in ("ds", "vmem")
    is4 = lambda x: x.cost == 4 and not ismem(x)

    run_events(-1)
    if stamps: stamp()
    E.skip = skipf
    over = {}; lastdma = -10; lastb128 = -10; lastw = -10; idle = {}
    for i in range(END):
        now[0] = i
        ph = "QSPO"[(i >= S0) + (i >= P0) + (i >= O0)]
        if i % 28 == 0:
            E.comment(f"---- step {i//28} {units[i//28]}")
            if i // 28 in stamps: stamp()
            if cfg.get("padstep") == i // 28: R("s_memrealtime s[70:71]")
        c = force_fifo(RA, i - 4, "read") + force_fifo(RB, i - 4, "read") if i > 0 else force_fifo(RA, 0, "read") + force_fifo(RB, 0, "read")
        if i in (S0, O0): c += force_fifo(RB, i, "read")
        over[ph] = over.get(ph, 0) + c
        E.emit(mfma(i))
        bud = BUD
        if any(x.before <= i + 1 for x in VS[:600]):
            c = force_vs(i + 1); over[ph] = over.get(ph, 0) + max(0, c - bud); bud -= c
        run_events(i)
        if bud < BUD:
            continue
        cand = [q for q in (RA, RB) if q and ok(q[0], i)]
        cand.sort(key=lambda q: q[0].before)
        urgent = [q for q in cand if q[0].before <= i + 1 + sum(1 for x in q[:6] if x.before <= i + 6)]
        sp = cfg.get("dmasp", 4) if i >= cfg.get("fastuntil", 0) else cfg.get("fastsp", 2)
        if dq and dq[0].kind == "vmem" and dq[0].tag[0] == "K" and i < S0: sp = cfg.get("ksp", 8)
        if dq and dq[0].kind == "vmem" and dq[0].tag[0] in ("K", "V") and i >= S0: sp = cfg.get("msp", 4)
        if dq and dq[0].kind == "vmem" and dq[0].tag[0] == "rl": sp = cfg.get("rsp", 3)
        dma_due = dq and dq[0].kind == "vmem" and i - lastdma >= sp and E.need_nops(dq[0]) == 0
        x = None
        if dma_due and (not urgent or i - lastdma >= sp + 2):
            x = dq.pop(0); lastdma = i
            if urgent:
                emit(urgent[0].pop(0)); over[ph] = over.get(ph, 0) + 4
        elif urgent: x = urgent[0].pop(0)
        elif PF and PF[0].after <= i and i - lastdma >= 2: x = PF.pop(0)
        else:
            cand = [q for q in cand if not ("b128" in q[0].text and i - lastb128 < cfg.get("b128sp", 2))]
            if cand: x = cand[0].pop(0)
        if x is None:
            big = lambda z: not is4(z) and not (ismem(z) and z.cost > 8 and i - lastw < (cfg.get("wsp", 3) if z.kind == "ds" else cfg.get("ssp", 6)))
            y4 = pick(is4, i); y8 = pick(big, i)
            y = y8
            if y4 is not None and y8 is not None and VS.index(y4) < VS.index(y8):
                load = sum(z.cost for z in VS[:600] if z.before <= y4.before)
                if load / 8.0 > (y4.before - i) * cfg.get("urg", 0.6): y = y4
            if y is not None and not is4(y):
                VS.remove(y); x = y
                if ismem(y) and y.cost > 8: lastw = i
        if x is not None:
            if "read_b128" in x.text: lastb128 = i
            emit(x); bud -= x.cost
            if x.cost > BUD: over[ph] = over.get(ph, 0) + x.cost - BUD
        while bud >= 4:
            if dq and dq[0].kind == "salu" and ok(dq[0], i):
                emit(dq.pop(0)); bud -= 4; continue
            y = pick(is4, i)
            if y is None: break
            VS.remove(y); emit(y); bud -= 4
        if bud > 0: idle[ph] = idle.get(ph, 0) + bud
    now[0] = END
    over["tail"] = sum(x.cost for x in VS)
    for x in VS: emit(x)
    for x in dq: emit(x)
    assert not RA and not RB and not PF
    INK = cfg.get("ink", 1)
    if cfg.get("padstep") == 60: R("s_memrealtime s[70:71]")
    if INK:
        if stamps: stamp()
        E.skip = None
        import re as _re
        for tok in TAIL.split():
            m_ = _re.match(r"([a-z]+)(\d*)", tok)
            act((m_.group(1), int(m_.group(2))) if m_.group(2) else (m_.group(1),), True)
    if stamps:
        if not INK: stamp(); stamp(); stamp()
        R("s_waitcnt vmcnt(0)")
        stamp()
        R(f"s_memrealtime s[{sSTAMP+32}:{sSTAMP+33}]")
        R("s_waitcnt lgkmcnt(0)")
        n = stamp_n[0]
        R("s_add_u32 s8, s6, 0x8000000"); R("s_addc_u32 s9, s7, 0"); R("s_mov_b32 s10, 0x100000"); R("s_mov_b32 s11, 0x20000")
        R("s_lshl_b32 s12, s2, 2"); R(f"s_add_u32 s12, s12, s{sW}"); R("s_lshl_b32 s12, s12, 7")
        R("v_mov_b32 v2, s12")
        R(f"v_cmp_eq_u32 vcc, 0, v{vST}")
        R("s_and_saveexec_b64 s[14:15], vcc")
        for k in range(1, n):
            R(f"s_sub_u32 s13, s{sSTAMP+2*k}, s{sSTAMP+30 if cfg.get('rt', 1) and k != len(stamps) + 5 else sSTAMP}")
            R("v_mov_b32 v3, s13")
            R(f"buffer_store_dword v3, v2, s[8:11], 0 offen offset:{4*(k-1)}")
        R(f"v_mov_b32 v3, s{sSTAMP+30}")
        R(f"buffer_store_dword v3, v2, s[8:11], 0 offen offset:{4*30}")
        R(f"v_mov_b32 v3, s{sSTAMP+32}")
        R(f"buffer_store_dword v3, v2, s[8:11], 0 offen offset:{4*31}")
    R("s_waitcnt vmcnt(0)")
    if cfg.get("padT") or cfg.get("padstep") is not None:
        R("s_memrealtime s[72:73]"); R("s_waitcnt lgkmcnt(0)")
        if cfg.get("padG"):
            R("s_load_dwordx2 s[76:77], s[0:1], 48"); R("s_waitcnt lgkmcnt(0)"); R("s_mov_b32 s78, 256"); R("s_mov_b32 s79, 0x20000")
            R("s_not_b32 s75, s68"); R("v_mov_b32 v50, s75"); R(f"v_lshlrev_b32 v51, 20, v{vST}")
            R("buffer_atomic_umax v50, v51, s[76:79], 0 offen sc1"); R("s_waitcnt vmcnt(0)")
            R("s_add_u32 s74, s68, 4000")
            E.label("L_pad0")
            R("s_memrealtime s[72:73]"); R("s_waitcnt lgkmcnt(0)")
            R("s_sub_u32 s75, s72, s74"); R("s_cmp_lt_i32 s75, 0"); R("s_cbranch_scc1 L_pad0")
            R("v_mov_b32 v51, 0"); R("buffer_load_dword v50, v51, s[76:79], 0 offen sc1"); R("s_waitcnt vmcnt(0)")
            R("v_readfirstlane_b32 s68, v50"); R("s_nop 3"); R("s_not_b32 s68, s68")
        if cfg.get("padT"): R(f"s_add_u32 s74, s68, {cfg['padT']}")
        else: R("s_sub_u32 s74, s70, s68"); R("s_add_u32 s74, s74, s72")
        E.label("L_pad")
        R("s_memrealtime s[72:73]"); R("s_waitcnt lgkmcnt(0)")
        R("s_sub_u32 s75, s72, s74"); R("s_cmp_lt_i32 s75, 0"); R("s_cbranch_scc1 L_pad")
    E.label("L_exit")
    R("s_endpgm")
    fb_lines = []
    if cfg.get("fb", 1) and INK:
        import gen_c32
        keep = E.out; E.out = []
        E.label("L_fallback")
        R("s_waitcnt vmcnt(0) lgkmcnt(0)"); R("s_nop 15"); R("s_barrier")
        R(f"v_accvgpr_write_b32 a250, v{vFO}"); R(f"v_accvgpr_write_b32 a251, v{vFV}")
        R(f"v_lshrrev_b32 v0, 4, v{vST}"); R(f"s_lshl_b32 s40, s{sW}, 6"); R("v_add_u32 v0, s40, v0")
        E.out += gen_c32.build({"sB": sBB, "sH": sH, "kearly": 0})
        E.label("L_ftail")
        R("s_waitcnt vmcnt(0) lgkmcnt(0)"); R("s_nop 15"); R("s_barrier")
        R(f"v_lshlrev_b32 v{vST}, 4, v1")
        R(f"v_accvgpr_read_b32 v{vFO}, a250"); R(f"v_accvgpr_read_b32 v{vFV}, a251")
        R(f"v_and_b32 v{vFA}, 0xf0, v{vST}"); R(f"v_lshlrev_b32 v{vFA}, 3, v{vFA}")
        reduce_setup()
        E.vmq = []; E.vm_known = 1 << 30; E.vm_len = 0; E.dsq = []
        publish(7); nchk[0] = npoll[0]; poll(); check(7, 7)
        for p in range(7):
            for x in rloads(p): E.emit(x)
        for p in range(7): rsum(p)
        for q in range(4): rstore(q)
        R("s_waitcnt vmcnt(0)"); R("s_endpgm")
        fb_lines = E.out; E.out = keep
    for k, (need, mine) in enumerate(spins):
        E.label(f"L_spin{k}")
        R("s_mov_b32 s28, 0")
        E.label(f"L_spinl{k}")
        R(f"buffer_load_dword v{vFN}, v{vFA}, {srd(sSRD_FL)}, 0 offen sc1")
        R("s_waitcnt vmcnt(0)")
        check_cond(need)
        R(f"s_cbranch_scc1 L_spun{k}")
        R("s_add_u32 s28, s28, 1")
        R("s_and_b32 s29, s28, 7")
        R(f"s_cbranch_scc1 L_spinl{k}")
        publish(mine)
        R("s_cmp_lt_u32 s28, 400000")
        R(f"s_cbranch_scc1 L_spinl{k}")
        R(f"s_branch L_spun{k}")
    E.label("L_end")
    E.out += fb_lines
    print(f"main: nops {E.nops}, over {over}, idle {idle}, instrs {E.pos}", file=sys.stderr)

    KD = """.p2align 6
.amdhsa_kernel %s
  .amdhsa_next_free_vgpr %d
  .amdhsa_next_free_sgpr %d
  .amdhsa_accum_offset %d
  .amdhsa_group_segment_fixed_size 0
  .amdhsa_kernarg_size 64
  .amdhsa_user_sgpr_count 2
  .amdhsa_user_sgpr_kernarg_segment_ptr 1
  .amdhsa_system_sgpr_workgroup_id_x 1
.end_amdhsa_kernel
"""
    if INK:
        E.out.append('.section .rodata,"a"\n' + KD % (KN, 512, 102, 256))
        return "\n".join(E.out)
    E.out.append(""".globl gqa_reduce_kernel
.p2align 8
.type gqa_reduce_kernel,@function
gqa_reduce_kernel:""")
    R("s_cmp_ge_u32 s2, 448")
    R("s_cbranch_scc1 LR_exit")
    R("s_load_dwordx2 s[4:5], s[0:1], 40")
    R("s_load_dwordx2 s[6:7], s[0:1], 56")
    R("v_lshrrev_b32 v2, 6, v0")
    R("v_and_b32 v1, 63, v0")
    R("v_readfirstlane_b32 s3, v2")
    R(f"s_mul_hi_u32 s8, s2, {(2**32 + 27)//28}")
    R("s_mul_i32 s9, s8, 28")
    R("s_sub_u32 s9, s2, s9")
    R(f"s_mul_hi_u32 s10, s9, {(2**32 + 6)//7}")
    R("s_mul_i32 s11, s10, 7")
    R("s_sub_u32 s11, s9, s11")
    R("v_lshlrev_b32 v5, 4, v1")
    R("v_and_b32 v3, 15, v1"); R("v_lshrrev_b32 v4, 4, v1")
    R("s_mov_b32 s24, 14336")
    R("s_cmp_eq_u32 s3, 3")
    R("s_cbranch_scc0 LR_a")
    R("v_lshlrev_b32 v3, 1, v1"); R("v_and_b32 v3, 15, v3"); R("v_lshrrev_b32 v4, 3, v1")
    R("s_mov_b32 s24, 896")
    R("v_mov_b32 v6, 0x40000000")
    R("v_cmp_lt_u32 vcc, 31, v1")
    R("s_nop 1")
    R("v_cndmask_b32 v5, v5, v6, vcc")
    R("v_cndmask_b32 v3, v3, v6, vcc")
    R("v_min_u32 v3, 0x10000, v3")
    E.label("LR_a")
    R("v_mul_u32_u24 v7, 896, v3")
    R("v_lshl_add_u32 v7, v4, 3, v7")
    R("s_mul_i32 s13, s8, 1605632")
    R("s_mul_i32 s14, s9, 3584")
    R("s_add_u32 s13, s13, s14")
    R("s_lshl_b32 s14, s3, 10")
    R("s_add_u32 s13, s13, s14")
    R("s_waitcnt lgkmcnt(0)")
    R("s_add_u32 s16, s6, s13"); R("s_addc_u32 s17, s7, 0"); R("s_mov_b32 s18, 1605632"); R("s_mov_b32 s19, 0x20000")
    for h in range(16):
        R(f"s_mov_b32 s15, {h*100352}")
        R(f"buffer_load_dwordx4 v[{8+4*h}:{11+4*h}], v5, s[16:19], s15 offen {cfg.get('rlfl','')}")
    R("s_mul_i32 s13, s8, 100352")
    R("s_add_u32 s20, s4, s13"); R("s_addc_u32 s21, s5, 0"); R("s_mov_b32 s22, 100352"); R("s_mov_b32 s23, 0x20000")
    R("s_mul_i32 s14, s3, 28672")
    R("s_lshl_b32 s15, s11, 7"); R("s_add_u32 s14, s14, s15")
    R("s_lshl_b32 s15, s10, 5"); R("s_add_u32 s14, s14, s15")
    R("s_add_u32 s24, s24, s14")
    for h in range(16):
        R(f"s_waitcnt vmcnt({15-h})")
        for r in range(4):
            src = 8 + 4 * h + r
            if h == 0:
                R(f"v_lshlrev_b32 v{72+2*r}, 16, v{src}"); R(f"v_and_b32 v{73+2*r}, 0xffff0000, v{src}")
            else:
                R(f"v_lshlrev_b32 v80, 16, v{src}"); R(f"v_and_b32 v81, 0xffff0000, v{src}")
                R(f"v_add_f32 v{72+2*r}, v{72+2*r}, v80"); R(f"v_add_f32 v{73+2*r}, v{73+2*r}, v81")
    for r in range(4): R(f"v_cvt_pk_bf16_f32 v{84+r}, v{72+2*r}, v{73+2*r}")
    R("buffer_store_dwordx2 v[84:85], v7, s[20:23], s14 offen")
    R("buffer_store_dwordx2 v[86:87], v7, s[20:23], s24 offen")
    if stamps:
        R("s_waitcnt vmcnt(0)")
        R("s_memrealtime s[24:25]")
        R("s_waitcnt lgkmcnt(0)")
        R("s_add_u32 s16, s6, 0x8100000"); R("s_addc_u32 s17, s7, 0"); R("s_mov_b32 s18, 0x100000"); R("s_mov_b32 s19, 0x20000")
        R("s_lshl_b32 s12, s2, 2"); R("v_mov_b32 v2, s12"); R("v_mov_b32 v3, s24")
        R("v_cmp_eq_u32 vcc, 0, v0")
        R("s_and_saveexec_b64 s[14:15], vcc")
        R("buffer_store_dword v3, v2, s[16:19], 0 offen")
    R("s_waitcnt vmcnt(0)")
    E.label("LR_exit")
    R("s_endpgm")
    E.out.append(""".section .rodata,"a"
.p2align 6
.amdhsa_kernel gqa_main_kernel
  .amdhsa_next_free_vgpr 512
  .amdhsa_next_free_sgpr 102
  .amdhsa_accum_offset 256
  .amdhsa_group_segment_fixed_size 0
  .amdhsa_kernarg_size 64
  .amdhsa_user_sgpr_count 2
  .amdhsa_user_sgpr_kernarg_segment_ptr 1
  .amdhsa_system_sgpr_workgroup_id_x 1
.end_amdhsa_kernel
.p2align 6
.amdhsa_kernel gqa_reduce_kernel
  .amdhsa_next_free_vgpr 88
  .amdhsa_next_free_sgpr 32
  .amdhsa_accum_offset 88
  .amdhsa_group_segment_fixed_size 0
  .amdhsa_kernarg_size 64
  .amdhsa_user_sgpr_count 2
  .amdhsa_user_sgpr_kernarg_segment_ptr 1
  .amdhsa_system_sgpr_workgroup_id_x 1
.end_amdhsa_kernel
""")
    return "\n".join(E.out)

if __name__ == "__main__":
    ap = argparse.ArgumentParser()
    ap.add_argument("-o", default="a16.s")
    ap.add_argument("kv", nargs="*")
    a = ap.parse_args()
    cfg = {}
    for kv in a.kv:
        k, v = kv.split("=", 1)
        try: cfg[k] = eval(v)
        except Exception: cfg[k] = v
    txt = build(cfg)
    open(a.o, "w").write(txt)
```

```python
import sys, math, struct, argparse

def f2u(x): return struct.unpack("<I", struct.pack("<f", x))[0]
def V(lo, n=1): return {("v", lo + i) for i in range(n)}
def Ac(lo, n=1): return {("a", lo + i) for i in range(n)}
def vr(lo, n): return f"v[{lo}:{lo+n-1}]" if n > 1 else f"v{lo}"
def ar(lo, n): return f"a[{lo}:{lo+n-1}]"
INF = 1 << 30

class Ins:
    def __init__(s, text, kind, rd=(), wr=(), cost=4, after=-1, before=INF, tag=None, rdc=(), pre=None, res=None, passes=4):
        s.text, s.kind, s.rd, s.wr, s.cost = text, kind, set(rd), set(wr), cost
        s.after, s.before, s.tag, s.rdc = after, before, tag, set(rdc)
        s.pre = pre
        s.res = res
        s.passes = passes

class Emitter:
    def __init__(s):
        s.out = []; s.pos = 0
        s.dsq = []
        s.vmq = []
        s.lastw = {}; s.lastc = {}; s.lastst = {}
        s.nops = 0; s.skip = None
    def raw(s, text, n=1):
        s.out.append("    " + text); s.pos += n
    def label(s, l): s.out.append(l + ":")
    def comment(s, c): s.out.append("    ; " + c)
    def need_nops(s, i):
        need = 0
        def req(p, d):
            nonlocal need
            need = max(need, d - (s.pos - p - 1))
        for r in i.rd | i.wr:
            if r in s.lastw:
                k, p = s.lastw[r]
                if k == "mfma":
                    if i.kind == "mfma":
                        if r in i.rd and r not in i.rdc: req(p, 8)
                    else: req(p, 8)
                if r in i.rd:
                    if k in ("valu", "trans") and i.kind == "mfma": req(p, 2)
                    if k == "trans" and i.kind in ("valu", "trans", "perm", "vmem", "ds"): req(p, 1)
                    if k in ("valu", "trans") and i.kind == "perm": req(p, 2)
                    if k == "salu" and r == ("s", "m0") and i.kind == "vmem": req(p, 1)
        if i.kind in ("valu", "trans", "perm"):
            for r in i.wr:
                if r in s.lastc: req(s.lastc[r], 3)
                if r in s.lastst: req(s.lastst[r], 2)
        if i.kind == "mfma":
            for r in i.wr:
                if r in s.lastst: req(s.lastst[r], 2)
        return need
    def ds_idx(s, i):
        idx = -1
        for k, (d, _) in enumerate(s.dsq):
            if d & (i.rd | i.wr): idx = k
        return idx
    def wait_ds_idx(s, idx):
        n = len(s.dsq) - idx - 1
        if n > 15:
            idx += n - 15; n = 15
        s.raw(f"s_waitcnt lgkmcnt({n})")
        s.dsq = s.dsq[idx + 1:]
    def wait_ds_res(s, pred):
        idx = -1
        for k, (_, r) in enumerate(s.dsq):
            if r is not None and pred(r): idx = k
        if idx >= 0: s.wait_ds_idx(idx)
    def emit(s, i):
        idx = s.ds_idx(i)
        if idx >= 0: s.wait_ds_idx(idx)
        if i.kind == "ds" and len(s.dsq) >= 13: s.wait_ds_idx(len(s.dsq) - 1 - 9)
        n = s.need_nops(i)
        if n > 0:
            s.nops += n
            while n > 0:
                k = min(n, 16); s.raw(f"s_nop {k-1}", k); n -= k
        if not (s.skip and s.skip(i)): s.out.append("    " + i.text)
        p = s.pos; s.pos += 1
        kind = "valu" if i.kind == "perm" else i.kind
        for r in i.wr: s.lastw[r] = (kind, p)
        if i.kind == "mfma":
            for r in i.rdc: s.lastc[r] = p
        if i.kind == "ds": s.dsq.append((set(i.wr), i.res))
        if i.kind == "vmem":
            s.vmq.append(i.tag)
            if "buffer_store" in i.text:
                for r in i.rd: s.lastst[r] = p
    def wait_vm(s, tags, cnt=4):
        idx = -1
        for k, t in enumerate(s.vmq):
            if t in tags: idx = k
        for t in tags:
            assert s.vmq.count(t) == cnt, f"unit {t} not fully issued before its wait ({s.vmq.count(t)})"
        n = min(63, len(s.vmq) - idx - 1)
        if n < getattr(s, "vm_known", 1 << 30) + (len(s.vmq) - getattr(s, "vm_len", 0)):
            s.raw(f"s_waitcnt vmcnt({n})")
            s.vm_known = n; s.vm_len = len(s.vmq)

RING = 24576; NU = 6; UNIT = 4096
EB = 4 * RING
LB = EB + 57344
vLANE = 53
dK = 1
dV = 5
dWO = 9
vST = 10
vST2 = 5
rK = 12
rV = 16
rWO = 20
rE = 22
wP = 23
wO = 24
vL = 25
SACC = [32, 60]; PR = [88, 116]; OACC = 144
dX = 116
dWQ = 120
rX = 124
rWQ = 126
wQ = 130
AQ = 0
AK = 224
sSRD_X, sSRD_WQ, sSRD_K, sSRD_V, sSRD_WO, sSRD_WS = 16, 20, 24, 28, 32, 36
sRB = 42; sOFF = 43; sC = 44; sXB = 45; sW = 3; sST = 47
sSTAMP = 68
sSRD_FL, sSRD_FM, sSRD_PB, sSRD_OUT = 8, 12, 60, 64
sH = 56; sRO = 57; sBB = 58
FLOFF = 0x2000000
sSTO = 48
sPFO = 55
sW2K = 59
sSQ = 47; sSX = 41
vPFK = 11; vPFV = 11
def srd(n): return f"s[{n}:{n+3}]"
assert vL + 7 <= 32

def build(cfg):
    BUD = cfg.get("budget", 8)
    stamps = cfg.get("stamps", [])
    ntKV = "nt" if cfg.get("ntkv", 1) else ""
    ntW = "nt" if cfg.get("ntw", 0) else ""
    ntX = "nt" if cfg.get("ntx", 0) else ""
    stfl = cfg.get("stfl", "sc1")
    DMIN = cfg.get("dmin", 8)
    E = Emitter(); R = E.raw
    BL = 56
    Q0, S0, P0, O0, END = 0, 7 * BL, 15 * BL, 23 * BL, 30 * BL

    units = [("WQ", t) for t in range(14)] + [("K", i, h) for i in range(8) for h in range(2)] \
          + [("V", k) for k in range(16)] + [("WO", p, kh) for p in range(7) for kh in range(2)]
    uidx = {u: k for k, u in enumerate(units)}
    ESLOT = {8: 0, 9: 1, 10: 2, 11: 3}
    def uoff(u):
        if u[0] == "WO" and 2 * u[1] + u[2] >= 12: return ((uidx[u] - 10) % NU) * UNIT
        return (uidx[u] % NU) * UNIT
    rWOE = rK

    M = []
    def qa(j, ks, mt): return 32 * (j & 1) + 16 * ks + 4 * mt
    def qb(j, ks, nu): return 64 + 56 * (j & 1) + 28 * ks + 4 * nu
    def oacc(mt, nu): return OACC + 4 * (4 * nu + mt)
    first_use = {}; last_use = {}
    def use(name, i):
        first_use.setdefault(name, i); last_use[name] = i
    done_at = {}
    MQ = cfg.get("mq", 1)
    def qaq(j, ks, mt): return 176 + 16 * ks + 4 * mt if (MQ and j == 6) else qa(j, ks, mt)
    for js in ([[0], [1], [2], [3], [4], [5, 6]] if MQ else [[j] for j in range(7)]):
        for nu in range(7):
            for mt in range(4):
                for j in js:
                    for ks in range(2):
                        i = len(M)
                        M.append((oacc(mt, nu), qaq(j, ks, mt), qb(j, ks, nu), j == 0 and ks == 0))
                        use(("QA", j, ks, mt), i); use(("QB", j, ks, nu), i); done_at[("Q", mt, nu)] = i
    def ka(step, k): return AK + 16 * (step & 1) + 4 * k
    SX = OACC + 112 - 28
    sbuf = [SACC[0], SACC[1], SX, SACC[0], SACC[1], SX, SACC[0], SACC[1]] if cfg.get("s3", 1) else [SACC[b & 1] for b in range(8)]
    for b in range(8):
        for h in range(2):
            for nu in range(7):
                for k in range(4):
                    i = len(M)
                    M.append((sbuf[b] + 4 * nu, ka(2 * b + h, k), AQ + 4 * ((4 * h + k) * 7 + nu), h == 0 and k == 0))
                    use(("SA", b, h, k), i); use(("SB", 4 * h + k, nu), i); done_at[("S", b, nu)] = i
                    use(("Sacc", b, nu), i)
    for j in range(8):
        for nu in range(7):
            for mt in range(4):
                for ks in range(2):
                    i = len(M)
                    M.append((oacc(mt, nu), qa(j, ks, mt), qb(j, ks, nu), j == 0 and ks == 0))
                    use(("VA", j, ks, mt), i); use(("VB", j, ks, nu), i); done_at[("O", mt, nu)] = i
    def oa(p, kap): return ("a", AK + 4 * kap) if p % 2 == 0 else ("v", PR[0] + 4 * kap)
    for p in range(7):
        for nu in range(7):
            for kap in range(8):
                i = len(M)
                M.append((SACC[p & 1] + 4 * nu, oa(p, kap), AQ + 4 * (kap * 7 + nu), kap == 0))
                use(("OA", p, kap >> 2, kap & 3), i); use(("OB", kap, nu), i); done_at[("Y", p, nu)] = i
                use(("Yacc", p, nu), i)
    assert len(M) == END
    def mfma(i):
        acc, a, b, cz = M[i]
        Cs = set() if cz else V(acc, 4)
        if not isinstance(a, tuple): a = ("a", a)
        at, as_ = (ar(a[1], 4), Ac(a[1], 4)) if a[0] == "a" else (vr(a[1], 4), V(a[1], 4))
        return Ins(f"v_mfma_f32_16x16x32_bf16 {vr(acc,4)}, {at}, {ar(b,4)}, {'0' if cz else vr(acc,4)}", "mfma",
                   rd=as_ | Ac(b, 4) | Cs, wr=V(acc, 4), rdc=Cs, cost=8)

    ev_done = set()
    events = {}
    def add_event(idx, name, fn): events.setdefault(idx, []).append((name, fn))
    def after_ev(*names): return lambda: all(n in ev_done for n in names)

    M0 = {("s", "m0")}
    reads_left = {}
    last_read = {}; now = [0]
    def res_idle(res):
        return reads_left.get(res, 0) == 0 and not any(r == res for _, r in E.dsq)

    def dma_unit(u, pre=None):
        L = []
        k = u[0]
        if k == "X":
            L.append(Ins(f"s_add_u32 m0, s{sXB}, {(u[1] % 4) * 16384}", "salu", wr=M0, pre=pre))
        elif k == "WO" and 2 * u[1] + u[2] in ESLOT:
            L.append(Ins(f"s_add_u32 m0, s{sXB}, {ESLOT[2 * u[1] + u[2]] * 16384}", "salu", wr=M0, pre=pre))
        else:
            L.append(Ins(f"s_add_u32 m0, s{sRB}, {uoff(u)}", "salu", wr=M0, pre=pre))
        def smov(val): L.append(Ins(f"s_mov_b32 s{sOFF}, {val}", "salu"))
        def sxor(val):
            smov(val)
        def ld(vreg, sr, j, fl):
            L.append(Ins(f"buffer_load_dwordx4 v{vreg}, {srd(sr)}, s{sOFF} offen offset:{j*1024} {fl} lds".replace("  ", " "),
                         "vmem", rd=M0 | V(vreg), tag=u, cost=8))
        if k == "X":
            if cfg.get("rot"): L.append(Ins(f"s_mov_b32 s{sOFF}, s{sSTO+u[1]}", "salu"))
            else: smov(128 * u[1])
            for j in range(4): ld(dX + j, sSRD_X, j, ntX)
        elif k == "WQ":
            if cfg.get("rot"):
                L.append(Ins(f"s_lshl_b32 s{sOFF}, s{sSTO+(u[1]>>1)}, 12", "salu"))
                if u[1] & 1: L.append(Ins(f"s_bitset1_b32 s{sOFF}, 18", "salu"))
            else: smov(u[1] * 32 * 8192)
            for j in range(4): ld(dWQ + j, sSRD_WQ, j, ntW)
        elif k == "K":
            sxor((u[1] >> 1) * 65536 + (u[1] & 1) * 8192 + u[2] * 256)
            for j in range(4): ld(dK + j, sSRD_K, j, ntKV)
        elif k == "V":
            sxor(u[1] * 16384)
            for j in range(4): ld(dV + j, sSRD_V, j, ntKV)
        elif k == "WO":
            for j in range(4):
                smov(u[2] * 128 * 896 + u[1] * 128 + j * (8 * 896 - 1024)); ld(dWO, sSRD_WO, j, "nt" if cfg.get("nto") else "")
        return L

    def rd(kind, dst, n, areg, off, res, after, before, pre=None):
        assert 0 <= off < 65536
        reads_left[res] = reads_left.get(res, 0) + 1
        if not isinstance(dst, tuple): dst = ("a", dst)
        dt, ds_ = (ar(dst[1], n), Ac(dst[1], n)) if dst[0] == "a" else (vr(dst[1], n), V(dst[1], n))
        return Ins(f"{kind} {dt}, v{areg} offset:{off}", "ds", rd=V(areg), wr=ds_, res=res,
                   after=after, before=max(before, after + 1), pre=pre, tag="read")

    RA = []; RB = []
    MID = cfg.get("mid", 40)
    A1, A2 = cfg.get("a1", 6), cfg.get("a2", 30)
    twait = {}
    def vmwait(tags): return (lambda: None) if cfg.get("novmw") else (lambda: E.wait_vm(tags))
    def bar(tags=(), wres=None, idle=()):
        def f():
            for r in idle: assert reads_left.get(r, 0) == 0, f"barrier releases {r} with reads pending"
            if wres is not None:
                assert not any(x.kind == "ds" and x.res is not None and wres(x.res) for x in VS), "publishing barrier before all writes were emitted"
            E.wait_ds_res(lambda r: r in idle or (wres is not None and wres(r)))
            if tags: E.wait_vm(list(tags))
            if not cfg.get("nobar"): R("s_barrier")
        return f
    def areads(base, j, kind, fu, areg, estride, busy=None, qa=qa):
        for ks in range(2):
            u = (kind, 2 * j + ks)
            at = base + (j - 1) * BL + ((A1, A2)[ks] if base == 0 else (cfg.get("v1", 6), cfg.get("v2", 30))[ks])
            if base == 0 and j == 0: at = -1
            if base == 0 and MQ and j == 5: at = 4 * BL + (0, 10)[ks]
            if base == 0 and MQ and j == 6: at = 4 * BL + (22, 34)[ks]
            name = ("Wa", u)
            add_event(at, name, vmwait([u])); twait[u] = at
            for mt in range(4):
                a0 = at if busy is None else max(at, busy(qa(j, ks, mt)))
                for e in range(2):
                    RA.append(rd("ds_read_b64_tr_b16", qa(j, ks, mt) + 2 * e, 2, areg + mt, uoff(u) + e * estride, u, a0,
                                 first_use[(fu, j, ks, mt)] - DMIN, after_ev(name)))
    XE = (5 * BL + cfg.get("xem", 18)) if MQ else (6 * BL + cfg.get("xe", 12))
    for j in range(7):
        at = (j - 1) * BL + MID if j > 0 else -1
        if MQ and j == 5: at = 4 * BL + 6
        if MQ and j == 6: at = 4 * BL + 44
        name = ("Bx", j)
        add_event(at, name, bar(tags=[("X", j)], idle=[("X", j - 1)] if 0 < j < 4 else []))
        areads(0, j, "WQ", "QA", rWQ, 512, qa=qaq)
        for nu in range(7):
            for ks in range(2):
                a0 = at
                if j >= 2: a0 = max(at, last_use[("QB", j - 2, ks, nu)])
                RB.append(rd("ds_read_b128", qb(j, ks, nu), 4, rX + ks, (j % 4) * 16384 + nu * 2048, ("X", j), a0,
                             min(first_use[("QB", j, ks, nu)] - DMIN, j * BL + MID - 6, XE - 4), after_ev(name)))
    add_event(XE, "Bxe", bar(idle=[("X", 3), ("X", 4), ("X", 5), ("X", 6)]))
    for st in range(16):
        b, h = st >> 1, st & 1
        at = S0 + (st - 1) * 28 + cfg.get("kat", 10)
        name = ("Wk", st)
        add_event(at, name, vmwait([("K", b, h)])); twait[("K", b, h)] = at
        RA += [rd("ds_read_b128", ka(st, k), 4, rK + k, uoff(("K", b, h)), ("K", b, h), at,
                  first_use[("SA", b, h, k)] - DMIN, after_ev(name)) for k in range(4)]
    add_event(S0 - 1, "Bq", bar(wres=lambda r: r == "qw"))
    for h in range(2):
        for nu in range(7):
            for k in range(4):
                kap = 4 * h + k
                RB.append(rd("ds_read_b128", AQ + 4 * (kap * 7 + nu), 4, rE, (kap * 7 + nu) * 1024, "q", S0 - 1,
                             first_use[("SB", kap, nu)] - DMIN, after_ev("Bq")))
    add_event(S0 + BL + 4, "Bqe", bar(idle=["q"]))
    def qbusy(reg): return last_use[("SB",) + divmod((reg - AQ) // 4, 7)]
    for j in range(8):
        at = P0 + (j - 1) * BL + MID
        c = j >> 1
        name = ("Bp", j & ~1)
        if j == 0: add_event(at, name, bar(wres=lambda r: r in (("pw", 0), ("pw", 1))))
        elif j == 2: add_event(at, name, bar(idle=[("P", 0)]))
        elif j == 4: add_event(at, name, bar(idle=[("P", 1)], wres=lambda r: r == ("pw", 2)))
        elif j == 6: add_event(at, name, bar(idle=[("P", 2)], wres=lambda r: r in (("pw", 3), "lw")))
        areads(P0, j, "V", "VA", rV, 2048, qbusy if j < 2 else None)
        if j & 1: at = P0 + (j - 1) * BL + cfg.get("mid2", 30)
        for nu in range(7):
            for ks in range(2):
                a0 = max(at, qbusy(qb(j, ks, nu))) if j < 2 else at
                wprod = 2 * (j & 1) + ks
                RB.append(rd("ds_read_b128", qb(j, ks, nu), 4, rE, (c & 1) * 28672 + (wprod * 7 + nu) * 1024, ("P", c), a0,
                             min(first_use[("VB", j, ks, nu)] - DMIN, P0 + j * BL + (MID - 6 if j < 7 else cfg.get("xe", 12) - 4)), after_ev(name)))
    add_event(P0 + 7 * BL + cfg.get("xe", 12), "Bpe", bar(idle=[("P", 3)]))
    O1 = cfg.get("oat1", -1)
    add_event(O0 - 1, "Bo_x", bar(wres=lambda r: r == "ow", idle=[("WO", 0, 0), ("WO", 0, 1)], tags=[("WO", 1, 0), ("WO", 1, 1)] if O1 < 0 else []))
    for p in range(7):
        at = O0 + (p - 1) * BL + cfg.get("oat", 24)
        name = ("Bo", p)
        if p == 0: at = O0 - BL + cfg.get("oat0", 24)
        if p == 1 and O1 < 0: name = "Bo_x"; at = O0
        elif p == 1:
            at = O0 + O1
            add_event(at, name, bar(tags=[("WO", p, 0), ("WO", p, 1)]))
        elif p == 2:
            at = O0 + BL - 2
            add_event(at, name, bar(tags=[("WO", p, 0), ("WO", p, 1)], idle=["o", ("WO", 1, 0), ("WO", 1, 1)]))
        else: add_event(at, name, bar(tags=[("WO", p, 0), ("WO", p, 1)]))
        twait[("WO", p, 0)] = twait[("WO", p, 1)] = at if (p != 1 or O1 >= 0) else O0 - 1
        if p == 2: at = O0 + BL + 8
        for h in range(2):
            st = 2 * p + h
            for k in range(4):
                for e in range(2):
                    if st in ESLOT: areg, off = rWOE, ESLOT[st] * 16384 + k * 4096 + e * 2048
                    else: areg, off = rWO + (k >> 1), (k & 1) * RING + uoff(("WO", p, h)) + e * 2048
                    d = oa(p, 4 * h + k)
                    bef = first_use[("OA", p, h, k)] - DMIN
                    if p == 0: bef = min(bef, O0 - 5)
                    if p == 1: bef = min(bef, O0 + max(O1, 0) + ((48 - max(O1, 0)) * (8 * h + 2 * k + e)) // 16 + 2)
                    RA.append(rd("ds_read_b64_tr_b16", (d[0], d[1] + 2 * e), 2, areg, off, ("WO", p, h), at, bef, after_ev(name)))
    for nu in range(7):
        for kap in range(8):
            RB.append(rd("ds_read_b128", AQ + 4 * (kap * 7 + nu), 4, rE, (kap * 7 + nu) * 1024, "o", O0 - 1,
                         first_use[("OB", kap, nu)] - DMIN, after_ev("Bo_x")))

    DQ = []
    order = []
    xs = [("X", j) for j in range(7)]
    order = [xs[0], units[0], units[1], xs[1], units[2], units[3], xs[2], units[4], units[5], xs[3]]
    k = 6
    for j in range(4, 7):
        order += [units[k], units[k + 1], xs[j]]; k += 2
    order += units[k:]
    if cfg.get("xlast"):
        order = [xs[0], units[0], units[1]]
        for j in range(1, 7): order += [units[2 * j], units[2 * j + 1], xs[j]]
        order += units[14:]
    for u in order:
        if u[0] == "X":
            pre = after_ev(("Bx", u[1] - 3)) if u[1] >= 4 else None
        else:
            k = uidx[u]
            if k < NU: pre = None
            elif units[k - NU][0] == "WO":
                st = 2 * u[1] + u[2]
                pre = after_ev("Bo_x") if st < 8 else after_ev(("Bo", 2))
            else:
                pre = (lambda r: (lambda: reads_left[r] == 0 and now[0] - last_read[r] >= cfg.get("rel", 7)))(units[k - NU])
        L = dma_unit(u, pre)
        if cfg.get("look") and u[0] in cfg.get("lookk", ("K", "V")):
            k = uidx[u]
            n_ = k - 14
            if n_ >= cfg.get("nfree", 7):
                L[0].after = min(int(S0 + cfg.get("poff", 10) + (n_ - cfg.get("nfree", 7)) * cfg.get("pace", 35)), twait[units[k - cfg["look"]]])
        if u[0] != "X" and uidx[u] >= NU and units[uidx[u] - NU][0] != "WO": L[0].res = units[uidx[u] - NU]
        if cfg.get("rate") and u[0] in ("K", "V", "WO") and uidx[u] < 46 + cfg.get("nwo", 6):
            m_ = 4 * (uidx[u] - 14)
            lds_ = [x for x in L if x.kind == "vmem"]
            for j_, x in enumerate(lds_):
                mm = m_ + j_
                t_ = cfg.get("g0", 8.5) * 28 + min(mm, 128) * cfg["rate"] + max(0, mm - 128) * cfg.get("rate2", cfg["rate"])
                if t_ > S0: t_ -= cfg.get("tgap", 0)
                x.after = int(t_)
            L[0].after = lds_[0].after - 4
        if u[0] == "WO" and 2 * u[1] + u[2] < len(cfg.get("woat", [])): L[0].after = O0 + cfg["woat"][2 * u[1] + u[2]]
        if cfg.get("wopfq") is not None and u[0] != "X" and uidx[u] == 46 + cfg["wopfq"]:
            L.insert(0, Ins(f"buffer_load_dword v{vPFV}, v{vPFV}, {srd(sSRD_WO)}, 0 offen", "vmem", rd=V(vPFV), tag=("pf",), cost=8, after=O0 + cfg.get("pfat", -10000)))
        DQ.append((u, L))

    def valu(text, rd_, wr_, after, before=INF, kind="valu", cost=4, pre=None):
        return Ins(text, kind, rd=rd_, wr=wr_, after=after, before=before, cost=cost, pre=pre)
    VS = []
    for nu in range(7):
        wr = []
        for mt in range(4):
            aft = done_at[("Q", mt, nu)]
            r = oacc(mt, nu)
            for x in range(4): VS.append(valu(f"v_mul_f32 v{r+x}, s{sC}, v{r+x}", V(r + x), V(r + x), aft, S0))
            VS += wr
            VS.append(valu(f"v_cvt_pk_bf16_f32 v{r}, v{r}, v{r+1}", V(r, 2), V(r), aft, S0))
            VS.append(valu(f"v_cvt_pk_bf16_f32 v{r+1}, v{r+2}, v{r+3}", V(r + 2, 2), V(r + 1), aft, S0))
            off = ((mt >> 1) * 7 + nu) * 1024 + (mt & 1) * 512
            wr = [Ins(f"ds_write_b64 v{wQ}, {vr(r,2)} offset:{off}", "ds", rd=V(wQ) | V(r, 2), res="qw",
                      after=aft, before=S0, pre=after_ev("Bxe"), cost=12)]
        VS += wr
    def pw(c, nu, hf, aft, bef, evn):
        r = PR[c & 1] + 4 * nu + 2 * hf
        return Ins(f"ds_write_b64 v{wP}, {vr(r,2)} offset:{(c&1)*28672+nu*1024+8*hf}", "ds", rd=V(wP) | V(r, 2), res=("pw", c),
                   after=aft, before=bef, pre=after_ev(evn), cost=12)
    pend = []
    WS = []
    pvfirst = {}
    for i in range(P0, P0 + BL): pvfirst.setdefault(M[i][0], i)
    for b in range(8):
        c, hf = b >> 1, b & 1
        for nu in range(7):
            acc = sbuf[b] + 4 * nu
            aft = done_at[("S", b, nu)]
            nxt = [bb for bb in range(b + 1, 8) if sbuf[bb] == sbuf[b]]
            pdead = (P0 - BL + MID, P0 - BL + MID, P0 + 3 * BL + MID, P0 + 5 * BL + MID)[c]
            if nxt: bef = first_use[("Sacc", nxt[0], nu)]
            elif acc in pvfirst: bef = pvfirst[acc]
            else: bef = INF
            bef = min(bef, pdead - 2)
            pr = PR[c & 1] + 4 * nu + 2 * hf
            ex = [valu(f"v_exp_f32 v{acc+x}, v{acc+x}", V(acc + x), V(acc + x), aft, bef, kind="trans", cost=8) for x in range(4)]
            if b == 0:
                ad = [valu(f"v_add_f32 v{vL+nu}, v{acc}, v{acc+1}", V(acc, 2), V(vL + nu), aft, bef)]
                ad += [valu(f"v_add_f32 v{vL+nu}, v{vL+nu}, v{acc+x}", V(vL + nu) | V(acc + x), V(vL + nu), aft, bef) for x in (2, 3)]
                ad = [None] + ad
            else:
                ad = [valu(f"v_add_f32 v{vL+nu}, v{vL+nu}, v{acc+x}", V(vL + nu) | V(acc + x), V(vL + nu), aft, bef) for x in range(4)]
            cv = [valu(f"v_cvt_pk_bf16_f32 v{pr}, v{acc}, v{acc+1}", V(acc, 2), V(pr), aft, bef),
                  valu(f"v_cvt_pk_bf16_f32 v{pr+1}, v{acc+2}, v{acc+3}", V(acc + 2, 2), V(pr + 1), aft, bef)]
            tail = [ad[0], cv[0], ad[1], cv[1], ad[2], ad[3]]
            tail = [x for x in tail if x is not None]
            if cfg.get("pw128"):
                if hf == 1:
                    r = PR[c & 1] + 4 * nu
                    tail.append(Ins(f"ds_write_b128 v{wP}, {vr(r,4)} offset:{(c&1)*28672+nu*1024}", "ds", rd=V(wP) | V(r, 4), res=("pw", c),
                                    after=aft, before=pdead, pre=after_ev(("Bqe", "Bqe", ("Bp", 2), ("Bp", 4))[c]), cost=20))
            else:
                tail.append(pw(c, nu, hf, aft, pdead, ("Bqe", "Bqe", ("Bp", 2), ("Bp", 4))[c]))
            seq = []
            for x in range(4):
                seq.append(ex[x])
                seq += pend[:2]; pend = pend[2:]
            seq += pend
            pend = tail
            VS += seq
    VS += pend
    lbef = P0 + 5 * BL + MID
    T0 = SACC[0]
    aft = done_at[("S", 7, 6)]
    for nu in range(7): VS.append(valu(f"v_mov_b32 v{T0+nu}, v{vL+nu}", V(vL + nu), V(T0 + nu), aft, lbef))
    for nu in range(7): VS.append(valu(f"v_permlane32_swap_b32 v{vL+nu}, v{T0+nu}", V(vL + nu) | V(T0 + nu), V(vL + nu) | V(T0 + nu), aft, lbef, kind="perm", cost=8))
    for nu in range(7): VS.append(valu(f"v_add_f32 v{vL+nu}, v{vL+nu}, v{T0+nu}", V(vL + nu) | V(T0 + nu), V(vL + nu), aft, lbef))
    for nu in range(7): VS.append(valu(f"v_mov_b32 v{T0+nu}, v{vL+nu}", V(vL + nu), V(T0 + nu), aft, lbef))
    for nu in range(7): VS.append(valu(f"v_permlane16_swap_b32 v{vL+nu}, v{T0+nu}", V(vL + nu) | V(T0 + nu), V(vL + nu) | V(T0 + nu), aft, lbef, kind="perm", cost=8))
    for nu in range(7): VS.append(valu(f"v_add_f32 v{T0+8+nu}, v{vL+nu}, v{T0+nu}", V(vL + nu) | V(T0 + nu), V(T0 + 8 + nu), aft, lbef))
    VS.append(valu(f"v_add_u32 v{T0+7}, s{sXB}, v{vST}", V(vST), V(T0+7), aft, lbef))
    VS.append(valu(f"v_subrev_u32 v{T0+7}, s{sW2K}, v{T0+7}", V(T0+7), V(T0+7), aft, lbef))
    for hh in range(2):
        VS.append(Ins(f"ds_write_b128 v{T0+7}, {vr(T0+8+4*hh,4)} offset:{57344+hh*1024}", "ds", rd=V(T0+7) | V(T0 + 8 + 4 * hh, 4),
                      res="lw", after=aft, before=lbef, cost=20))
    rb = P0 + 7 * BL
    for w in range(4):
        for hh in range(2):
            d = T0 + 8 * w + 4 * hh
            VS.append(Ins(f"ds_read_b128 {vr(d,4)}, v{rE} offset:{57344+w*2048+hh*1024}", "ds", rd=V(rE), wr=V(d, 4), res="lr",
                          after=0, before=rb, pre=after_ev(("Bp", 6))))
    la = P0 + 6 * BL + 20
    for nu in range(7): VS.append(valu(f"v_add_f32 v{T0+nu}, v{T0+nu}, v{T0+8+nu}", V(T0 + nu) | V(T0 + 8 + nu), V(T0 + nu), la, O0))
    for nu in range(7): VS.append(valu(f"v_add_f32 v{T0+16+nu}, v{T0+16+nu}, v{T0+24+nu}", V(T0 + 16 + nu) | V(T0 + 24 + nu), V(T0 + 16 + nu), la, O0))
    for nu in range(7): VS.append(valu(f"v_add_f32 v{T0+nu}, v{T0+nu}, v{T0+16+nu}", V(T0 + nu) | V(T0 + 16 + nu), V(T0 + nu), la, O0))
    if cfg.get("fb", 1):
        a_, b_ = T0 + 8, T0 + 9
        VCC = {("s", "vcc")}
        VS.append(valu(f"v_max3_f32 v{a_}, v{T0}, v{T0+1}, v{T0+2}", V(T0, 3), V(a_), la, O0))
        VS.append(valu(f"v_min3_f32 v{b_}, v{T0}, v{T0+1}, v{T0+2}", V(T0, 3), V(b_), la, O0))
        for r in (3, 5):
            VS.append(valu(f"v_max3_f32 v{a_}, v{a_}, v{T0+r}, v{T0+r+1}", V(a_) | V(T0 + r, 2), V(a_), la, O0))
            VS.append(valu(f"v_min3_f32 v{b_}, v{b_}, v{T0+r}, v{T0+r+1}", V(b_) | V(T0 + r, 2), V(b_), la, O0))
        hi_, lo_ = f2u(2.0 ** cfg.get("lim", 40)), f2u(2.0 ** -cfg.get("lim", 40))
        VS.append(valu(f"v_cmp_nge_f32 vcc, {hi_:#x}, v{a_}\n    s_cbranch_vccnz L_fallback", V(a_), VCC, la, O0, cost=8))
        VS.append(valu(f"v_cmp_nle_f32 vcc, {lo_:#x}, v{b_}\n    s_cbranch_vccnz L_fallback", V(b_), VCC, la, O0, cost=8))
    for nu in range(7): VS.append(valu(f"v_rcp_f32 v{vL+nu}, v{T0+nu}", V(T0 + nu), V(vL + nu), la, O0, kind="trans", cost=8))
    VS.append(valu(f"v_add_u32 v{rWOE}, {EB}, v{rWO}", V(rWO), V(rWOE), P0 + 6 * BL, O0))
    VS.append(valu(f"v_lshrrev_b32 v{vST2}, 1, v{vST}", V(vST), V(vST2), P0 + 6 * BL, O0))
    for nu in range(7):
        aft = done_at[("O", 3, nu)]
        for al in range(2):
            r = oacc(2 * al, nu)
            for x in range(4):
                VS.append(valu(f"v_cvt_pk_bf16_f32 v{r+x}, v{r+2*x}, v{r+2*x+1}", V(r + 2 * x, 2), V(r + x), aft, O0))
        for al in range(2):
            r = oacc(2 * al, nu)
            VS.append(Ins(f"ds_write_b128 v{wO}, {vr(r,4)} offset:{(al*7+nu)*1024}", "ds", rd=V(wO) | V(r, 4), res="ow",
                          after=aft, before=O0, pre=after_ev("Bpe"), cost=20))
    SQ = []
    for p in range(7):
        stg = OACC + 16 * p
        for nu in range(7):
            acc = SACC[p & 1] + 4 * nu
            aft = done_at[("Y", p, nu)]
            bef = first_use[("Yacc", p + 2, nu)] if p < 5 else INF
            for x in range(4): VS.append(valu(f"v_mul_f32 v{acc+x}, v{vL+nu}, v{acc+x}", V(acc + x) | V(vL + nu), V(acc + x), aft, bef))
            d = stg + 2 * nu
            VS.append(valu(f"v_cvt_pk_bf16_f32 v{d}, v{acc}, v{acc+1}", V(acc, 2), V(d), aft, bef))
            VS.append(valu(f"v_cvt_pk_bf16_f32 v{d+1}, v{acc+2}, v{acc+3}", V(acc + 2, 2), V(d + 1), aft, bef))
            gate = (lambda: not dq) if cfg.get("gate", 1) else None
            if nu & 1:
                VS.append(Ins(f"buffer_store_dwordx4 {vr(d-2,4)}, v{vST}, {srd(sSRD_WS)}, s{sSTO+p} offen offset:{(nu>>1)*1024} {stfl}",
                              "vmem", rd=V(d - 2, 4) | V(vST), tag=("st", p), after=aft, cost=32, pre=gate))
            if nu == 6:
                VS.append(Ins(f"buffer_store_dwordx2 {vr(d,2)}, v{vST2}, {srd(sSRD_WS)}, s{sSTO+p} offen offset:3072 {stfl}",
                              "vmem", rd=V(d, 2) | V(vST2), tag=("st", p), after=aft, cost=18, pre=gate))

    vFA, vFO, vFN, vFV = dK, dK + 1, dK + 2, dK + 3
    vRA, vOA, vOA2, vZ = 6, 7, 8, 0
    SEL = 120; RD_ = 128
    def publish(cnt):
        pubd[0] = cnt
        R(f"v_and_b32 v{vFV}, -16, v{vFV}")
        R(f"v_add_u32 v{vFV}, {16 + cnt}, v{vFV}")
        E.emit(Ins(f"buffer_store_dword v{vFV}, v{vZ}, {srd(sSRD_FM)}, 0 offen {cfg.get('ffl','sc1')}", "vmem", rd=V(vFV) | V(vZ), tag="fl"))
    def reduce_setup():
        t = RD_
        for p in range(7): R(f"s_mov_b32 s{sSTO+p}, {p*3584}")
        R(f"v_lshrrev_b32 v{t}, 4, v{vST}")
        R(f"v_and_b32 v{t+1}, 15, v{t}")
        R(f"v_lshrrev_b32 v{t+2}, 4, v{t}")
        R(f"v_lshlrev_b32 v{vZ}, 24, v{t}")
        R(f"v_and_b32 v{t+3}, 16, v{vST}")
        R(f"v_mov_b32 v{t+4}, 0x3f80"); R(f"v_lshlrev_b32 v{t+3}, v{t+3}, v{t+4}")
        R(f"v_bfe_u32 v{t+4}, v{t}, 1, 3")
        for io in range(0, 8, 2):
            R(f"v_cmp_eq_u32 vcc, {io}, v{t+4}"); R(f"v_cmp_eq_u32 s[24:25], {io+1}, v{t+4}"); R("s_nop 0")
            R(f"v_cndmask_b32 v{SEL+io}, 0, v{t+3}, vcc"); R(f"v_cndmask_b32 v{SEL+io+1}, 0, v{t+3}, s[24:25]")
        R(f"s_lshl_b32 s40, s{sW}, 4"); R(f"v_add_u32 v{t+3}, s40, v{t+1}")
        R(f"v_cmp_gt_u32 s[24:25], 56, v{t+3}")
        R(f"v_mul_u32_u24 v{vRA}, 100352, v{t+2}"); R(f"v_lshl_add_u32 v{vRA}, v{t+3}, 4, v{vRA}")
        R(f"v_mov_b32 v{t+4}, 0x7ffffff0")
        R(f"v_cndmask_b32 v{vRA}, v{t+4}, v{vRA}, s[24:25]")
        R(f"s_and_b32 s40, s{sH}, 3"); R("s_mul_i32 s40, s40, 56"); R(f"v_add_u32 v{t+3}, s40, v{t+3}")
        R(f"v_and_b32 v{t+5}, 1, v{t+2}")
        R(f"v_lshrrev_b32 v{t+6}, 6, v{t+3}"); R(f"v_and_b32 v{t+7}, 15, v{t+3}")
        R(f"v_lshl_add_u32 v{t+6}, v{t+6}, 5, v{t+7}"); R(f"v_lshl_add_u32 v{t+6}, v{t+5}, 4, v{t+6}")
        R(f"v_bfe_u32 v{t+7}, v{t+3}, 4, 2")
        R(f"v_cmp_lt_u32 vcc, 191, v{t+3}")
        R(f"v_and_b32 v{t+8}, 7, v{t+3}"); R(f"v_lshl_add_u32 v{t+8}, v{t+8}, 1, v{t+5}"); R(f"v_add_u32 v{t+8}, 96, v{t+8}")
        R(f"v_bfe_u32 v{t+9}, v{t+3}, 3, 2")
        R(f"v_cndmask_b32 v{t+6}, v{t+6}, v{t+8}, vcc"); R(f"v_cndmask_b32 v{t+7}, v{t+7}, v{t+9}, vcc")
        R(f"v_mul_u32_u24 v{vOA}, 896, v{t+6}"); R(f"v_lshl_add_u32 v{vOA}, v{t+7}, 3, v{vOA}")
        R(f"v_lshrrev_b32 v{t+5}, 1, v{t+2}"); R(f"v_lshl_add_u32 v{vOA}, v{t+5}, 7, v{vOA}")
        R(f"v_cmp_gt_u32 vcc, 32, v{t}")
        R(f"s_lshr_b32 s40, s{sH}, 2"); R("s_lshl_b32 s40, s40, 5"); R(f"v_add_u32 v{vOA}, s40, v{vOA}")
        R(f"v_cndmask_b32 v{vOA}, v{t+4}, v{vOA}, s[24:25]")
        R(f"v_cndmask_b32 v{vOA2}, v{t+4}, v{vOA}, vcc")
    npoll = [0]; nchk = [0]; pubd = [0]
    spins = []
    def preg(k): return rV + (k & 3)
    def poll():
        npoll[0] += 1
        r = preg(npoll[0])
        E.emit(Ins(f"buffer_load_dword v{r}, v{vFA}, {srd(sSRD_FL)}, 0 offen sc1", "vmem", rd=V(vFA), wr=V(r), tag=("poll", npoll[0])))
    def check_cond(need, r=None):
        r = vFN if r is None else r
        R(f"v_cmp_ne_u32 vcc, v{r}, v{vFO}")
        R(f"v_and_b32 v{vFN}, 15, v{r}")
        R(f"v_cmp_le_u32 s[26:27], {need}, v{vFN}")
        R("s_and_b64 vcc, vcc, s[26:27]")
        R("s_cmp_eq_u64 vcc, -1")
    def check(need, mine):
        nchk[0] += 1
        E.wait_vm([("poll", nchk[0])], 1)
        check_cond(need, preg(nchk[0]))
        k = len(spins); spins.append((need, mine))
        R(f"s_cbranch_scc0 L_spin{k}")
        E.label(f"L_spun{k}")
    def rreg(p, g): return OACC + 16 * p + 4 * g
    def rloads(p):
        L = []
        for g in range(4):
            L.append(Ins(f"s_add_u32 s{sOFF}, s{sRO}, {g*4*100352 + p*3584}", "salu"))
            L.append(Ins(f"buffer_load_dwordx4 {vr(rreg(p,g),4)}, v{vRA}, {srd(sSRD_PB)}, s{sOFF} offen {cfg.get('rfl','sc1')}", "vmem",
                         rd=V(vRA), wr=V(rreg(p, g), 4), tag=("rl", p, g), cost=8))
        return L
    def rsum(p, nxt=None):
        d = RD_ + 4 * (p >> 1); sel = SEL + 4 * (p & 1)
        nl = rloads(nxt) if nxt is not None else None
        for g in range(4):
            if nl:
                E.wait_vm([("rl", p, g)], 1)
                E.emit(nl[2 * g]); E.emit(nl[2 * g + 1])
            E.wait_vm([("rl", p, g)], 1)
            cz = (p & 1) == 0 and g == 0
            E.emit(Ins(f"v_mfma_f32_16x16x32_bf16 {vr(d,4)}, {vr(sel,4)}, {vr(rreg(p,g),4)}, {'0' if cz else vr(d,4)}", "mfma",
                       rd=V(sel, 4) | V(rreg(p, g), 4) | (set() if cz else V(d, 4)), wr=V(d, 4), rdc=set() if cz else V(d, 4)))
    def rstore(q):
        d = RD_ + 4 * q
        E.emit(valu(f"v_cvt_pk_bf16_f32 v{d}, v{d}, v{d+1}", V(d, 2), V(d), 0))
        E.emit(valu(f"v_cvt_pk_bf16_f32 v{d+1}, v{d+2}, v{d+3}", V(d + 2, 2), V(d + 1), 0))
        va = vOA if q < 3 else vOA2
        E.emit(Ins(f"buffer_store_dwordx2 {vr(d,2)}, v{va}, {srd(sSRD_OUT)}, 0 offen offset:{256*q} {cfg.get('ofl','')}", "vmem", rd=V(d, 2) | V(va), tag="ost"))
    PROG = cfg.get("prog", 1) and cfg.get("ink", 1)
    if cfg.get("ink", 1):
        def ev_setup():
            assert not any(x.kind == "vmem" and x.tag[0] == "V" for x in dq)
            assert not any(x.res == ("pw", 3) for x in VS)
            reduce_setup()
        events.setdefault(P0 + 6 * BL + cfg.get("v2", 30), []).insert(0, ("rsetup", ev_setup))
    def act(a_, inline):
        k = a_[0]
        if k == "pub": E.wait_vm([("st", p) for p in range(a_[1])]); publish(a_[1])
        elif k == "poll": poll()
        elif k == "chk": check(a_[1], pubd[0])
        elif k == "ld":
            if inline:
                for x in rloads(a_[1]): E.emit(x)
            else: dq.extend(rloads(a_[1]))
        elif k == "sum": rsum(a_[1])
        elif k == "sl": rsum(a_[1] // 10, a_[1] % 10)
        elif k == "out": rstore(a_[1])
        elif k == "stamp":
            if stamps: stamp()
    MIDS = cfg.get("mids", [(4.2, ("pub", 3))]) if PROG else []
    for n_, (pos, a_) in enumerate(MIDS):
        add_event(O0 + int(pos * BL), ("mid", n_), (lambda z: (lambda: act(z, False)))(a_))
    TAIL = cfg.get("tail", "poll pub7 stamp chk3 ld0 ld1 poll ld2 sum0 sum1 out0 chk7 stamp ld3 ld4 ld5 ld6 sum2 sum3 sum4 out1 sum5 sum6 out2 out3") if PROG \
        else "pub7 stamp poll chk7 stamp ld0 ld1 ld2 ld3 ld4 ld5 ld6 sum0 sum1 sum2 out0 sum3 sum4 out1 sum5 sum6 out2 out3"
    if cfg.get("ink", 1):
        fa = P0 - 28
        VS.insert(0, valu(f"v_and_b32 v{vFA}, 0xf0, v{vST}", V(vST), V(dK, 4), fa, P0 + BL, pre=lambda: not any(x.kind == "vmem" and x.tag[0] == "K" for x in dq)))
        VS.insert(1, valu(f"v_lshlrev_b32 v{vFA}, 3, v{vFA}", V(vFA), V(vFA), fa, P0 + BL))
        VS.insert(2, valu(f"v_mov_b32 v{vFN}, 0", set(), V(vFN), fa, P0 + BL))
        VS.insert(3, Ins(f"buffer_load_dword v{vFO}, v{vFA}, {srd(sSRD_FL)}, 0 offen sc1", "vmem", rd=V(vFA), wr=V(vFO), tag="pf", after=fa, before=P0 + BL, cost=8))
        VS.insert(4, Ins(f"buffer_load_dword v{vFV}, v{vFN}, {srd(sSRD_FM)}, 0 offen sc1", "vmem", rd=V(vFN), wr=V(vFV), tag="pf", after=fa, before=P0 + BL, cost=8))

    PF = []
    if cfg.get("wopf") is not None:
        PF.append(Ins(f"buffer_load_dword v{vPFV}, v{vPFV}, {srd(sSRD_WO)}, 0 offen", "vmem", rd=V(vPFV), tag="pf",
                      after=int(cfg["wopf"] * 28), cost=8))

    KN = "standalone__gqa_block_cached__near_ridge_kernel" if cfg.get("ink", 1) else "gqa_main_kernel"
    if cfg.get("ink", 1):
        E.out.append("; fused GQA block: q-proj + attention + out-proj + cross-workgroup head reduction")
        E.out.append("; @launch grid=(256,1,1) block=(256,1,1) lds=163840")
    else:
        E.out.append("""; fused GQA block: q-proj + attention + out-proj partials (main), then head reduction (reduce)
; @launch kernel=gqa_main_kernel grid=(256,1,1) block=(256,1,1) lds=163840
; @launch kernel=gqa_reduce_kernel grid=(448,1,1) block=(256,1,1) lds=0""")
    E.out.append(f""".amdgcn_target "amdgcn-amd-amdhsa--gfx950"
.text
.globl {KN}
.p2align 8
.type {KN},@function
{KN}:""")
    R("s_cmp_ge_u32 s2, 256")
    R("s_cbranch_scc1 L_exit")
    R("s_load_dwordx8 s[8:15], s[0:1], 0")
    R("s_load_dwordx2 s[4:5], s[0:1], 32")
    R(f"s_load_dwordx2 s[{sSRD_OUT}:{sSRD_OUT+1}], s[0:1], 40")
    R("s_load_dwordx2 s[6:7], s[0:1], 56")
    if cfg.get("padT") or cfg.get("padstep") is not None: R("s_memrealtime s[68:69]")
    if stamps:
        R(f"s_memtime s[{sSTAMP}:{sSTAMP+1}]"); R(f"s_memrealtime s[{sSTAMP+30}:{sSTAMP+31}]")
    t0, t1, t2, t3, t4, t5 = 40, 41, 42, 43, 44, 45
    vA, vP8, vG, vP16, vW, vR, vC4 = 46, 47, 48, 49, 50, 51, 52
    R(f"v_lshrrev_b32 v{vW}, 6, v0")
    R(f"v_and_b32 v{vLANE}, 63, v0")
    R(f"v_readfirstlane_b32 s{sW}, v{vW}")
    R(f"v_lshrrev_b32 v{vA}, 3, v{vLANE}")
    R(f"v_and_b32 v{vP8}, 7, v{vLANE}")
    R(f"v_lshrrev_b32 v{vG}, 4, v{vLANE}")
    R(f"v_and_b32 v{vP16}, 15, v{vLANE}")
    R("s_bfe_u32 s46, s2, 0x10003")
    if cfg.get("kmap", 2) == 1:
        R("s_and_b32 s55, s2, 7")
        R("s_lshr_b32 s58, s2, 4")
        R(f"s_mov_b32 s{sSQ}, s58"); R(f"s_mov_b32 s{sSX}, s46")
    elif cfg.get("kmap", 2) == 8:
        R("s_bfe_u32 s55, s2, 0x30004")
        R("s_and_b32 s58, s2, 7"); R("s_lshl_b32 s58, s58, 1"); R(f"s_lshr_b32 s{sSQ}, s2, 7"); R(f"s_add_u32 s58, s58, s{sSQ}")
        R(f"s_bfe_u32 s{sSX}, s2, 0x40003")
    elif cfg.get("kmap", 2) == 4:
        R("s_and_b32 s55, s2, 1"); R("s_lshl_b32 s55, s55, 2"); R("s_bfe_u32 s40, s2, 0x20004"); R("s_add_u32 s55, s55, s40")
        R(f"s_lshr_b32 s{sSQ}, s2, 6"); R("s_bfe_u32 s40, s2, 0x20001"); R("s_lshl_b32 s58, s40, 2"); R(f"s_add_u32 s58, s58, s{sSQ}")
        R(f"s_bfe_u32 s{sSX}, s2, 0x30003")
    else:
        R("s_and_b32 s55, s2, 3"); R("s_lshl_b32 s55, s55, 1"); R("s_bfe_u32 s40, s2, 0x10004"); R("s_add_u32 s55, s55, s40")
        R(f"s_lshr_b32 s{sSQ}, s2, 5"); R("s_bfe_u32 s40, s2, 0x10002"); R("s_lshl_b32 s58, s40, 3"); R(f"s_add_u32 s58, s58, s{sSQ}")
        R(f"s_bfe_u32 s{sSX}, s2, 0x20003")
    R("s_lshl_b32 s56, s55, 1")
    R("s_add_u32 s56, s56, s46")
    STG = 0
    if cfg.get("rot"):
        R(f"s_lshl_b32 s40, s{sSX}, {cfg.get('rotsh', 1)}"); R(f"s_add_u32 s40, s40, s{sSQ}")
        R("s_mul_i32 s43, s40, 37"); R("s_lshr_b32 s43, s43, 8"); R("s_mul_i32 s43, s43, 7"); R("s_sub_u32 s40, s40, s43")
        R(f"s_lshl_b32 s{sSTO}, s40, 7")
        for j in range(1, 7):
            R(f"s_add_u32 s{sSTO+j}, s{sSTO+j-1}, 128"); R(f"s_cmp_eq_u32 s{sSTO+j}, 896"); R(f"s_cselect_b32 s{sSTO+j}, 0, s{sSTO+j}")
    R(f"s_mul_i32 s{sRB}, s{sW}, {RING}")
    R(f"s_lshl_b32 s{sXB}, s{sW}, 12"); R(f"s_add_u32 s{sXB}, s{sXB}, {EB}")
    R(f"v_lshl_add_u32 v{t0}, v{vW}, 5, v{vA}")
    R(f"v_mul_u32_u24 v{t1}, 896, v{t0}")
    R(f"v_xor_b32 v{t2}, v{vP8}, v{vG}")
    R(f"v_lshlrev_b32 v{t2}, 4, v{t2}")
    R(f"v_xor_b32 v{t3}, 64, v{t2}")
    R(f"v_add_u32 v{dX}, v{t1}, v{t2}")
    R(f"v_add_u32 v{dX+1}, v{t1}, v{t3}")
    R(f"v_add_u32 v{dX+2}, {2*6144}, v{dX}")
    R(f"v_add_u32 v{dX+3}, {3*6144}, v{dX+1}")
    R(f"v_add_u32 v{dX+1}, {6144}, v{dX+1}")
    R(f"v_and_b32 v{t2}, 1, v{vG}")
    R(f"v_lshlrev_b32 v{t2}, 1, v{t2}")
    R(f"v_xor_b32 v{t2}, v{vP8}, v{t2}")
    R(f"v_lshlrev_b32 v{t2}, 4, v{t2}")
    R(f"v_lshl_add_u32 v{t2}, v{vW}, 7, v{t2}")
    R(f"v_lshl_add_u32 v{dWQ}, v{vA}, 13, v{t2}")
    R(f"v_xor_b32 v{dWQ+1}, 64, v{dWQ}")
    R(f"v_add_u32 v{dWQ+2}, {2*64512}, v{dWQ}")
    R(f"v_add_u32 v{dWQ+3}, {3*64512}, v{dWQ+1}")
    R(f"v_add_u32 v{dWQ+1}, {64512}, v{dWQ+1}")
    if cfg.get("ppf"):
        km = cfg.get("kmap", 2)
        xr = 56 // km; qr = 4 * km
        R(f"s_mul_i32 s40, s{sSX}, {xr}"); R(f"v_add_u32 v54, s40, v{vLANE}"); R(f"v_mul_u32_u24 v54, 896, v54")
        R(f"v_lshl_add_u32 v54, v{vW}, 7, v54")
        R("v_mov_b32 v57, 0x7ffffff0"); R(f"v_cmp_gt_u32 vcc, {xr}, v{vLANE}")
        R(f"v_lshrrev_b32 v55, 2, v{vLANE}"); R(f"v_lshl_add_u32 v55, v{vW}, 6, v55")
        R("v_cndmask_b32 v54, v57, v54, vcc")
        R(f"s_mul_i32 s40, s{sSQ}, {qr}"); R("v_add_u32 v55, s40, v55"); R(f"v_and_b32 v56, 3, v{vLANE}"); R("v_lshlrev_b32 v56, 7, v56")
        R(f"v_cmp_gt_u32 vcc, {4*qr}, v{vLANE}"); R("v_lshl_add_u32 v55, v55, 13, v56"); R("s_nop 0")
        R("v_cndmask_b32 v55, v57, v55, vcc")
    if cfg.get("padstep") == -3: R("s_memrealtime s[70:71]")
    R("s_waitcnt lgkmcnt(0)")
    if cfg.get("padstep") == -2: R("s_memrealtime s[70:71]")
    R("s_mul_i32 s40, s58, 100352")
    R(f"s_add_u32 s{sSRD_X}, s8, s40"); R(f"s_addc_u32 s{sSRD_X+1}, s9, 0")
    R(f"s_mov_b32 s{sSRD_X+2}, 100352"); R(f"s_mov_b32 s{sSRD_X+3}, 0x20000")
    R("s_lshl_b32 s40, s56, 9")
    R(f"s_add_u32 s{sSRD_WQ}, s14, s40"); R(f"s_addc_u32 s{sSRD_WQ+1}, s15, 0")
    R(f"s_sub_u32 s{sSRD_WQ+2}, {448*8192}, s40"); R(f"s_mov_b32 s{sSRD_WQ+3}, 0x20000")
    npro = cfg.get("npro", 3); npro2 = cfg.get("npro2", 6); npro3 = max(npro2, cfg.get("npro3", 0))
    km = cfg.get("kmap", 2)
    def prefetch_round(r):
        R(f"s_mov_b32 s40, {512*r}")
        E.emit(Ins(f"buffer_load_dword v56, v54, {srd(sSRD_X)}, s40 offen", "vmem", tag="pf")) if r == 0 else None
        if r == 1:
            R(f"v_cmp_gt_u32 vcc, 3, v{vW}"); R("v_mov_b32 v57, 0x7ffffff0"); R("s_nop 0"); R("v_cndmask_b32 v54, v57, v54, vcc")
            E.emit(Ins(f"buffer_load_dword v56, v54, {srd(sSRD_X)}, s40 offen", "vmem", tag="pf"))
        R(f"s_mov_b32 s40, {256*8192*r}")
        E.emit(Ins(f"buffer_load_dword v56, v55, {srd(sSRD_WQ)}, s40 offen", "vmem", tag="pf"))
    if cfg.get("ppf") == 1: prefetch_round(0)
    for u, L in DQ[:npro]:
        for x in L: E.emit(x)
    R("s_lshl_b32 s40, s58, 3"); R("s_add_u32 s40, s40, s55"); R("s_lshl_b32 s40, s40, 18")
    if cfg.get("l2kv"): R("s_lshl_b32 s40, s55, 18")
    R(f"s_add_u32 s{sSRD_K}, s10, s40"); R(f"s_addc_u32 s{sSRD_K+1}, s11, 0")
    R(f"s_mov_b32 s{sSRD_K+2}, 262144"); R(f"s_mov_b32 s{sSRD_K+3}, 0x20000")
    R(f"s_add_u32 s{sSRD_V}, s12, s40"); R(f"s_addc_u32 s{sSRD_V+1}, s13, 0")
    R(f"s_mov_b32 s{sSRD_V+2}, 262144"); R(f"s_mov_b32 s{sSRD_V+3}, 0x20000")
    if STG == 32:
        R(f"s_sub_u32 s{sSRD_V}, s{sSRD_V}, 4096"); R(f"s_subb_u32 s{sSRD_V+1}, s{sSRD_V+1}, 0"); R(f"s_mov_b32 s{sSRD_V+2}, {262144+4096}")
    R("s_mul_i32 s40, s56, 229376")
    R(f"s_add_u32 s{sSRD_WO}, s4, s40"); R(f"s_addc_u32 s{sSRD_WO+1}, s5, 0")
    R(f"s_mov_b32 s{sSRD_WO+2}, 229376"); R(f"s_mov_b32 s{sSRD_WO+3}, 0x20000")
    R("s_lshl_b32 s40, s58, 4"); R("s_add_u32 s40, s40, s56"); R("s_lshl_b32 s40, s40, 2"); R(f"s_add_u32 s40, s40, s{sW}")
    R("s_mul_i32 s40, s40, 25088")
    R(f"s_add_u32 s{sSRD_WS}, s6, s40"); R(f"s_addc_u32 s{sSRD_WS+1}, s7, 0")
    R(f"s_mov_b32 s{sSRD_WS+2}, 25088"); R(f"s_mov_b32 s{sSRD_WS+3}, 0x20000")
    R("s_mul_i32 s40, s58, 100352")
    R(f"s_add_u32 s{sSRD_OUT}, s{sSRD_OUT}, s40"); R(f"s_addc_u32 s{sSRD_OUT+1}, s{sSRD_OUT+1}, 0")
    R(f"s_mov_b32 s{sSRD_OUT+2}, 100352"); R(f"s_mov_b32 s{sSRD_OUT+3}, 0x20000")
    R("s_lshl_b32 s40, s40, 4")
    R(f"s_add_u32 s{sSRD_PB}, s6, s40"); R(f"s_addc_u32 s{sSRD_PB+1}, s7, 0")
    R(f"s_mov_b32 s{sSRD_PB+2}, 1605632"); R(f"s_mov_b32 s{sSRD_PB+3}, 0x20000")
    R(f"s_lshr_b32 s40, s56, 2"); R(f"s_mul_i32 s{sRO}, s40, 25088"); R("s_and_b32 s40, s56, 3"); R("s_mul_i32 s40, s40, 896"); R(f"s_add_u32 s{sRO}, s{sRO}, s40")
    R(f"s_mov_b32 s{sC}, {f2u(math.log2(math.e) / 16.0):#x}")
    R(f"s_lshl_b32 s{sW2K}, s{sW}, 11")
    R(f"s_mul_i32 s40, s{sSQ}, {16*km}"); R(f"v_lshrrev_b32 v58, 3, v{vLANE}"); R(f"v_add_u32 v58, s40, v58")
    R(f"v_mul_u32_u24 v59, {4*km}, v{vW}"); R("v_add_u32 v58, v58, v59"); R("v_mul_u32_u24 v58, 896, v58")
    R(f"v_lshl_add_u32 v{vPFV}, v{vP8}, 7, v58")
    R(f"v_cmp_gt_u32 vcc, {32*km}, v{vLANE}"); R("v_mov_b32 v59, 0x7ffffff0"); R("s_nop 0"); R(f"v_cndmask_b32 v{vPFV}, v59, v{vPFV}, vcc")


    R(f"v_bfe_u32 v{vR}, v{vLANE}, 2, 2")
    R(f"v_and_b32 v{vC4}, 3, v{vLANE}")
    R(f"v_lshlrev_b32 v{vST}, 4, v{vLANE}")
    R(f"v_bfe_u32 v{t2}, v{vLANE}, 1, 3")
    R(f"v_xor_b32 v{t2}, v{t2}, v{vG}")
    R(f"v_lshlrev_b32 v{t2}, 4, v{t2}")
    R(f"v_lshl_add_u32 v{t2}, v{vP16}, 7, v{t2}")
    R(f"v_add_u32 v{rX}, {EB}, v{t2}")
    R(f"v_xor_b32 v{rX+1}, 64, v{rX}")
    R(f"v_lshrrev_b32 v{t4}, 1, v{vR}")
    R(f"v_and_b32 v{t2}, 1, v{vG}")
    R(f"v_lshl_add_u32 v{t5}, v{t2}, 1, v{t4}")
    R(f"v_lshlrev_b32 v{t3}, 3, v{vC4}")
    R(f"v_lshl_add_u32 v{t3}, v{t5}, 5, v{t3}")
    R(f"v_add_u32 v{t4}, s{sRB}, v{t3}")
    R(f"v_lshl_add_u32 v{t2}, v{vG}, 3, v{vR}")
    R(f"v_lshl_add_u32 v{rWQ}, v{t2}, 7, v{t4}")
    for m in range(1, 4): R(f"v_xor_b32 v{rWQ+m}, {32*m}, v{rWQ}")
    for u, L in DQ[npro:npro2]:
        for x in L: E.emit(x)
    if cfg.get("ppf") == 2: prefetch_round(0)
    if cfg.get("ppf"): prefetch_round(1)
    for u, L in DQ[npro2:npro3]:
        for x in L: E.emit(x)
    R(f"v_lshl_add_u32 v{t2}, v{vG}, 2, v{vR}")
    R(f"v_lshl_add_u32 v{rV}, v{t2}, 7, v{t4}")
    for m in range(1, 4): R(f"v_xor_b32 v{rV+m}, {32*m}, v{rV}")
    R(f"v_lshl_add_u32 v{rWO}, v{t2}, 7, v{t3}")
    R(f"v_lshlrev_b32 v{t2}, 5, v{vW}")
    R(f"v_xor_b32 v{rWO}, v{rWO}, v{t2}")
    R(f"v_add_u32 v{rWO+1}, {2*RING}, v{rWO}")
    R(f"v_xor_b32 v{t2}, v{vG}, v{vP16}")
    R(f"v_lshlrev_b32 v{t2}, 4, v{t2}")
    R(f"v_lshl_add_u32 v{t2}, v{vP16}, 8, v{t2}")
    R(f"v_add_u32 v{rK}, s{sRB}, v{t2}")
    for k in range(1, 4): R(f"v_xor_b32 v{rK+k}, {64*k}, v{rK}")
    R(f"v_lshl_add_u32 v{t2}, v{vW}, 5, v{vG}")
    if STG == 32:
        R("s_lshl_b32 s40, s46, 6"); R(f"v_xor_b32 v{t2}, s40, v{t2}")
    if STG == 2:
        R(f"s_bfe_u32 s40, s{sSTV}, 0x2000e"); R("s_lshl_b32 s40, s40, 5"); R(f"v_xor_b32 v{t2}, s40, v{t2}")
    R(f"v_xor_b32 v{t3}, v{vP16}, v{vG}")
    R(f"v_lshlrev_b32 v{t3}, 4, v{t3}")
    R(f"v_lshl_add_u32 v{dK}, v{t2}, 9, v{t3}")
    for j in range(1, 4):
        R(f"v_xor_b32 v{dK+j}, {64*j}, v{dK}")
        R(f"v_add_u32 v{dK+j}, {1024*j}, v{dK+j}")
    R(f"v_lshlrev_b32 v{t2}, 1, v{vG}")
    R(f"v_xor_b32 v{t2}, v{vP8}, v{t2}")
    R(f"v_lshlrev_b32 v{t2}, 4, v{t2}")
    R(f"v_add_u32 v{dWO}, v{t1}, v{t2}")
    R(f"v_lshl_add_u32 v{t2}, v{vW}, 7, v{t2}")
    R(f"v_lshl_add_u32 v{dV}, v{vA}, 9, v{t2}")
    if STG == 32:
        for j in range(3, -1, -1):
            R(f"s_xor_b32 s40, s{sSTG}, {4096*j}"); R(f"s_add_u32 s40, s40, {4096-1024*j}")
            R(f"v_add_u32 v{dV+j}, s40, v{dV}")
    else:
        for j in range(1, 4): R(f"v_add_u32 v{dV+j}, {3072*j}, v{dV}")
    R(f"v_add_u32 v{rE}, {EB}, v{vST}")
    R(f"v_mul_u32_u24 v{t2}, 7168, v{vW}")
    R(f"v_add_u32 v{wP}, v{rE}, v{t2}")
    R(f"v_add_u32 v{wO}, v{wP}, v{t2}")
    R(f"v_lshrrev_b32 v{t3}, 1, v{vG}")
    R(f"v_lshl_add_u32 v{t3}, v{t3}, 4, v{vP16}")
    R(f"v_and_b32 v{t4}, 1, v{vG}")
    R(f"v_lshlrev_b32 v{t4}, 3, v{t4}")
    R(f"v_lshl_add_u32 v{t3}, v{t3}, 4, v{t4}")
    R(f"v_lshl_add_u32 v{t3}, v{t2}, 1, v{t3}")
    R(f"v_add_u32 v{wQ}, {EB}, v{t3}")
    if cfg.get("cpf"):
        R("s_getpc_b64 s[8:9]")
        E.label("L_pc")
        R("s_mov_b32 s10, L_end-L_pc"); R("s_mov_b32 s11, 0x20000")
        R(f"v_lshlrev_b32 v54, 7, v0"); R("s_lshr_b32 s40, s2, 3"); R("s_lshl_b32 s40, s40, 11")
        R(f"v_mov_b32 v55, 0x7ffffff0"); R(f"v_cmp_gt_u32 vcc, 16, v0"); R("s_nop 1"); R(f"v_cndmask_b32 v54, v55, v54, vcc")
        E.emit(Ins(f"buffer_load_dword v56, v54, s[8:11], s40 offen", "vmem", tag="pf"))
    if cfg.get("padstep") == -1: R("s_memrealtime s[70:71]")
    R(f"s_lshl_b32 s40, s{sBB}, 2"); R(f"s_lshr_b32 s12, s{sH}, 2"); R("s_add_u32 s40, s40, s12"); R("s_lshl_b32 s40, s40, 11"); R(f"s_add_u32 s40, s40, {FLOFF}")
    R(f"s_add_u32 s{sSRD_FL}, s6, s40"); R(f"s_addc_u32 s{sSRD_FL+1}, s7, 0"); R(f"s_mov_b32 s{sSRD_FL+2}, 2048"); R(f"s_mov_b32 s{sSRD_FL+3}, 0x20000")
    R(f"s_lshl_b32 s40, s{sBB}, 2"); R(f"s_add_u32 s40, s40, s{sW}"); R("s_lshl_b32 s40, s40, 4"); R(f"s_add_u32 s40, s40, s{sH}"); R("s_lshl_b32 s40, s40, 7"); R(f"s_add_u32 s40, s40, {FLOFF}")
    R(f"s_add_u32 s{sSRD_FM}, s6, s40"); R(f"s_addc_u32 s{sSRD_FM+1}, s7, 0"); R(f"s_mov_b32 s{sSRD_FM+2}, 128"); R(f"s_mov_b32 s{sSRD_FM+3}, 0x20000")
    dq = [x for u, L in DQ[npro3:] for x in L]

    stamp_n = [1]
    def stamp():
        k = stamp_n[0]; stamp_n[0] += 1
        R(f"{'s_memrealtime' if cfg.get('rt', 1) and k != len(stamps) + 5 else 's_memtime'} s[{sSTAMP+2*k}:{sSTAMP+2*k+1}]")
    def skipf(i):
        if cfg.get("nodma") and i.kind == "vmem" and "lds" in i.text: return True
        if cfg.get("nost") and "buffer_store" in i.text: return True
        if cfg.get("nodsw") and "ds_write" in i.text: return True
        if cfg.get("novalu") and i.kind in ("valu", "trans", "perm"): return True
        return False

    wgap = {}; issued = {}
    def emit(x):
        if x.tag == "read":
            reads_left[x.res] -= 1; last_read[x.res] = now[0]
        if x.kind == "salu" and x.res is not None: E.wait_ds_res(lambda r: r == x.res)
        E.emit(x)
        if x.kind == "vmem": issued[x.tag] = now[0]
        for r in x.wr: wgap[r] = (now[0], x.kind)
    def ok(x, i): return x.after <= i and (x.pre is None or x.pre())
    def run_events(idx):
        for name, fn in events.get(idx, []):
            fn(); ev_done.add(name)
    def conflicts(x, y): return bool(x.rd & y.wr or x.wr & y.rd or x.wr & y.wr)
    def force_fifo(st, i, what):
        k = 0
        for kk, x in enumerate(st[:64]):
            if x.before <= i: k = kk + 1
        c = 0
        for x in st[:k]:
            assert ok(x, i), f"forced {what} not eligible at {i}: {x.text}"
            emit(x); c += x.cost
        del st[:k]
        return c
    c2 = [0]
    def force_vs(i):
        c2[0] = 0
        need = [False] * min(len(VS), 600)
        for k in range(len(need) - 1, -1, -1):
            if VS[k].before <= i: need[k] = True
            if need[k]:
                for kk in range(k):
                    if not need[kk] and conflicts(VS[k], VS[kk]): need[kk] = True
        c = 0
        sel = [VS[k] for k in range(len(need)) if need[k]]
        for x in sel:
            assert ok(x, i), f"forced valu not eligible at {i}: {x.text}"
            VS.remove(x); emit(x); c += x.cost
            c2[0] += x.cost
            if c2[0] >= 96 and dq and ok(dq[0], i):
                c2[0] = 0
                while dq and ok(dq[0], i):
                    y = dq.pop(0); emit(y); c += y.cost
                    if y.kind == "vmem": break
        return c
    WIN = cfg.get("win", 150)
    def ready(x, i):
        if not ok(x, i) or E.need_nops(x) > 0: return False
        k = E.ds_idx(x)
        if k >= 0 and any(wgap.get(r, (-99, 0))[1] == "ds" and i - wgap[r][0] < 10 for r in x.rd | x.wr): return False
        for r in x.rd:
            if r in wgap and wgap[r][1] == "trans" and wgap[r][0] >= i: return False
        return True
    def pick(pred, i):
        blocked = []
        n = 0
        for k, x in enumerate(VS):
            if x.after <= i:
                n += 1
                if n > WIN: return None
            if pred(x) and ready(x, i) and not any(conflicts(x, y) for y in blocked): return x
            blocked.append(x)
            if k > 400: return None
        return None
    ismem = lambda x: x.kind in ("ds", "vmem")
    is4 = lambda x: x.cost == 4 and not ismem(x)

    run_events(-1)
    if stamps: stamp()
    E.skip = skipf
    over = {}; lastdma = -10; lastb128 = -10; lastw = -10; idle = {}
    for i in range(END):
        now[0] = i
        ph = "QSPO"[(i >= S0) + (i >= P0) + (i >= O0)]
        if i % 28 == 0:
            E.comment(f"---- step {i//28} {units[i//28]}")
            if i // 28 in stamps: stamp()
            if cfg.get("padstep") == i // 28: R("s_memrealtime s[70:71]")
        c = force_fifo(RA, i - 4, "read") + force_fifo(RB, i - 4, "read") if i > 0 else force_fifo(RA, 0, "read") + force_fifo(RB, 0, "read")
        if i in (S0, O0): c += force_fifo(RB, i, "read")
        over[ph] = over.get(ph, 0) + c
        E.emit(mfma(i))
        bud = BUD
        if any(x.before <= i + 1 for x in VS[:600]):
            c = force_vs(i + 1); over[ph] = over.get(ph, 0) + max(0, c - bud); bud -= c
        run_events(i)
        if bud < BUD:
            continue
        cand = [q for q in (RA, RB) if q and ok(q[0], i)]
        cand.sort(key=lambda q: q[0].before)
        urgent = [q for q in cand if q[0].before <= i + 1 + sum(1 for x in q[:6] if x.before <= i + 6)]
        sp = cfg.get("dmasp", 4) if i >= cfg.get("fastuntil", 0) else cfg.get("fastsp", 2)
        if dq and dq[0].kind == "vmem" and dq[0].tag[0] == "K" and i < S0: sp = cfg.get("ksp", 8)
        if dq and dq[0].kind == "vmem" and dq[0].tag[0] in ("K", "V") and i >= S0: sp = cfg.get("msp", 4)
        if dq and dq[0].kind == "vmem" and dq[0].tag[0] == "WO": sp = cfg.get("osp", 4) if i < O0 else cfg.get("osp2", 4)
        if dq and dq[0].kind == "vmem" and dq[0].tag[0] == "rl": sp = cfg.get("rsp", 3)
        if cfg.get("rate") and dq and dq[0].kind == "vmem" and dq[0].after > 0: sp = cfg.get("minsp", 4)
        dma_due = dq and dq[0].kind == "vmem" and ok(dq[0], i) and i - lastdma >= sp and E.need_nops(dq[0]) == 0
        x = None
        if dma_due and (not urgent or i - max(lastdma + sp, dq[0].after) >= 2):
            x = dq.pop(0); lastdma = i
            if urgent:
                emit(urgent[0].pop(0)); over[ph] = over.get(ph, 0) + 4
        elif urgent: x = urgent[0].pop(0)
        elif PF and PF[0].after <= i and i - lastdma >= 2: x = PF.pop(0)
        else:
            cand = [q for q in cand if not ("b128" in q[0].text and i - lastb128 < cfg.get("b128sp", 2))]
            if cand: x = cand[0].pop(0)
        if x is None and dq and dq[0].kind == "salu" and ok(dq[0], i) and cfg.get("salup", 1):
            pass
        elif x is None:
            big = lambda z: not is4(z) and not (ismem(z) and z.cost > 8 and i - lastw < (cfg.get("wsp", 3) if z.kind == "ds" else cfg.get("ssp", 6)))
            y4 = pick(is4, i); y8 = pick(big, i)
            y = y8
            if y4 is not None and y8 is not None and VS.index(y4) < VS.index(y8):
                load = sum(z.cost for z in VS[:600] if z.before <= y4.before)
                if load / 8.0 > (y4.before - i) * cfg.get("urg", 0.6): y = y4
            if y is not None and not is4(y):
                VS.remove(y); x = y
                if ismem(y) and y.cost > 8: lastw = i
        if x is not None:
            if "read_b128" in x.text: lastb128 = i
            emit(x); bud -= x.cost
            if x.cost > BUD: over[ph] = over.get(ph, 0) + x.cost - BUD
        while bud >= 4:
            if dq and dq[0].kind == "salu" and ok(dq[0], i):
                emit(dq.pop(0)); bud -= 4; continue
            y = pick(is4, i)
            if y is None: break
            VS.remove(y); emit(y); bud -= 4
        if bud > 0: idle[ph] = idle.get(ph, 0) + bud
    now[0] = END
    over["tail"] = sum(x.cost for x in VS)
    for x in VS: emit(x)
    for x in dq: emit(x)
    assert not RA and not RB and not PF
    INK = cfg.get("ink", 1)
    if cfg.get("padstep") == 60: R("s_memrealtime s[70:71]")
    if INK:
        if stamps: stamp()
        E.skip = None
        import re as _re
        for tok in TAIL.split():
            m_ = _re.match(r"([a-z]+)(\d*)", tok)
            act((m_.group(1), int(m_.group(2))) if m_.group(2) else (m_.group(1),), True)
    if stamps:
        if not INK: stamp(); stamp(); stamp()
        R("s_waitcnt vmcnt(0)")
        stamp()
        R(f"s_memrealtime s[{sSTAMP+32}:{sSTAMP+33}]")
        R("s_waitcnt lgkmcnt(0)")
        n = stamp_n[0]
        R("s_add_u32 s8, s6, 0x8000000"); R("s_addc_u32 s9, s7, 0"); R("s_mov_b32 s10, 0x100000"); R("s_mov_b32 s11, 0x20000")
        R("s_lshl_b32 s12, s2, 2"); R(f"s_add_u32 s12, s12, s{sW}"); R("s_lshl_b32 s12, s12, 7")
        R("v_mov_b32 v2, s12")
        R(f"v_cmp_eq_u32 vcc, 0, v{vST}")
        R("s_and_saveexec_b64 s[14:15], vcc")
        for k in range(1, n):
            R(f"s_sub_u32 s13, s{sSTAMP+2*k}, s{sSTAMP+30 if cfg.get('rt', 1) and k != len(stamps) + 5 else sSTAMP}")
            R("v_mov_b32 v3, s13")
            R(f"buffer_store_dword v3, v2, s[8:11], 0 offen offset:{4*(k-1)}")
        R(f"v_mov_b32 v3, s{sSTAMP+30}")
        R(f"buffer_store_dword v3, v2, s[8:11], 0 offen offset:{4*30}")
        R(f"v_mov_b32 v3, s{sSTAMP+32}")
        R(f"buffer_store_dword v3, v2, s[8:11], 0 offen offset:{4*31}")
    R("s_waitcnt vmcnt(0)")
    if cfg.get("padT") or cfg.get("padstep") is not None:
        R("s_memrealtime s[72:73]"); R("s_waitcnt lgkmcnt(0)")
        if cfg.get("padG"):
            R("s_load_dwordx2 s[76:77], s[0:1], 48"); R("s_waitcnt lgkmcnt(0)"); R("s_mov_b32 s78, 256"); R("s_mov_b32 s79, 0x20000")
            R("s_not_b32 s75, s68"); R("v_mov_b32 v50, s75"); R(f"v_lshlrev_b32 v51, 20, v{vST}")
            R("buffer_atomic_umax v50, v51, s[76:79], 0 offen sc1"); R("s_waitcnt vmcnt(0)")
            R("s_add_u32 s74, s68, 4000")
            E.label("L_pad0")
            R("s_memrealtime s[72:73]"); R("s_waitcnt lgkmcnt(0)")
            R("s_sub_u32 s75, s72, s74"); R("s_cmp_lt_i32 s75, 0"); R("s_cbranch_scc1 L_pad0")
            R("v_mov_b32 v51, 0"); R("buffer_load_dword v50, v51, s[76:79], 0 offen sc1"); R("s_waitcnt vmcnt(0)")
            R("v_readfirstlane_b32 s68, v50"); R("s_nop 3"); R("s_not_b32 s68, s68")
        if cfg.get("padT"): R(f"s_add_u32 s74, s68, {cfg['padT']}")
        else: R("s_sub_u32 s74, s70, s68"); R(f"s_mul_i32 s74, s74, {cfg.get('padk', 1)}"); R("s_add_u32 s74, s74, s72")
        E.label("L_pad")
        R("s_memrealtime s[72:73]"); R("s_waitcnt lgkmcnt(0)")
        R("s_sub_u32 s75, s72, s74"); R("s_cmp_lt_i32 s75, 0"); R("s_cbranch_scc1 L_pad")
    E.label("L_exit")
    R("s_endpgm")
    fb_lines = []
    if cfg.get("fb", 1) and INK:
        import gen_c32
        keep = E.out; E.out = []
        E.label("L_fallback")
        R("s_waitcnt vmcnt(0) lgkmcnt(0)"); R("s_nop 15"); R("s_barrier")
        R(f"v_accvgpr_write_b32 a250, v{vFO}"); R(f"v_accvgpr_write_b32 a251, v{vFV}")
        R(f"v_lshrrev_b32 v0, 4, v{vST}"); R(f"s_lshl_b32 s40, s{sW}, 6"); R("v_add_u32 v0, s40, v0")
        E.out += gen_c32.build({"sB": sBB, "sH": sH, "kearly": 0})
        E.label("L_ftail")
        R("s_waitcnt vmcnt(0) lgkmcnt(0)"); R("s_nop 15"); R("s_barrier")
        R(f"v_lshlrev_b32 v{vST}, 4, v1")
        R(f"v_accvgpr_read_b32 v{vFO}, a250"); R(f"v_accvgpr_read_b32 v{vFV}, a251")
        R(f"v_and_b32 v{vFA}, 0xf0, v{vST}"); R(f"v_lshlrev_b32 v{vFA}, 3, v{vFA}")
        reduce_setup()
        E.vmq = []; E.vm_known = 1 << 30; E.vm_len = 0; E.dsq = []
        publish(7); nchk[0] = npoll[0]; poll(); check(7, 7)
        for p in range(7):
            for x in rloads(p): E.emit(x)
        for p in range(7): rsum(p)
        for q in range(4): rstore(q)
        R("s_waitcnt vmcnt(0)"); R("s_endpgm")
        fb_lines = E.out; E.out = keep
    for k, (need, mine) in enumerate(spins):
        E.label(f"L_spin{k}")
        R("s_mov_b32 s28, 0")
        E.label(f"L_spinl{k}")
        R(f"buffer_load_dword v{vFN}, v{vFA}, {srd(sSRD_FL)}, 0 offen sc1")
        R("s_waitcnt vmcnt(0)")
        check_cond(need)
        R(f"s_cbranch_scc1 L_spun{k}")
        R("s_add_u32 s28, s28, 1")
        R("s_and_b32 s29, s28, 7")
        R(f"s_cbranch_scc1 L_spinl{k}")
        publish(mine)
        R("s_cmp_lt_u32 s28, 400000")
        R(f"s_cbranch_scc1 L_spinl{k}")
        R(f"s_branch L_spun{k}")
    E.label("L_end")
    E.out += fb_lines
    if cfg.get("verbose"):
        print(" ".join(f"{u[0]}{uidx[u]}:{issued[u]/28:.1f}/{twait.get(u,0)/28:.1f}" for u in units if u in issued), file=sys.stderr)
    print(f"main: nops {E.nops}, over {over}, idle {idle}, instrs {E.pos}", file=sys.stderr)

    KD = """.p2align 6
.amdhsa_kernel %s
  .amdhsa_next_free_vgpr %d
  .amdhsa_next_free_sgpr %d
  .amdhsa_accum_offset %d
  .amdhsa_group_segment_fixed_size 0
  .amdhsa_kernarg_size 64
  .amdhsa_user_sgpr_count 2
  .amdhsa_user_sgpr_kernarg_segment_ptr 1
  .amdhsa_system_sgpr_workgroup_id_x 1
.end_amdhsa_kernel
"""
    if INK:
        E.out.append('.section .rodata,"a"\n' + KD % (KN, 512, 102, 256))
        return "\n".join(E.out)
    E.out.append(""".globl gqa_reduce_kernel
.p2align 8
.type gqa_reduce_kernel,@function
gqa_reduce_kernel:""")
    R("s_cmp_ge_u32 s2, 448")
    R("s_cbranch_scc1 LR_exit")
    R("s_load_dwordx2 s[4:5], s[0:1], 40")
    R("s_load_dwordx2 s[6:7], s[0:1], 56")
    R("v_lshrrev_b32 v2, 6, v0")
    R("v_and_b32 v1, 63, v0")
    R("v_readfirstlane_b32 s3, v2")
    R(f"s_mul_hi_u32 s8, s2, {(2**32 + 27)//28}")
    R("s_mul_i32 s9, s8, 28")
    R("s_sub_u32 s9, s2, s9")
    R(f"s_mul_hi_u32 s10, s9, {(2**32 + 6)//7}")
    R("s_mul_i32 s11, s10, 7")
    R("s_sub_u32 s11, s9, s11")
    R("v_lshlrev_b32 v5, 4, v1")
    R("v_and_b32 v3, 15, v1"); R("v_lshrrev_b32 v4, 4, v1")
    R("s_mov_b32 s24, 14336")
    R("s_cmp_eq_u32 s3, 3")
    R("s_cbranch_scc0 LR_a")
    R("v_lshlrev_b32 v3, 1, v1"); R("v_and_b32 v3, 15, v3"); R("v_lshrrev_b32 v4, 3, v1")
    R("s_mov_b32 s24, 896")
    R("v_mov_b32 v6, 0x40000000")
    R("v_cmp_lt_u32 vcc, 31, v1")
    R("s_nop 1")
    R("v_cndmask_b32 v5, v5, v6, vcc")
    R("v_cndmask_b32 v3, v3, v6, vcc")
    R("v_min_u32 v3, 0x10000, v3")
    E.label("LR_a")
    R("v_mul_u32_u24 v7, 896, v3")
    R("v_lshl_add_u32 v7, v4, 3, v7")
    R("s_mul_i32 s13, s8, 1605632")
    R("s_mul_i32 s14, s9, 3584")
    R("s_add_u32 s13, s13, s14")
    R("s_lshl_b32 s14, s3, 10")
    R("s_add_u32 s13, s13, s14")
    R("s_waitcnt lgkmcnt(0)")
    R("s_add_u32 s16, s6, s13"); R("s_addc_u32 s17, s7, 0"); R("s_mov_b32 s18, 1605632"); R("s_mov_b32 s19, 0x20000")
    for h in range(16):
        R(f"s_mov_b32 s15, {h*100352}")
        R(f"buffer_load_dwordx4 v[{8+4*h}:{11+4*h}], v5, s[16:19], s15 offen {cfg.get('rlfl','')}")
    R("s_mul_i32 s13, s8, 100352")
    R("s_add_u32 s20, s4, s13"); R("s_addc_u32 s21, s5, 0"); R("s_mov_b32 s22, 100352"); R("s_mov_b32 s23, 0x20000")
    R("s_mul_i32 s14, s3, 28672")
    R("s_lshl_b32 s15, s11, 7"); R("s_add_u32 s14, s14, s15")
    R("s_lshl_b32 s15, s10, 5"); R("s_add_u32 s14, s14, s15")
    R("s_add_u32 s24, s24, s14")
    for h in range(16):
        R(f"s_waitcnt vmcnt({15-h})")
        for r in range(4):
            src = 8 + 4 * h + r
            if h == 0:
                R(f"v_lshlrev_b32 v{72+2*r}, 16, v{src}"); R(f"v_and_b32 v{73+2*r}, 0xffff0000, v{src}")
            else:
                R(f"v_lshlrev_b32 v80, 16, v{src}"); R(f"v_and_b32 v81, 0xffff0000, v{src}")
                R(f"v_add_f32 v{72+2*r}, v{72+2*r}, v80"); R(f"v_add_f32 v{73+2*r}, v{73+2*r}, v81")
    for r in range(4): R(f"v_cvt_pk_bf16_f32 v{84+r}, v{72+2*r}, v{73+2*r}")
    R("buffer_store_dwordx2 v[84:85], v7, s[20:23], s14 offen")
    R("buffer_store_dwordx2 v[86:87], v7, s[20:23], s24 offen")
    if stamps:
        R("s_waitcnt vmcnt(0)")
        R("s_memrealtime s[24:25]")
        R("s_waitcnt lgkmcnt(0)")
        R("s_add_u32 s16, s6, 0x8100000"); R("s_addc_u32 s17, s7, 0"); R("s_mov_b32 s18, 0x100000"); R("s_mov_b32 s19, 0x20000")
        R("s_lshl_b32 s12, s2, 2"); R("v_mov_b32 v2, s12"); R("v_mov_b32 v3, s24")
        R("v_cmp_eq_u32 vcc, 0, v0")
        R("s_and_saveexec_b64 s[14:15], vcc")
        R("buffer_store_dword v3, v2, s[16:19], 0 offen")
    R("s_waitcnt vmcnt(0)")
    E.label("LR_exit")
    R("s_endpgm")
    E.out.append(""".section .rodata,"a"
.p2align 6
.amdhsa_kernel gqa_main_kernel
  .amdhsa_next_free_vgpr 512
  .amdhsa_next_free_sgpr 102
  .amdhsa_accum_offset 256
  .amdhsa_group_segment_fixed_size 0
  .amdhsa_kernarg_size 64
  .amdhsa_user_sgpr_count 2
  .amdhsa_user_sgpr_kernarg_segment_ptr 1
  .amdhsa_system_sgpr_workgroup_id_x 1
.end_amdhsa_kernel
.p2align 6
.amdhsa_kernel gqa_reduce_kernel
  .amdhsa_next_free_vgpr 88
  .amdhsa_next_free_sgpr 32
  .amdhsa_accum_offset 88
  .amdhsa_group_segment_fixed_size 0
  .amdhsa_kernarg_size 64
  .amdhsa_user_sgpr_count 2
  .amdhsa_user_sgpr_kernarg_segment_ptr 1
  .amdhsa_system_sgpr_workgroup_id_x 1
.end_amdhsa_kernel
""")
    return "\n".join(E.out)

if __name__ == "__main__":
    ap = argparse.ArgumentParser()
    ap.add_argument("-o", default="a16.s")
    ap.add_argument("kv", nargs="*")
    a = ap.parse_args()
    cfg = {}
    for kv in a.kv:
        k, v = kv.split("=", 1)
        try: cfg[k] = eval(v)
        except Exception: cfg[k] = v
    txt = build(cfg)
    open(a.o, "w").write(txt)
```

```python
import sys, math, struct, argparse

def f2u(x): return struct.unpack("<I", struct.pack("<f", x))[0]
def V(lo, n=1): return {("v", lo + i) for i in range(n)}
def Ac(lo, n=1): return {("a", lo + i) for i in range(n)}
def vr(lo, n): return f"v[{lo}:{lo+n-1}]" if n > 1 else f"v{lo}"
def ar(lo, n): return f"a[{lo}:{lo+n-1}]"
INF = 1 << 30

class Ins:
    def __init__(s, text, kind, rd=(), wr=(), cost=4, after=-1, before=INF, tag=None, rdc=(), pre=None, res=None, passes=4):
        s.text, s.kind, s.rd, s.wr, s.cost = text, kind, set(rd), set(wr), cost
        s.after, s.before, s.tag, s.rdc = after, before, tag, set(rdc)
        s.pre = pre
        s.res = res
        s.passes = passes

class Emitter:
    def __init__(s):
        s.out = []; s.pos = 0
        s.dsq = []
        s.vmq = []
        s.lastw = {}; s.lastc = {}; s.lastst = {}
        s.nops = 0; s.skip = None
    def raw(s, text, n=1):
        s.out.append("    " + text); s.pos += n
    def label(s, l): s.out.append(l + ":")
    def comment(s, c): s.out.append("    ; " + c)
    def need_nops(s, i):
        need = 0
        def req(p, d):
            nonlocal need
            need = max(need, d - (s.pos - p - 1))
        for r in i.rd | i.wr:
            if r in s.lastw:
                k, p = s.lastw[r]
                if k == "mfma":
                    if i.kind == "mfma":
                        if r in i.rd and r not in i.rdc: req(p, 8)
                    else: req(p, 8)
                if r in i.rd:
                    if k in ("valu", "trans") and i.kind == "mfma": req(p, 2)
                    if k == "trans" and i.kind in ("valu", "trans", "perm", "vmem", "ds"): req(p, 1)
                    if k in ("valu", "trans") and i.kind == "perm": req(p, 2)
                    if k == "salu" and r == ("s", "m0") and i.kind == "vmem": req(p, 1)
        if i.kind in ("valu", "trans", "perm"):
            for r in i.wr:
                if r in s.lastc: req(s.lastc[r], 3)
                if r in s.lastst: req(s.lastst[r], 2)
        if i.kind == "mfma":
            for r in i.wr:
                if r in s.lastst: req(s.lastst[r], 2)
        return need
    def ds_idx(s, i):
        idx = -1
        for k, (d, _) in enumerate(s.dsq):
            if d & (i.rd | i.wr): idx = k
        return idx
    def wait_ds_idx(s, idx):
        n = len(s.dsq) - idx - 1
        if n > 15:
            idx += n - 15; n = 15
        s.raw(f"s_waitcnt lgkmcnt({n})")
        s.dsq = s.dsq[idx + 1:]
    def wait_ds_res(s, pred):
        idx = -1
        for k, (_, r) in enumerate(s.dsq):
            if r is not None and pred(r): idx = k
        if idx >= 0: s.wait_ds_idx(idx)
    def emit(s, i):
        idx = s.ds_idx(i)
        if idx >= 0: s.wait_ds_idx(idx)
        if i.kind == "ds" and len(s.dsq) >= 13: s.wait_ds_idx(len(s.dsq) - 1 - 9)
        n = s.need_nops(i)
        if n > 0:
            s.nops += n
            while n > 0:
                k = min(n, 16); s.raw(f"s_nop {k-1}", k); n -= k
        if not (s.skip and s.skip(i)): s.out.append("    " + i.text)
        p = s.pos; s.pos += 1
        kind = "valu" if i.kind == "perm" else i.kind
        for r in i.wr: s.lastw[r] = (kind, p)
        if i.kind == "mfma":
            for r in i.rdc: s.lastc[r] = p
        if i.kind == "ds": s.dsq.append((set(i.wr), i.res))
        if i.kind == "vmem":
            s.vmq.append(i.tag)
            if "buffer_store" in i.text:
                for r in i.rd: s.lastst[r] = p
    def wait_vm(s, tags, cnt=4):
        idx = -1
        for k, t in enumerate(s.vmq):
            if t in tags: idx = k
        for t in tags:
            assert s.vmq.count(t) == cnt, f"unit {t} not fully issued before its wait ({s.vmq.count(t)})"
        n = min(63, len(s.vmq) - idx - 1)
        if n < getattr(s, "vm_known", 1 << 30) + (len(s.vmq) - getattr(s, "vm_len", 0)):
            s.raw(f"s_waitcnt vmcnt({n})")
            s.vm_known = n; s.vm_len = len(s.vmq)

RING = 24576; NU = 6; UNIT = 4096
EB = 4 * RING
LB = EB + 57344
vLANE = 53
dK = 1
dV = 5
dWO = 9
vST = 10
vST2 = 5
rK = 12
rV = 16
rWO = 20
rE = 22
wP = 23
wO = 24
vL = 25
SACC = [32, 60]; PR = [88, 116]; OACC = 144
dX = 116
dWQ = 120
rX = 124
rWQ = 126
wQ = 130
AQ = 0
AK = 224
sSRD_X, sSRD_WQ, sSRD_K, sSRD_V, sSRD_WO, sSRD_WS = 16, 20, 24, 28, 32, 36
sRB = 42; sOFF = 43; sC = 44; sXB = 45; sW = 3; sST = 47
sSTAMP = 68
sSRD_FL, sSRD_FM, sSRD_PB, sSRD_OUT = 8, 12, 60, 64
sH = 56; sRO = 57; sBB = 58
FLOFF = 0x2000000
sSTO = 48
sPFO = 55
sW2K = 59
sSQ = 47; sSX = 41
vPFK = 11; vPFV = 11
def srd(n): return f"s[{n}:{n+3}]"
assert vL + 7 <= 32

def build(cfg):
    BUD = cfg.get("budget", 8)
    stamps = cfg.get("stamps", [])
    ntKV = "nt" if cfg.get("ntkv", 1) else ""
    ntW = "nt" if cfg.get("ntw", 0) else ""
    ntX = "nt" if cfg.get("ntx", 0) else ""
    stfl = cfg.get("stfl", "sc1")
    DMIN = cfg.get("dmin", 8)
    E = Emitter(); R = E.raw
    def s_sw(): R(f"s_and_b32 s40, s{sH}, 3" if cfg.get("swl", 1) else f"s_lshr_b32 s40, s{sH}, 2")
    def s_qd(): R(f"s_lshr_b32 s40, s{sH}, 2" if cfg.get("swl", 1) else f"s_and_b32 s40, s{sH}, 3")
    BL = 56
    Q0, S0, P0, O0, END = 0, 7 * BL, 15 * BL, 23 * BL, 30 * BL

    units = [("WQ", t) for t in range(14)] + [("K", i, h) for i in range(8) for h in range(2)] \
          + [("V", k) for k in range(16)] + [("WO", p, kh) for p in range(7) for kh in range(2)]
    uidx = {u: k for k, u in enumerate(units)}
    ESLOT = {8: 0, 9: 1, 10: 2, 11: 3}
    def uoff(u):
        if u[0] == "WO" and 2 * u[1] + u[2] >= 12: return ((uidx[u] - 10) % NU) * UNIT
        return (uidx[u] % NU) * UNIT
    rWOE = rK

    M = []
    def qa(j, ks, mt): return 32 * (j & 1) + 16 * ks + 4 * mt
    def qb(j, ks, nu): return 64 + 56 * (j & 1) + 28 * ks + 4 * nu
    def oacc(mt, nu): return OACC + 4 * (4 * nu + mt)
    first_use = {}; last_use = {}
    def use(name, i):
        first_use.setdefault(name, i); last_use[name] = i
    done_at = {}
    MQ = cfg.get("mq", 1)
    def qaq(j, ks, mt): return 176 + 16 * ks + 4 * mt if (MQ and j == 6) else qa(j, ks, mt)
    for js in ([[0], [1], [2], [3], [4], [5, 6]] if MQ else [[j] for j in range(7)]):
        for nu in range(7):
            for mt in range(4):
                for j in js:
                    for ks in range(2):
                        i = len(M)
                        M.append((oacc(mt, nu), qaq(j, ks, mt), qb(j, ks, nu), j == 0 and ks == 0))
                        use(("QA", j, ks, mt), i); use(("QB", j, ks, nu), i); done_at[("Q", mt, nu)] = i
    STGX = cfg.get("stgx", 0)
    def slotmap(lo, hi):
        busy = {k: -1 for k in range(56)}
        for i in range(lo, hi):
            for r in (M[i][1], M[i][2]):
                if not isinstance(r, tuple) and r < 224: busy[r // 4] = i
        order_ = sorted(range(56), key=lambda k: (busy[k], k))
        return {(kap, nu): AQ + 4 * order_[nu * 8 + kap] for nu in range(7) for kap in range(8)}, busy
    if STGX: QS, QBUSY = slotmap(0, len(M))
    else: QS, QBUSY = {(kap, nu): AQ + 4 * (kap * 7 + nu) for nu in range(7) for kap in range(8)}, None
    def ka(step, k):
        if STGX and step == 2: return ("v", OACC + 4 * k)
        return AK + 16 * (step & 1) + 4 * k
    SX = OACC + 112 - 28
    sbuf = [SACC[0], SACC[1], SX, SACC[0], SACC[1], SX, SACC[0], SACC[1]] if cfg.get("s3", 1) else [SACC[b & 1] for b in range(8)]
    for b in range(8):
        seq = [(h, nu, k) for h in range(2) for nu in range(7) for k in range(4)]
        if STGX and b == 0: seq = [(h, nu, k) for nu in range(7) for h in range(2) for k in range(4)]
        for h, nu, k in seq:
            i = len(M)
            M.append((sbuf[b] + 4 * nu, ka(2 * b + h, k), QS[(4 * h + k, nu)], h == 0 and k == 0))
            use(("SA", b, h, k), i); use(("SB", 4 * h + k, nu), i); done_at[("S", b, nu)] = i
            use(("Sacc", b, nu), i)
    qdie = sorted(range(56), key=lambda k: max(last_use[("SB",) + kn] for kn, r in QS.items() if r == AQ + 4 * k))
    def va(j, ks, mt): return AQ + 4 * qdie[(22 * (j & 1)) + 4 * ks + mt] if STGX else qa(j, ks, mt)
    def vb(j, ks, nu): return AQ + 4 * qdie[(22 * (j & 1)) + 8 + 2 * nu + ks] if STGX else qb(j, ks, nu)
    for j in range(8):
        for nu in range(7):
            for mt in range(4):
                for ks in range(2):
                    i = len(M)
                    M.append((oacc(mt, nu), va(j, ks, mt), vb(j, ks, nu), j == 0 and ks == 0))
                    use(("VA", j, ks, mt), i); use(("VB", j, ks, nu), i); done_at[("O", mt, nu)] = i
    if STGX: OS, OBUSY = slotmap(P0, len(M))
    else: OS, OBUSY = QS, None
    def oa(p, kap): return ("a", AK + 4 * kap) if p % 2 == 0 else ("v", PR[0] + 4 * kap)
    for p in range(7):
        for nu in range(7):
            for kap in range(8):
                i = len(M)
                M.append((SACC[p & 1] + 4 * nu, oa(p, kap), OS[(kap, nu)], kap == 0))
                use(("OA", p, kap >> 2, kap & 3), i); use(("OB", kap, nu), i); done_at[("Y", p, nu)] = i
                use(("Yacc", p, nu), i)
    assert len(M) == END
    def mfma(i):
        acc, a, b, cz = M[i]
        Cs = set() if cz else V(acc, 4)
        if not isinstance(a, tuple): a = ("a", a)
        at, as_ = (ar(a[1], 4), Ac(a[1], 4)) if a[0] == "a" else (vr(a[1], 4), V(a[1], 4))
        return Ins(f"v_mfma_f32_16x16x32_bf16 {vr(acc,4)}, {at}, {ar(b,4)}, {'0' if cz else vr(acc,4)}", "mfma",
                   rd=as_ | Ac(b, 4) | Cs, wr=V(acc, 4), rdc=Cs, cost=8)

    ev_done = set()
    events = {}
    def add_event(idx, name, fn): events.setdefault(idx, []).append((name, fn))
    def after_ev(*names): return lambda: all(n in ev_done for n in names)

    M0 = {("s", "m0")}
    reads_left = {}
    last_read = {}; now = [0]
    def res_idle(res):
        return reads_left.get(res, 0) == 0 and not any(r == res for _, r in E.dsq)

    def dma_unit(u, pre=None):
        L = []
        k = u[0]
        if k == "X":
            L.append(Ins(f"s_add_u32 m0, s{sXB}, {(u[1] % 4) * 16384}", "salu", wr=M0, pre=pre))
        elif k == "WO" and 2 * u[1] + u[2] in ESLOT:
            L.append(Ins(f"s_add_u32 m0, s{sXB}, {ESLOT[2 * u[1] + u[2]] * 16384}", "salu", wr=M0, pre=pre))
        else:
            L.append(Ins(f"s_add_u32 m0, s{sRB}, {uoff(u)}", "salu", wr=M0, pre=pre))
        def smov(val): L.append(Ins(f"s_mov_b32 s{sOFF}, {val}", "salu"))
        def sxor(val):
            smov(val)
        def ld(vreg, sr, j, fl):
            L.append(Ins(f"buffer_load_dwordx4 v{vreg}, {srd(sr)}, s{sOFF} offen offset:{j*1024} {fl} lds".replace("  ", " "),
                         "vmem", rd=M0 | V(vreg), tag=u, cost=8))
        if k == "X":
            if cfg.get("rot"): L.append(Ins(f"s_mov_b32 s{sOFF}, s{sSTO+u[1]}", "salu"))
            else: smov(128 * u[1])
            for j in range(4): ld(dX + j, sSRD_X, j, ntX)
        elif k == "WQ":
            if cfg.get("rot"):
                L.append(Ins(f"s_lshl_b32 s{sOFF}, s{sSTO+(u[1]>>1)}, 12", "salu"))
                if u[1] & 1: L.append(Ins(f"s_bitset1_b32 s{sOFF}, 18", "salu"))
            else: smov(u[1] * 32 * 8192)
            for j in range(4): ld(dWQ + j, sSRD_WQ, j, ntW)
        elif k == "K":
            sxor((u[1] >> 1) * 65536 + (u[1] & 1) * 8192 + u[2] * 256)
            for j in range(4): ld(dK + j, sSRD_K, j, ntKV)
        elif k == "V":
            sxor(u[1] * 16384)
            for j in range(4): ld(dV + j, sSRD_V, j, ntKV)
        elif k == "WO":
            for j in range(4):
                smov(u[2] * 128 * 896 + u[1] * 128 + j * (8 * 896 - 1024)); ld(dWO, sSRD_WO, j, "nt" if cfg.get("nto") else "")
        return L

    def rd(kind, dst, n, areg, off, res, after, before, pre=None):
        assert 0 <= off < 65536
        reads_left[res] = reads_left.get(res, 0) + 1
        if not isinstance(dst, tuple): dst = ("a", dst)
        dt, ds_ = (ar(dst[1], n), Ac(dst[1], n)) if dst[0] == "a" else (vr(dst[1], n), V(dst[1], n))
        return Ins(f"{kind} {dt}, v{areg} offset:{off}", "ds", rd=V(areg), wr=ds_, res=res,
                   after=after, before=max(before, after + 1), pre=pre, tag="read")

    RA = []; RB = []
    MID = cfg.get("mid", 40)
    A1, A2 = cfg.get("a1", 6), cfg.get("a2", 30)
    twait = {}
    def vmwait(tags): return (lambda: None) if cfg.get("novmw") else (lambda: E.wait_vm(tags))
    def bar(tags=(), wres=None, idle=()):
        def f():
            for r in idle: assert reads_left.get(r, 0) == 0, f"barrier releases {r} with reads pending"
            if wres is not None:
                assert not any(x.kind == "ds" and x.res is not None and wres(x.res) for x in VS), "publishing barrier before all writes were emitted"
            E.wait_ds_res(lambda r: r in idle or (wres is not None and wres(r)))
            if tags: E.wait_vm(list(tags))
            if not cfg.get("nobar"): R("s_barrier")
        return f
    def areads(base, j, kind, fu, areg, estride, busy=None, qa=qa):
        for ks in range(2):
            u = (kind, 2 * j + ks)
            at = base + (j - 1) * BL + ((A1, A2)[ks] if base == 0 else (cfg.get("v1", 6), cfg.get("v2", 30))[ks])
            if base == 0 and j == 0: at = -1
            if base == 0 and MQ and j == 5: at = 4 * BL + (0, 10)[ks]
            if base == 0 and MQ and j == 6: at = 4 * BL + (22, 34)[ks]
            name = ("Wa", u)
            add_event(at, name, vmwait([u])); twait[u] = at
            for mt in range(4):
                a0 = at if busy is None else max(at, busy(qa(j, ks, mt)))
                for e in range(2):
                    ar_, ex_ = (areg + (mt >> 1), 8 * (mt & 1)) if (kind == "WQ" and cfg.get("q128")) else (areg + mt, 0)
                    RA.append(rd("ds_read_b64_tr_b16", qa(j, ks, mt) + 2 * e, 2, ar_, uoff(u) + e * estride + ex_, u, a0,
                                 first_use[(fu, j, ks, mt)] - DMIN, after_ev(name)))
    XE = (5 * BL + cfg.get("xem", 18)) if MQ else (6 * BL + cfg.get("xe", 12))
    for j in range(7):
        at = (j - 1) * BL + MID if j > 0 else -1
        if MQ and j == 5: at = 4 * BL + 6
        if MQ and j == 6: at = 4 * BL + 44
        name = ("Bx", j)
        add_event(at, name, bar(tags=[("X", j)], idle=[("X", j - 1)] if 0 < j < 4 else []))
        areads(0, j, "WQ", "QA", rWQ, 512, qa=qaq)
        for nu in range(7):
            for ks in range(2):
                a0 = at
                if j >= 2: a0 = max(at, last_use[("QB", j - 2, ks, nu)])
                RB.append(rd("ds_read_b128", qb(j, ks, nu), 4, rX + ks, (j % 4) * 16384 + nu * 2048, ("X", j), a0,
                             min(first_use[("QB", j, ks, nu)] - DMIN, j * BL + MID - 6, XE - 4), after_ev(name)))
    add_event(XE, "Bxe", bar(idle=[("X", 3), ("X", 4), ("X", 5), ("X", 6)]))
    for st in range(16):
        b, h = st >> 1, st & 1
        at = S0 + (st - 1) * 28 + cfg.get("kat", 10)
        if STGX and st == 0: at = S0 - 40
        if STGX and st == 1: at = S0 - 20
        name = ("Wk", st)
        add_event(at, name, vmwait([("K", b, h)])); twait[("K", b, h)] = at
        RA += [rd("ds_read_b128", ka(st, k), 4, rK + k, uoff(("K", b, h)), ("K", b, h), at,
                  first_use[("SA", b, h, k)] - DMIN, after_ev(name)) for k in range(4)]
    QST = cfg.get("qst", [(-24, 3), (0, 5), (22, 7)]) if STGX else [(-1, 7)]
    qdead = {}
    lo_ = 0
    for n_, (pos, hi_) in enumerate(QST):
        add_event(S0 + pos, ("Bq", n_), bar(wres=(lambda h_: (lambda r: r[0] == "qw" and r[1] < h_))(hi_)))
        for nu in range(lo_, hi_): qdead[nu] = (S0 + pos, n_)
        lo_ = hi_
    for kap, nu in sorted(QS, key=lambda kn: first_use[("SB",) + kn]):
        a0 = qdead[nu][0]
        if STGX: a0 = max(a0, QBUSY[(QS[(kap, nu)] - AQ) // 4])
        RB.append(rd("ds_read_b128", QS[(kap, nu)], 4, rE, (kap * 7 + nu) * 1024, ("q",), a0,
                     first_use[("SB", kap, nu)] - DMIN, after_ev(("Bq", qdead[nu][1]))))
    add_event(S0 + BL + 4, "Bqe", bar(idle=[("q",)]))
    def qbusy(reg): return max(last_use[("SB",) + kn] for kn, r in QS.items() if r == reg)
    for j in range(8):
        at = P0 + (j - 1) * BL + MID
        c = j >> 1
        name = ("Bp", j & ~1)
        if j == 0: add_event(at, name, bar(wres=lambda r: r in (("pw", 0), ("pw", 1))))
        elif j == 2: add_event(at, name, bar(idle=[("P", 0)]))
        elif j == 4: add_event(at, name, bar(idle=[("P", 1)], wres=lambda r: r == ("pw", 2)))
        elif j == 6: add_event(at, name, bar(idle=[("P", 2)], wres=lambda r: r in (("pw", 3), ("lw",))))
        areads(P0, j, "V", "VA", rV, 2048, qbusy if j < 2 else None, qa=va)
        if j & 1: at = P0 + (j - 1) * BL + cfg.get("mid2", 30)
        for nu in range(7):
            for ks in range(2):
                a0 = max(at, qbusy(vb(j, ks, nu))) if j < 2 else at
                wprod = 2 * (j & 1) + ks
                RB.append(rd("ds_read_b128", vb(j, ks, nu), 4, rE, (c & 1) * 28672 + (wprod * 7 + nu) * 1024, ("P", c), a0,
                             min(first_use[("VB", j, ks, nu)] - DMIN, P0 + j * BL + (MID - 6 if j < 7 else cfg.get("xe", 12) - 4)), after_ev(name)))
    add_event(P0 + 7 * BL + cfg.get("xe", 12), "Bpe", bar(idle=[("P", 3)]))
    OST = cfg.get("ost", [(-18, 3), (0, 5), (20, 7)]) if STGX else [(-1, 7)]
    wo = lambda p: [("WO", p, 0), ("WO", p, 1)]
    odead = {}; lo_ = 0
    nb = len(OST)
    for n_, (pos, hi_) in enumerate(OST):
        tags = []; idle = []
        if STGX:
            if n_ == 0: tags = wo(0)
            if n_ == 1: idle = wo(0)
            if n_ == 2: tags = wo(1)
        else: idle = wo(0)
        add_event(O0 + pos, ("Box", n_), bar(wres=(lambda h_: (lambda r: r[0] == "ow" and r[1] < h_))(hi_), tags=tags, idle=idle))
        for nu in range(lo_, hi_): odead[nu] = (O0 + pos, n_)
        lo_ = hi_
    REL0 = ("Box", 1 if STGX else 0)
    for p in range(7):
        at = O0 + (p - 1) * BL + cfg.get("oat", 24)
        name = ("Bo", p)
        if STGX and p == 0: name, at = ("Box", 0), O0 + OST[0][0]
        elif STGX and p == 1: name, at = ("Box", 2), O0 + OST[2][0]
        elif p == 0:
            at = O0 - BL + cfg.get("oat0", 38); add_event(at, name, bar(tags=wo(p)))
        elif p == 1:
            at = O0 + cfg.get("oat1", 20); add_event(at, name, bar(tags=wo(p)))
        elif p == 2:
            at = O0 + BL - 2
            add_event(at, name, bar(tags=wo(p), idle=[("o",)] + wo(1)))
        else: add_event(at, name, bar(tags=wo(p)))
        twait[("WO", p, 0)] = twait[("WO", p, 1)] = at
        if p == 2: at = O0 + BL + 8
        for h in range(2):
            st = 2 * p + h
            for k in range(4):
                for e in range(2):
                    if st in ESLOT: areg, off = rWOE, ESLOT[st] * 16384 + k * 4096 + e * 2048
                    else: areg, off = rWO + (k >> 1), (k & 1) * RING + uoff(("WO", p, h)) + e * 2048
                    d = oa(p, 4 * h + k)
                    bef = first_use[("OA", p, h, k)] - DMIN
                    if p == 0: bef = min(bef, O0 - 5)
                    if p == 1: bef = min(bef, at + ((O0 + 48 - at) * (8 * h + 2 * k + e)) // 16 + 2)
                    RA.append(rd("ds_read_b64_tr_b16", (d[0], d[1] + 2 * e), 2, areg, off, ("WO", p, h), at, bef, after_ev(name)))
    for nu in range(7):
        for kap in range(8):
            a0 = odead[nu][0]
            if STGX: a0 = max(a0, OBUSY[(OS[(kap, nu)] - AQ) // 4])
            RB.append(rd("ds_read_b128", OS[(kap, nu)], 4, rE, (kap * 7 + nu) * 1024, ("o",), a0,
                         first_use[("OB", kap, nu)] - DMIN, after_ev(("Box", odead[nu][1]))))

    DQ = []
    order = []
    xs = [("X", j) for j in range(7)]
    order = [xs[0], units[0], units[1], xs[1], units[2], units[3], xs[2], units[4], units[5], xs[3]]
    k = 6
    for j in range(4, 7):
        order += [units[k], units[k + 1], xs[j]]; k += 2
    order += units[k:]
    if cfg.get("xlast"):
        order = [xs[0], units[0], units[1]]
        for j in range(1, 7): order += [units[2 * j], units[2 * j + 1], xs[j]]
        order += units[14:]
    for u in order:
        if u[0] == "X":
            pre = after_ev(("Bx", u[1] - 3)) if u[1] >= 4 else None
        else:
            k = uidx[u]
            if k < NU: pre = None
            elif units[k - NU][0] == "WO":
                st = 2 * u[1] + u[2]
                pre = after_ev(REL0) if st < 8 else after_ev(("Bo", 2))
            else:
                pre = (lambda r: (lambda: reads_left[r] == 0 and now[0] - last_read[r] >= cfg.get("rel", 7)))(units[k - NU])
        L = dma_unit(u, pre)
        if cfg.get("look") and u[0] in cfg.get("lookk", ("K", "V")):
            k = uidx[u]
            n_ = k - 14
            if n_ >= cfg.get("nfree", 7):
                L[0].after = min(int(S0 + cfg.get("poff", 10) + (n_ - cfg.get("nfree", 7)) * cfg.get("pace", 35)), twait[units[k - cfg["look"]]])
        if u[0] != "X" and uidx[u] >= NU and units[uidx[u] - NU][0] != "WO": L[0].res = units[uidx[u] - NU]
        if cfg.get("rate") and u[0] in ("K", "V", "WO") and uidx[u] < 46 + cfg.get("nwo", 6):
            m_ = 4 * (uidx[u] - 14)
            lds_ = [x for x in L if x.kind == "vmem"]
            for j_, x in enumerate(lds_):
                mm = m_ + j_
                t_ = cfg.get("g0", 8.5) * 28 + min(mm, 128) * cfg["rate"] + max(0, mm - 128) * cfg.get("rate2", cfg["rate"])
                if t_ > S0: t_ -= cfg.get("tgap", 0)
                x.after = int(t_)
            L[0].after = lds_[0].after - 4
        if u[0] == "WO" and 2 * u[1] + u[2] < len(cfg.get("woat", [])): L[0].after = O0 + cfg["woat"][2 * u[1] + u[2]]
        if cfg.get("wopfq") is not None and u[0] != "X" and uidx[u] == 46 + cfg["wopfq"]:
            L.insert(0, Ins(f"buffer_load_dword v{vPFV}, v{vPFV}, {srd(sSRD_WO)}, 0 offen", "vmem", rd=V(vPFV), tag=("pf",), cost=8, after=O0 + cfg.get("pfat", -10000)))
        DQ.append((u, L))

    def valu(text, rd_, wr_, after, before=INF, kind="valu", cost=4, pre=None):
        return Ins(text, kind, rd=rd_, wr=wr_, after=after, before=before, cost=cost, pre=pre)
    VS = []
    for nu in range(7 if cfg.get("q128") else 0):
        dl = qdead[nu][0] + 1 - (cfg.get("wlead", 3) if STGX else 0)
        for al in range(2):
            r = oacc(2 * al, nu)
            for x in range(8): VS.append(valu(f"v_mul_f32 v{r+x}, s{sC}, v{r+x}", V(r + x), V(r + x), done_at[("Q", 2 * al + (x >> 2), nu)], dl))
            aft = done_at[("Q", 2 * al + 1, nu)]
            for x in range(4):
                VS.append(valu(f"v_cvt_pk_bf16_f32 v{r+x}, v{r+2*x}, v{r+2*x+1}", V(r + 2 * x, 2), V(r + x), aft, dl))
            VS.append(Ins(f"ds_write_b128 v{wO}, {vr(r,4)} offset:{(al*7+nu)*1024}", "ds", rd=V(wO) | V(r, 4), res=("qw", nu),
                          after=aft, before=dl, pre=after_ev("Bxe"), cost=20))
    for nu in range(0 if cfg.get("q128") else 7):
        wr = []
        for mt in range(4):
            aft = done_at[("Q", mt, nu)]
            r = oacc(mt, nu)
            for x in range(4): VS.append(valu(f"v_mul_f32 v{r+x}, s{sC}, v{r+x}", V(r + x), V(r + x), aft, qdead[nu][0] + 1 - (cfg.get("wlead", 3) if STGX else 0)))
            VS += wr
            VS.append(valu(f"v_cvt_pk_bf16_f32 v{r}, v{r}, v{r+1}", V(r, 2), V(r), aft, qdead[nu][0] + 1 - (cfg.get("wlead", 3) if STGX else 0)))
            VS.append(valu(f"v_cvt_pk_bf16_f32 v{r+1}, v{r+2}, v{r+3}", V(r + 2, 2), V(r + 1), aft, qdead[nu][0] + 1 - (cfg.get("wlead", 3) if STGX else 0)))
            off = ((mt >> 1) * 7 + nu) * 1024 + (mt & 1) * 512
            wr = [Ins(f"ds_write_b64 v{wQ}, {vr(r,2)} offset:{off}", "ds", rd=V(wQ) | V(r, 2), res=("qw", nu),
                      after=aft, before=qdead[nu][0] + 1 - (cfg.get("wlead", 3) if STGX else 0), pre=after_ev("Bxe"), cost=12)]
        VS += wr
    def pw(c, nu, hf, aft, bef, evn):
        r = PR[c & 1] + 4 * nu + 2 * hf
        return Ins(f"ds_write_b64 v{wP}, {vr(r,2)} offset:{(c&1)*28672+nu*1024+8*hf}", "ds", rd=V(wP) | V(r, 2), res=("pw", c),
                   after=aft, before=bef, pre=after_ev(evn), cost=12)
    pend = []
    WS = []
    pvfirst = {}
    for i in range(P0, P0 + BL): pvfirst.setdefault(M[i][0], i)
    for b in range(8):
        c, hf = b >> 1, b & 1
        for nu in range(7):
            acc = sbuf[b] + 4 * nu
            aft = done_at[("S", b, nu)]
            nxt = [bb for bb in range(b + 1, 8) if sbuf[bb] == sbuf[b]]
            pdead = (P0 - BL + MID, P0 - BL + MID, P0 + 3 * BL + MID, P0 + 5 * BL + MID)[c]
            if nxt: bef = first_use[("Sacc", nxt[0], nu)]
            elif acc in pvfirst: bef = pvfirst[acc]
            else: bef = INF
            bef = min(bef, pdead - 2)
            pr = PR[c & 1] + 4 * nu + 2 * hf
            ex = [valu(f"v_exp_f32 v{acc+x}, v{acc+x}", V(acc + x), V(acc + x), aft, bef, kind="trans", cost=8) for x in range(4)]
            if b == 0:
                ad = [valu(f"v_add_f32 v{vL+nu}, v{acc}, v{acc+1}", V(acc, 2), V(vL + nu), aft, bef)]
                ad += [valu(f"v_add_f32 v{vL+nu}, v{vL+nu}, v{acc+x}", V(vL + nu) | V(acc + x), V(vL + nu), aft, bef) for x in (2, 3)]
                ad = [None] + ad
            else:
                ad = [valu(f"v_add_f32 v{vL+nu}, v{vL+nu}, v{acc+x}", V(vL + nu) | V(acc + x), V(vL + nu), aft, bef) for x in range(4)]
            cv = [valu(f"v_cvt_pk_bf16_f32 v{pr}, v{acc}, v{acc+1}", V(acc, 2), V(pr), aft, bef),
                  valu(f"v_cvt_pk_bf16_f32 v{pr+1}, v{acc+2}, v{acc+3}", V(acc + 2, 2), V(pr + 1), aft, bef)]
            tail = [ad[0], cv[0], ad[1], cv[1], ad[2], ad[3]]
            tail = [x for x in tail if x is not None]
            if cfg.get("pw128"):
                if hf == 1:
                    r = PR[c & 1] + 4 * nu
                    tail.append(Ins(f"ds_write_b128 v{wP}, {vr(r,4)} offset:{(c&1)*28672+nu*1024}", "ds", rd=V(wP) | V(r, 4), res=("pw", c),
                                    after=aft, before=pdead, pre=after_ev(("Bqe", "Bqe", ("Bp", 2), ("Bp", 4))[c]), cost=20))
            else:
                tail.append(pw(c, nu, hf, aft, pdead, ("Bqe", "Bqe", ("Bp", 2), ("Bp", 4))[c]))
            seq = []
            for x in range(4):
                seq.append(ex[x])
                seq += pend[:2]; pend = pend[2:]
            seq += pend
            pend = tail
            VS += seq
    VS += pend
    lbef = P0 + 5 * BL + MID
    T0 = SACC[0]
    aft = done_at[("S", 7, 6)]
    for nu in range(7): VS.append(valu(f"v_mov_b32 v{T0+nu}, v{vL+nu}", V(vL + nu), V(T0 + nu), aft, lbef))
    for nu in range(7): VS.append(valu(f"v_permlane32_swap_b32 v{vL+nu}, v{T0+nu}", V(vL + nu) | V(T0 + nu), V(vL + nu) | V(T0 + nu), aft, lbef, kind="perm", cost=8))
    for nu in range(7): VS.append(valu(f"v_add_f32 v{vL+nu}, v{vL+nu}, v{T0+nu}", V(vL + nu) | V(T0 + nu), V(vL + nu), aft, lbef))
    for nu in range(7): VS.append(valu(f"v_mov_b32 v{T0+nu}, v{vL+nu}", V(vL + nu), V(T0 + nu), aft, lbef))
    for nu in range(7): VS.append(valu(f"v_permlane16_swap_b32 v{vL+nu}, v{T0+nu}", V(vL + nu) | V(T0 + nu), V(vL + nu) | V(T0 + nu), aft, lbef, kind="perm", cost=8))
    for nu in range(7): VS.append(valu(f"v_add_f32 v{T0+8+nu}, v{vL+nu}, v{T0+nu}", V(vL + nu) | V(T0 + nu), V(T0 + 8 + nu), aft, lbef))
    VS.append(valu(f"v_add_u32 v{T0+7}, s{sXB}, v{vST}", V(vST), V(T0+7), aft, lbef))
    VS.append(valu(f"v_subrev_u32 v{T0+7}, s{sW2K}, v{T0+7}", V(T0+7), V(T0+7), aft, lbef))
    for hh in range(2):
        VS.append(Ins(f"ds_write_b128 v{T0+7}, {vr(T0+8+4*hh,4)} offset:{57344+hh*1024}", "ds", rd=V(T0+7) | V(T0 + 8 + 4 * hh, 4),
                      res=("lw",), after=aft, before=lbef, cost=20))
    rb = P0 + 7 * BL
    for w in range(4):
        for hh in range(2):
            d = T0 + 8 * w + 4 * hh
            VS.append(Ins(f"ds_read_b128 {vr(d,4)}, v{rE} offset:{57344+w*2048+hh*1024}", "ds", rd=V(rE), wr=V(d, 4), res=("lr",),
                          after=0, before=rb, pre=after_ev(("Bp", 6))))
    la = P0 + 6 * BL + 20
    for nu in range(7): VS.append(valu(f"v_add_f32 v{T0+nu}, v{T0+nu}, v{T0+8+nu}", V(T0 + nu) | V(T0 + 8 + nu), V(T0 + nu), la, O0))
    for nu in range(7): VS.append(valu(f"v_add_f32 v{T0+16+nu}, v{T0+16+nu}, v{T0+24+nu}", V(T0 + 16 + nu) | V(T0 + 24 + nu), V(T0 + 16 + nu), la, O0))
    for nu in range(7): VS.append(valu(f"v_add_f32 v{T0+nu}, v{T0+nu}, v{T0+16+nu}", V(T0 + nu) | V(T0 + 16 + nu), V(T0 + nu), la, O0))
    if cfg.get("fb", 1):
        a_, b_ = T0 + 8, T0 + 9
        VCC = {("s", "vcc")}
        VS.append(valu(f"v_max3_f32 v{a_}, v{T0}, v{T0+1}, v{T0+2}", V(T0, 3), V(a_), la, O0))
        VS.append(valu(f"v_min3_f32 v{b_}, v{T0}, v{T0+1}, v{T0+2}", V(T0, 3), V(b_), la, O0))
        for r in (3, 5):
            VS.append(valu(f"v_max3_f32 v{a_}, v{a_}, v{T0+r}, v{T0+r+1}", V(a_) | V(T0 + r, 2), V(a_), la, O0))
            VS.append(valu(f"v_min3_f32 v{b_}, v{b_}, v{T0+r}, v{T0+r+1}", V(b_) | V(T0 + r, 2), V(b_), la, O0))
        hi_, lo_ = f2u(2.0 ** cfg.get("lim", 40)), f2u(2.0 ** -cfg.get("lim", 40))
        VS.append(valu(f"v_cmp_nge_f32 vcc, {hi_:#x}, v{a_}\n    s_cbranch_vccnz L_fallback", V(a_), VCC, la, O0, cost=8))
        VS.append(valu(f"v_cmp_nle_f32 vcc, {lo_:#x}, v{b_}\n    s_cbranch_vccnz L_fallback", V(b_), VCC, la, O0, cost=8))
    for nu in range(7): VS.append(valu(f"v_rcp_f32 v{vL+nu}, v{T0+nu}", V(T0 + nu), V(vL + nu), la, O0, kind="trans", cost=8))
    VS.append(valu(f"v_add_u32 v{rWOE}, {EB}, v{rWO}", V(rWO), V(rWOE), P0 + 6 * BL, O0))
    VS.append(valu(f"v_lshrrev_b32 v{vST2}, 1, v{vST}", V(vST), V(vST2), P0 + 6 * BL, O0))
    for p in range(7): VS.append(Ins(f"s_mov_b32 s{sSTO+p}, {p*3584}", "salu", after=P0 + 5 * BL, before=O0))
    for nu in range(7):
        for al in range(2):
            aft = done_at[("O", 2 * al + 1, nu)]
            r = oacc(2 * al, nu)
            for x in range(4):
                VS.append(valu(f"v_cvt_pk_bf16_f32 v{r+x}, v{r+2*x}, v{r+2*x+1}", V(r + 2 * x, 2), V(r + x), aft, odead[nu][0] + 1 - (cfg.get("wlead", 3) if STGX else 0)))
            VS.append(Ins(f"ds_write_b128 v{wO}, {vr(r,4)} offset:{(al*7+nu)*1024}", "ds", rd=V(wO) | V(r, 4), res=("ow", nu),
                          after=aft, before=odead[nu][0] + 1 - (cfg.get("wlead", 3) if STGX else 0), pre=after_ev("Bpe"), cost=20))
    SQ = []
    for p in range(7):
        stg = OACC + 16 * p
        for nu in range(7):
            acc = SACC[p & 1] + 4 * nu
            aft = done_at[("Y", p, nu)]
            bef = first_use[("Yacc", p + 2, nu)] if p < 5 else INF
            for x in range(4): VS.append(valu(f"v_mul_f32 v{acc+x}, v{vL+nu}, v{acc+x}", V(acc + x) | V(vL + nu), V(acc + x), aft, bef))
            d = stg + 2 * nu
            VS.append(valu(f"v_cvt_pk_bf16_f32 v{d}, v{acc}, v{acc+1}", V(acc, 2), V(d), aft, bef))
            VS.append(valu(f"v_cvt_pk_bf16_f32 v{d+1}, v{acc+2}, v{acc+3}", V(acc + 2, 2), V(d + 1), aft, bef))
            gate = (lambda: not dq) if cfg.get("gate", 1) else None
            if nu & 1:
                VS.append(Ins(f"buffer_store_dwordx4 {vr(d-2,4)}, v{vST}, {srd(sSRD_WS)}, s{sSTO+p} offen offset:{(nu>>1)*1024} {stfl}",
                              "vmem", rd=V(d - 2, 4) | V(vST), tag=("st", p), after=aft, cost=32, pre=gate))
            if nu == 6:
                VS.append(Ins(f"buffer_store_dwordx2 {vr(d,2)}, v{vST2}, {srd(sSRD_WS)}, s{sSTO+p} offen offset:3072 {stfl}",
                              "vmem", rd=V(d, 2) | V(vST2), tag=("st", p), after=aft, cost=18, pre=gate))

    vFA, vFO, vFN, vFV = dK, dK + 1, dK + 2, dK + 3
    vRA, vOA, vOA2, vZ = 6, 7, 8, 0
    SEL = 120; RD_ = 128
    def publish(cnt):
        pubd[0] = cnt
        R(f"v_and_b32 v{vFV}, -16, v{vFV}")
        R(f"v_add_u32 v{vFV}, {16 + cnt}, v{vFV}")
        E.emit(Ins(f"buffer_store_dword v{vFV}, v{vZ}, {srd(sSRD_FM)}, 0 offen {cfg.get('ffl','sc1')}", "vmem", rd=V(vFV) | V(vZ), tag="fl"))
    def reduce_setup():
        t = RD_
        R(f"v_lshrrev_b32 v{t}, 4, v{vST}")
        R(f"v_and_b32 v{t+1}, 15, v{t}")
        R(f"v_lshrrev_b32 v{t+2}, 4, v{t}")
        R(f"v_lshlrev_b32 v{vZ}, 24, v{t}")
        R(f"v_and_b32 v{t+3}, 16, v{vST}")
        R(f"v_mov_b32 v{t+4}, 0x3f80"); R(f"v_lshlrev_b32 v{t+3}, v{t+3}, v{t+4}")
        R(f"v_bfe_u32 v{t+4}, v{t}, 1, 3")
        for io in range(0, 8, 2):
            R(f"v_cmp_eq_u32 vcc, {io}, v{t+4}"); R(f"v_cmp_eq_u32 s[24:25], {io+1}, v{t+4}"); R("s_nop 0")
            R(f"v_cndmask_b32 v{SEL+io}, 0, v{t+3}, vcc"); R(f"v_cndmask_b32 v{SEL+io+1}, 0, v{t+3}, s[24:25]")
        R(f"s_lshl_b32 s40, s{sW}, 4"); R(f"v_add_u32 v{t+3}, s40, v{t+1}")
        R(f"v_cmp_gt_u32 s[24:25], 56, v{t+3}")
        R(f"v_mul_u32_u24 v{vRA}, 100352, v{t+2}"); R(f"v_lshl_add_u32 v{vRA}, v{t+3}, 4, v{vRA}")
        R(f"v_mov_b32 v{t+4}, 0x7ffffff0")
        R(f"v_cndmask_b32 v{vRA}, v{t+4}, v{vRA}, s[24:25]")
        s_qd(); R("s_mul_i32 s40, s40, 56"); R(f"v_add_u32 v{t+3}, s40, v{t+3}")
        R(f"v_and_b32 v{t+5}, 1, v{t+2}")
        R(f"v_lshrrev_b32 v{t+6}, 6, v{t+3}"); R(f"v_and_b32 v{t+7}, 15, v{t+3}")
        R(f"v_lshl_add_u32 v{t+6}, v{t+6}, 5, v{t+7}"); R(f"v_lshl_add_u32 v{t+6}, v{t+5}, 4, v{t+6}")
        R(f"v_bfe_u32 v{t+7}, v{t+3}, 4, 2")
        R(f"v_cmp_lt_u32 vcc, 191, v{t+3}")
        R(f"v_and_b32 v{t+8}, 7, v{t+3}"); R(f"v_lshl_add_u32 v{t+8}, v{t+8}, 1, v{t+5}"); R(f"v_add_u32 v{t+8}, 96, v{t+8}")
        R(f"v_bfe_u32 v{t+9}, v{t+3}, 3, 2")
        R(f"v_cndmask_b32 v{t+6}, v{t+6}, v{t+8}, vcc"); R(f"v_cndmask_b32 v{t+7}, v{t+7}, v{t+9}, vcc")
        R(f"v_mul_u32_u24 v{vOA}, 896, v{t+6}"); R(f"v_lshl_add_u32 v{vOA}, v{t+7}, 3, v{vOA}")
        R(f"v_lshrrev_b32 v{t+5}, 1, v{t+2}"); R(f"v_lshl_add_u32 v{vOA}, v{t+5}, 7, v{vOA}")
        R(f"v_cmp_gt_u32 vcc, 32, v{t}")
        s_sw(); R("s_lshl_b32 s40, s40, 5"); R(f"v_add_u32 v{vOA}, s40, v{vOA}")
        R(f"v_cndmask_b32 v{vOA}, v{t+4}, v{vOA}, s[24:25]")
        R(f"v_cndmask_b32 v{vOA2}, v{t+4}, v{vOA}, vcc")
    npoll = [0]; nchk = [0]; pubd = [0]
    spins = []
    def preg(k): return rV + (k & 3)
    def poll():
        npoll[0] += 1
        r = preg(npoll[0])
        E.emit(Ins(f"buffer_load_dword v{r}, v{vFA}, {srd(sSRD_FL)}, 0 offen sc1", "vmem", rd=V(vFA), wr=V(r), tag=("poll", npoll[0])))
    def check_cond(need, r=None):
        r = vFN if r is None else r
        R(f"v_cmp_ne_u32 vcc, v{r}, v{vFO}")
        R(f"v_and_b32 v{vFN}, 15, v{r}")
        R(f"v_cmp_le_u32 s[26:27], {need}, v{vFN}")
        R("s_and_b64 vcc, vcc, s[26:27]")
        R("s_cmp_eq_u64 vcc, -1")
    def check(need, mine):
        nchk[0] += 1
        E.wait_vm([("poll", nchk[0])], 1)
        check_cond(need, preg(nchk[0]))
        k = len(spins); spins.append((need, mine))
        R(f"s_cbranch_scc0 L_spin{k}")
        E.label(f"L_spun{k}")
    def rreg(p, g): return OACC + 16 * p + 4 * g
    def rloads(p):
        L = []
        for g in range(4):
            L.append(Ins(f"s_add_u32 s{sOFF}, s{sRO}, {g*4*100352 + p*3584}", "salu"))
            L.append(Ins(f"buffer_load_dwordx4 {vr(rreg(p,g),4)}, v{vRA}, {srd(sSRD_PB)}, s{sOFF} offen {cfg.get('rfl','sc1')}", "vmem",
                         rd=V(vRA), wr=V(rreg(p, g), 4), tag=("rl", p, g), cost=8))
        return L
    def rsum(p, nxt=None):
        d = RD_ + 4 * (p >> 1); sel = SEL + 4 * (p & 1)
        nl = rloads(nxt) if nxt is not None else None
        for g in range(4):
            if nl:
                E.wait_vm([("rl", p, g)], 1)
                E.emit(nl[2 * g]); E.emit(nl[2 * g + 1])
            E.wait_vm([("rl", p, g)], 1)
            cz = (p & 1) == 0 and g == 0
            E.emit(Ins(f"v_mfma_f32_16x16x32_bf16 {vr(d,4)}, {vr(sel,4)}, {vr(rreg(p,g),4)}, {'0' if cz else vr(d,4)}", "mfma",
                       rd=V(sel, 4) | V(rreg(p, g), 4) | (set() if cz else V(d, 4)), wr=V(d, 4), rdc=set() if cz else V(d, 4)))
    def rstore(q):
        d = RD_ + 4 * q
        E.emit(valu(f"v_cvt_pk_bf16_f32 v{d}, v{d}, v{d+1}", V(d, 2), V(d), 0))
        E.emit(valu(f"v_cvt_pk_bf16_f32 v{d+1}, v{d+2}, v{d+3}", V(d + 2, 2), V(d + 1), 0))
        va = vOA if q < 3 else vOA2
        E.emit(Ins(f"buffer_store_dwordx2 {vr(d,2)}, v{va}, {srd(sSRD_OUT)}, 0 offen offset:{256*q} {cfg.get('ofl','')}", "vmem", rd=V(d, 2) | V(va), tag="ost"))
    PROG = cfg.get("prog", 1) and cfg.get("ink", 1)
    if cfg.get("ink", 1):
        def ev_setup():
            assert not any(x.kind == "vmem" and x.tag[0] == "V" for x in dq)
            assert not any(x.res == ("pw", 3) for x in VS)
            reduce_setup()
        events.setdefault(O0 + int(cfg.get("rsat", 3.6) * BL), []).insert(0, ("rsetup", ev_setup))
    def act(a_, inline):
        k = a_[0]
        if k == "pub": E.wait_vm([("st", p) for p in range(a_[1])]); publish(a_[1])
        elif k == "poll": poll()
        elif k == "chk": check(a_[1], pubd[0])
        elif k == "ld":
            if inline:
                for x in rloads(a_[1]): E.emit(x)
            else: dq.extend(rloads(a_[1]))
        elif k == "sum": rsum(a_[1])
        elif k == "sl": rsum(a_[1] // 10, a_[1] % 10)
        elif k == "out": rstore(a_[1])
        elif k == "stamp":
            if stamps: stamp()
    MIDS = cfg.get("mids", [(4.2, ("pub", 3))]) if PROG else []
    for n_, (pos, a_) in enumerate(MIDS):
        add_event(O0 + int(pos * BL), ("mid", n_), (lambda z: (lambda: act(z, False)))(a_))
    TAIL = cfg.get("tail", "poll pub7 stamp chk3 ld0 ld1 poll ld2 sum0 sum1 out0 chk7 stamp ld3 ld4 ld5 ld6 sum2 sum3 sum4 out1 sum5 sum6 out2 out3") if PROG \
        else "pub7 stamp poll chk7 stamp ld0 ld1 ld2 ld3 ld4 ld5 ld6 sum0 sum1 sum2 out0 sum3 sum4 out1 sum5 sum6 out2 out3"
    if cfg.get("ink", 1):
        fa = P0 - 28
        VS.insert(0, valu(f"v_and_b32 v{vFA}, 0xf0, v{vST}", V(vST), V(dK, 4), fa, P0 + BL, pre=lambda: not any(x.kind == "vmem" and x.tag[0] == "K" for x in dq)))
        VS.insert(1, valu(f"v_lshlrev_b32 v{vFA}, 3, v{vFA}", V(vFA), V(vFA), fa, P0 + BL))
        VS.insert(2, valu(f"v_mov_b32 v{vFN}, 0", set(), V(vFN), fa, P0 + BL))
        VS.insert(3, Ins(f"buffer_load_dword v{vFO}, v{vFA}, {srd(sSRD_FL)}, 0 offen sc1", "vmem", rd=V(vFA), wr=V(vFO), tag="pf", after=fa, before=P0 + BL, cost=8))
        VS.insert(4, Ins(f"buffer_load_dword v{vFV}, v{vFN}, {srd(sSRD_FM)}, 0 offen sc1", "vmem", rd=V(vFN), wr=V(vFV), tag="pf", after=fa, before=P0 + BL, cost=8))

    PF = []
    if cfg.get("wopf") is not None:
        PF.append(Ins(f"buffer_load_dword v{vPFV}, v{vPFV}, {srd(sSRD_WO)}, 0 offen", "vmem", rd=V(vPFV), tag="pf",
                      after=int(cfg["wopf"] * 28), cost=8))

    KN = "standalone__gqa_block_cached__near_ridge_kernel" if cfg.get("ink", 1) else "gqa_main_kernel"
    if cfg.get("ink", 1):
        E.out.append("; fused GQA block: q-proj + attention + out-proj + cross-workgroup head reduction")
        E.out.append("; @launch grid=(256,1,1) block=(256,1,1) lds=163840")
    else:
        E.out.append("""; fused GQA block: q-proj + attention + out-proj partials (main), then head reduction (reduce)
; @launch kernel=gqa_main_kernel grid=(256,1,1) block=(256,1,1) lds=163840
; @launch kernel=gqa_reduce_kernel grid=(448,1,1) block=(256,1,1) lds=0""")
    E.out.append(f""".amdgcn_target "amdgcn-amd-amdhsa--gfx950"
.text
.globl {KN}
.p2align 8
.type {KN},@function
{KN}:""")
    R("s_cmp_ge_u32 s2, 256")
    R("s_cbranch_scc1 L_exit")
    R("s_load_dwordx8 s[8:15], s[0:1], 0")
    R("s_load_dwordx2 s[4:5], s[0:1], 32")
    R(f"s_load_dwordx2 s[{sSRD_OUT}:{sSRD_OUT+1}], s[0:1], 40")
    R("s_load_dwordx2 s[6:7], s[0:1], 56")
    if cfg.get("padT") or cfg.get("padstep") is not None: R("s_memrealtime s[68:69]")
    if stamps:
        R(f"s_memtime s[{sSTAMP}:{sSTAMP+1}]"); R(f"s_memrealtime s[{sSTAMP+30}:{sSTAMP+31}]")
    if cfg.get("cpf", 1):
        R("s_getpc_b64 s[24:25]")
        E.label("L_pc")
        R("s_mov_b32 s26, L_end-L_pc"); R("s_mov_b32 s27, 0x20000")
        R("v_lshlrev_b32 v54, 7, v0"); R("v_lshrrev_b32 v55, 4, v0"); R("s_lshr_b32 s40, s2, 3"); R("s_lshl_b32 s40, s40, 11")
        R("v_lshl_add_u32 v54, v55, 24, v54")
        E.emit(Ins(f"buffer_load_dword v56, v54, s[24:27], s40 offen", "vmem", tag="pf"))
    t0, t1, t2, t3, t4, t5 = 40, 41, 42, 43, 44, 45
    vA, vP8, vG, vP16, vW, vR, vC4 = 46, 47, 48, 49, 50, 51, 52
    R(f"v_lshrrev_b32 v{vW}, 6, v0")
    R(f"v_and_b32 v{vLANE}, 63, v0")
    R(f"v_readfirstlane_b32 s{sW}, v{vW}")
    R(f"v_lshrrev_b32 v{vA}, 3, v{vLANE}")
    R(f"v_and_b32 v{vP8}, 7, v{vLANE}")
    R(f"v_lshrrev_b32 v{vG}, 4, v{vLANE}")
    R(f"v_and_b32 v{vP16}, 15, v{vLANE}")
    R("s_bfe_u32 s46, s2, 0x10003")
    if cfg.get("kmap", 2) == 1:
        R("s_and_b32 s55, s2, 7")
        R("s_lshr_b32 s58, s2, 4")
        R(f"s_mov_b32 s{sSQ}, s58"); R(f"s_mov_b32 s{sSX}, s46")
    elif cfg.get("kmap", 2) == 8:
        R("s_bfe_u32 s55, s2, 0x30004")
        R("s_and_b32 s58, s2, 7"); R("s_lshl_b32 s58, s58, 1"); R(f"s_lshr_b32 s{sSQ}, s2, 7"); R(f"s_add_u32 s58, s58, s{sSQ}")
        R(f"s_bfe_u32 s{sSX}, s2, 0x40003")
    elif cfg.get("kmap", 2) == 4:
        R("s_and_b32 s55, s2, 1"); R("s_lshl_b32 s55, s55, 2"); R("s_bfe_u32 s40, s2, 0x20004"); R("s_add_u32 s55, s55, s40")
        R(f"s_lshr_b32 s{sSQ}, s2, 6"); R("s_bfe_u32 s40, s2, 0x20001"); R("s_lshl_b32 s58, s40, 2"); R(f"s_add_u32 s58, s58, s{sSQ}")
        R(f"s_bfe_u32 s{sSX}, s2, 0x30003")
    else:
        R("s_and_b32 s55, s2, 3"); R("s_lshl_b32 s55, s55, 1"); R("s_bfe_u32 s40, s2, 0x10004"); R("s_add_u32 s55, s55, s40")
        R(f"s_lshr_b32 s{sSQ}, s2, 5"); R("s_bfe_u32 s40, s2, 0x10002"); R("s_lshl_b32 s58, s40, 3"); R(f"s_add_u32 s58, s58, s{sSQ}")
        R(f"s_bfe_u32 s{sSX}, s2, 0x20003")
    R("s_lshl_b32 s56, s55, 1")
    R("s_add_u32 s56, s56, s46")
    STG = 0
    if cfg.get("rot"):
        R(f"s_lshl_b32 s40, s{sSX}, {cfg.get('rotsh', 1)}"); R(f"s_add_u32 s40, s40, s{sSQ}")
        R("s_mul_i32 s43, s40, 37"); R("s_lshr_b32 s43, s43, 8"); R("s_mul_i32 s43, s43, 7"); R("s_sub_u32 s40, s40, s43")
        R(f"s_lshl_b32 s{sSTO}, s40, 7")
    R(f"s_mul_i32 s{sRB}, s{sW}, {RING}")
    R(f"s_lshl_b32 s{sXB}, s{sW}, 12"); R(f"s_add_u32 s{sXB}, s{sXB}, {EB}")
    R(f"v_lshl_add_u32 v{t0}, v{vW}, 5, v{vA}")
    R(f"v_mul_u32_u24 v{t1}, 896, v{t0}")
    R(f"v_xor_b32 v{t2}, v{vP8}, v{vG}")
    R(f"v_lshlrev_b32 v{t2}, 4, v{t2}")
    R(f"v_xor_b32 v{t3}, 64, v{t2}")
    R(f"v_add_u32 v{dX}, v{t1}, v{t2}")
    R(f"v_add_u32 v{dX+1}, v{t1}, v{t3}")
    R(f"v_add_u32 v{dX+2}, {2*6144}, v{dX}")
    R(f"v_add_u32 v{dX+3}, {3*6144}, v{dX+1}")
    R(f"v_add_u32 v{dX+1}, {6144}, v{dX+1}")
    R(f"v_and_b32 v{t2}, 1, v{vG}")
    R(f"v_lshlrev_b32 v{t2}, 1, v{t2}")
    R(f"v_xor_b32 v{t2}, v{vP8}, v{t2}")
    R(f"v_lshlrev_b32 v{t2}, 4, v{t2}")
    R(f"v_lshl_add_u32 v{t2}, v{vW}, 7, v{t2}")
    R(f"v_lshl_add_u32 v{dWQ}, v{vA}, 13, v{t2}")
    R(f"v_xor_b32 v{dWQ+1}, 64, v{dWQ}")
    R(f"v_add_u32 v{dWQ+2}, {2*64512}, v{dWQ}")
    R(f"v_add_u32 v{dWQ+3}, {3*64512}, v{dWQ+1}")
    R(f"v_add_u32 v{dWQ+1}, {64512}, v{dWQ+1}")
    R(f"s_mov_b32 s{sSRD_X+2}, 100352"); R(f"s_mov_b32 s{sSRD_X+3}, 0x20000")
    R(f"s_mul_i32 s{sSRD_X}, s58, 100352")
    R(f"s_lshl_b32 s{sSRD_WQ}, s56, 9")
    R(f"s_sub_u32 s{sSRD_WQ+2}, {448*8192}, s{sSRD_WQ}"); R(f"s_mov_b32 s{sSRD_WQ+3}, 0x20000")
    if cfg.get("padstep") == -3: R("s_memrealtime s[70:71]")
    R("s_waitcnt lgkmcnt(0)")
    if cfg.get("padstep") == -2: R("s_memrealtime s[70:71]")
    R(f"s_add_u32 s{sSRD_X}, s8, s{sSRD_X}"); R(f"s_addc_u32 s{sSRD_X+1}, s9, 0")
    R(f"s_add_u32 s{sSRD_WQ}, s14, s{sSRD_WQ}"); R(f"s_addc_u32 s{sSRD_WQ+1}, s15, 0")
    npro = cfg.get("npro", 3); npro3 = cfg.get("npro3", 6)
    for u, L in DQ[:npro]:
        for x in L: E.emit(x)
    km = cfg.get("kmap", 2)
    if cfg.get("rot"):
        for j in range(1, 7):
            R(f"s_add_u32 s{sSTO+j}, s{sSTO+j-1}, 128"); R(f"s_cmp_eq_u32 s{sSTO+j}, 896"); R(f"s_cselect_b32 s{sSTO+j}, 0, s{sSTO+j}")
    R(f"s_mov_b32 s{sC}, {f2u(math.log2(math.e) / 16.0):#x}")
    R(f"s_lshl_b32 s{sW2K}, s{sW}, 11")
    R(f"s_mul_i32 s40, s{sSQ}, {16*km}"); R(f"v_add_u32 v58, s40, v{vA}")
    R(f"v_mul_u32_u24 v59, {4*km}, v{vW}"); R("v_add_u32 v58, v58, v59"); R("v_mul_u32_u24 v58, 896, v58")
    R(f"v_lshl_add_u32 v{vPFV}, v{vP8}, 7, v58")
    R(f"v_cmp_gt_u32 vcc, {32*km}, v{vLANE}"); R("v_mov_b32 v59, 0x7ffffff0")
    R(f"v_bfe_u32 v{vR}, v{vLANE}, 2, 2")
    R(f"v_cndmask_b32 v{vPFV}, v59, v{vPFV}, vcc")
    R(f"v_and_b32 v{vC4}, 3, v{vLANE}")
    R(f"v_lshlrev_b32 v{vST}, 4, v{vLANE}")
    R(f"v_bfe_u32 v{t2}, v{vLANE}, 1, 3")
    R(f"v_xor_b32 v{t2}, v{t2}, v{vG}")
    R(f"v_lshlrev_b32 v{t2}, 4, v{t2}")
    R(f"v_lshl_add_u32 v{t2}, v{vP16}, 7, v{t2}")
    R(f"v_add_u32 v{rX}, {EB}, v{t2}")
    R(f"v_xor_b32 v{rX+1}, 64, v{rX}")
    R(f"v_lshrrev_b32 v{t4}, 1, v{vR}")
    R(f"v_and_b32 v{t2}, 1, v{vG}")
    R(f"v_lshl_add_u32 v{t5}, v{t2}, 1, v{t4}")
    R(f"v_lshlrev_b32 v{t3}, 3, v{vC4}")
    R(f"v_lshl_add_u32 v{t3}, v{t5}, 5, v{t3}")
    R(f"v_add_u32 v{t4}, s{sRB}, v{t3}")
    R(f"v_lshl_add_u32 v{t2}, v{vG}, 3, v{vR}")
    R(f"v_lshl_add_u32 v{rWQ}, v{t2}, 7, v{t4}")
    for m in range(1, 4): R(f"v_xor_b32 v{rWQ+m}, {32*m}, v{rWQ}")
    if cfg.get("q128"):
        R(f"v_lshlrev_b32 v{rWQ+2}, 1, v{t5}"); R(f"v_xor_b32 v{rWQ+2}, v{rWQ+2}, v{vC4}"); R(f"v_lshlrev_b32 v{rWQ+2}, 4, v{rWQ+2}")
        R(f"v_lshl_add_u32 v{rWQ+2}, v{t2}, 7, v{rWQ+2}"); R(f"v_add_u32 v{rWQ}, s{sRB}, v{rWQ+2}"); R(f"v_xor_b32 v{rWQ+1}, 64, v{rWQ}")
    R(f"v_lshl_add_u32 v{t2}, v{vG}, 2, v{vR}")
    R(f"v_lshl_add_u32 v{rV}, v{t2}, 7, v{t4}")
    for m in range(1, 4): R(f"v_xor_b32 v{rV+m}, {32*m}, v{rV}")
    R(f"v_lshl_add_u32 v{rWO}, v{t2}, 7, v{t3}")
    R(f"v_lshlrev_b32 v{t2}, 5, v{vW}")
    R(f"v_xor_b32 v{rWO}, v{rWO}, v{t2}")
    R(f"v_add_u32 v{rWO+1}, {2*RING}, v{rWO}")
    R(f"v_xor_b32 v{t3}, v{vG}, v{vP16}")
    R(f"v_lshlrev_b32 v{t3}, 4, v{t3}")
    R(f"v_lshl_add_u32 v{t2}, v{vP16}, 8, v{t3}")
    R(f"v_add_u32 v{rK}, s{sRB}, v{t2}")
    for k in range(1, 4): R(f"v_xor_b32 v{rK+k}, {64*k}, v{rK}")
    R(f"v_lshl_add_u32 v{t2}, v{vW}, 5, v{vG}")
    R(f"v_lshl_add_u32 v{dK}, v{t2}, 9, v{t3}")
    for j in range(1, 4):
        R(f"v_xor_b32 v{dK+j}, {64*j}, v{dK}")
        R(f"v_add_u32 v{dK+j}, {1024*j}, v{dK+j}")
    R(f"v_lshlrev_b32 v{t2}, 1, v{vG}")
    R(f"v_xor_b32 v{t2}, v{vP8}, v{t2}")
    R(f"v_lshlrev_b32 v{t2}, 4, v{t2}")
    R(f"v_add_u32 v{dWO}, v{t1}, v{t2}")
    R(f"v_lshl_add_u32 v{t2}, v{vW}, 7, v{t2}")
    R(f"v_lshl_add_u32 v{dV}, v{vA}, 9, v{t2}")
    for j in range(1, 4): R(f"v_add_u32 v{dV+j}, {3072*j}, v{dV}")
    R(f"v_add_u32 v{rE}, {EB}, v{vST}")
    R(f"v_mul_u32_u24 v{t2}, 7168, v{vW}")
    R(f"v_add_u32 v{wP}, v{rE}, v{t2}")
    R(f"v_add_u32 v{wO}, v{wP}, v{t2}")
    R(f"v_lshrrev_b32 v{t3}, 1, v{vG}")
    R(f"v_lshl_add_u32 v{t3}, v{t3}, 4, v{vP16}")
    R(f"v_and_b32 v{t4}, 1, v{vG}")
    R(f"v_lshlrev_b32 v{t4}, 3, v{t4}")
    R(f"v_lshl_add_u32 v{t3}, v{t3}, 4, v{t4}")
    R(f"v_lshl_add_u32 v{t3}, v{t2}, 1, v{t3}")
    R(f"v_add_u32 v{wQ}, {EB}, v{t3}")
    for sr, size in ((sSRD_K, 262144), (sSRD_V, 262144), (sSRD_WO, 229376), (sSRD_WS, 25088), (sSRD_OUT, 100352), (sSRD_PB, 1605632)):
        R(f"s_mov_b32 s{sr+2}, {size}"); R(f"s_mov_b32 s{sr+3}, 0x20000")
    R(f"s_lshl_b32 s40, s58, 3"); R("s_add_u32 s40, s40, s55"); R(f"s_lshl_b32 s{sSRD_V}, s40, 18")
    if cfg.get("l2kv"): R(f"s_lshl_b32 s{sSRD_V}, s55, 18")
    R(f"s_mul_i32 s{sSRD_WO}, s56, 229376")
    R("s_lshl_b32 s40, s58, 4"); R("s_add_u32 s40, s40, s56"); R("s_lshl_b32 s40, s40, 2"); R(f"s_add_u32 s40, s40, s{sW}")
    R(f"s_mul_i32 s{sSRD_WS}, s40, 25088")
    R(f"s_mul_i32 s{sSRD_PB}, s58, 1605632")
    s_sw(); R(f"s_mul_i32 s{sRO}, s40, 25088"); s_qd(); R("s_mul_i32 s40, s40, 896"); R(f"s_add_u32 s{sRO}, s{sRO}, s40")
    R(f"s_lshl_b32 s46, s{sBB}, 2"); s_sw(); R("s_add_u32 s40, s40, s46"); R("s_lshl_b32 s40, s40, 11"); R(f"s_add_u32 s41, s40, {FLOFF}")
    R(f"s_add_u32 s40, s46, s{sW}"); R("s_lshl_b32 s40, s40, 4"); R(f"s_add_u32 s40, s40, s{sH}"); R("s_lshl_b32 s40, s40, 7"); R(f"s_add_u32 s46, s40, {FLOFF}")
    R(f"s_mul_i32 s40, s58, 100352")
    R(f"s_add_u32 s{sSRD_K}, s10, s{sSRD_V}"); R(f"s_addc_u32 s{sSRD_K+1}, s11, 0")
    R(f"s_add_u32 s{sSRD_V}, s12, s{sSRD_V}"); R(f"s_addc_u32 s{sSRD_V+1}, s13, 0")
    R(f"s_add_u32 s{sSRD_WO}, s4, s{sSRD_WO}"); R(f"s_addc_u32 s{sSRD_WO+1}, s5, 0")
    R(f"s_add_u32 s{sSRD_WS}, s6, s{sSRD_WS}"); R(f"s_addc_u32 s{sSRD_WS+1}, s7, 0")
    R(f"s_add_u32 s{sSRD_OUT}, s{sSRD_OUT}, s40"); R(f"s_addc_u32 s{sSRD_OUT+1}, s{sSRD_OUT+1}, 0")
    R(f"s_add_u32 s{sSRD_PB}, s6, s{sSRD_PB}"); R(f"s_addc_u32 s{sSRD_PB+1}, s7, 0")
    R(f"s_add_u32 s{sSRD_FL}, s6, s41"); R(f"s_addc_u32 s{sSRD_FL+1}, s7, 0"); R(f"s_mov_b32 s{sSRD_FL+2}, 2048"); R(f"s_mov_b32 s{sSRD_FL+3}, 0x20000")
    R(f"s_add_u32 s{sSRD_FM}, s6, s46"); R(f"s_addc_u32 s{sSRD_FM+1}, s7, 0"); R(f"s_mov_b32 s{sSRD_FM+2}, 128"); R(f"s_mov_b32 s{sSRD_FM+3}, 0x20000")
    for u, L in DQ[npro:npro3]:
        for x in L: E.emit(x)
    if cfg.get("padstep") == -1: R("s_memrealtime s[70:71]")
    dq = [x for u, L in DQ[npro3:] for x in L]

    stamp_n = [1]
    def stamp():
        k = stamp_n[0]; stamp_n[0] += 1
        R(f"{'s_memrealtime' if cfg.get('rt', 1) and k != len(stamps) + 5 else 's_memtime'} s[{sSTAMP+2*k}:{sSTAMP+2*k+1}]")
    def skipf(i):
        if cfg.get("nodma") and i.kind == "vmem" and "lds" in i.text: return True
        if cfg.get("nost") and "buffer_store" in i.text: return True
        if cfg.get("nodsw") and "ds_write" in i.text: return True
        if cfg.get("novalu") and i.kind in ("valu", "trans", "perm"): return True
        return False

    wgap = {}; issued = {}
    def emit(x):
        if x.tag == "read":
            reads_left[x.res] -= 1; last_read[x.res] = now[0]
        if x.kind == "salu" and x.res is not None: E.wait_ds_res(lambda r: r == x.res)
        E.emit(x)
        if x.kind == "vmem": issued[x.tag] = now[0]
        for r in x.wr: wgap[r] = (now[0], x.kind)
    def ok(x, i): return x.after <= i and (x.pre is None or x.pre())
    def run_events(idx):
        for name, fn in events.get(idx, []):
            fn(); ev_done.add(name)
    def conflicts(x, y): return bool(x.rd & y.wr or x.wr & y.rd or x.wr & y.wr)
    def force_fifo(st, i, what):
        k = 0
        for kk, x in enumerate(st[:64]):
            if x.before <= i: k = kk + 1
        c = 0
        for x in st[:k]:
            assert ok(x, i), f"forced {what} not eligible at {i}: {x.text}"
            emit(x); c += x.cost
        del st[:k]
        return c
    c2 = [0]
    def force_vs(i):
        c2[0] = 0
        need = [False] * min(len(VS), 600)
        for k in range(len(need) - 1, -1, -1):
            if VS[k].before <= i: need[k] = True
            if need[k]:
                for kk in range(k):
                    if not need[kk] and conflicts(VS[k], VS[kk]): need[kk] = True
        c = 0
        sel = [VS[k] for k in range(len(need)) if need[k]]
        for x in sel:
            assert ok(x, i), f"forced valu not eligible at {i}: {x.text}"
            VS.remove(x); emit(x); c += x.cost
            c2[0] += x.cost
            if c2[0] >= 96 and dq and ok(dq[0], i):
                c2[0] = 0
                while dq and ok(dq[0], i):
                    y = dq.pop(0); emit(y); c += y.cost
                    if y.kind == "vmem": break
        return c
    WIN = cfg.get("win", 150)
    def ready(x, i):
        if not ok(x, i) or E.need_nops(x) > 0: return False
        k = E.ds_idx(x)
        if k >= 0 and any(wgap.get(r, (-99, 0))[1] == "ds" and i - wgap[r][0] < 10 for r in x.rd | x.wr): return False
        for r in x.rd:
            if r in wgap and wgap[r][1] == "trans" and wgap[r][0] >= i: return False
        return True
    def pick(pred, i):
        blocked = []
        n = 0
        for k, x in enumerate(VS):
            if x.after <= i:
                n += 1
                if n > WIN: return None
            if pred(x) and ready(x, i) and not any(conflicts(x, y) for y in blocked): return x
            blocked.append(x)
            if k > 400: return None
        return None
    ismem = lambda x: x.kind in ("ds", "vmem")
    is4 = lambda x: x.cost == 4 and not ismem(x)

    run_events(-1)
    if stamps: stamp()
    E.skip = skipf
    over = {}; lastdma = -10; lastb128 = -10; lastw = -10; idle = {}
    for i in range(END):
        now[0] = i
        ph = "QSPO"[(i >= S0) + (i >= P0) + (i >= O0)]
        if i % 28 == 0:
            E.comment(f"---- step {i//28} {units[i//28]}")
            if i // 28 in stamps: stamp()
            if cfg.get("padstep") == i // 28: R("s_memrealtime s[70:71]")
        c = force_fifo(RA, i - 4, "read") + force_fifo(RB, i - 4, "read") if i > 0 else force_fifo(RA, 0, "read") + force_fifo(RB, 0, "read")
        if i in (S0, O0) and not STGX: c += force_fifo(RB, i, "read")
        over[ph] = over.get(ph, 0) + c
        E.emit(mfma(i))
        bud = BUD
        if any(x.before <= i + 1 for x in VS[:600]):
            c = force_vs(i + 1); over[ph] = over.get(ph, 0) + max(0, c - bud); bud -= c
        run_events(i)
        if bud < BUD:
            continue
        cand = [q for q in (RA, RB) if q and ok(q[0], i)]
        cand.sort(key=lambda q: q[0].before)
        urgent = [q for q in cand if q[0].before <= i + 1 + sum(1 for x in q[:6] if x.before <= i + 6)]
        sp = cfg.get("dmasp", 4) if i >= cfg.get("fastuntil", 0) else cfg.get("fastsp", 2)
        if dq and dq[0].kind == "vmem" and dq[0].tag[0] == "K" and i < S0: sp = cfg.get("ksp", 8)
        if dq and dq[0].kind == "vmem" and dq[0].tag[0] in ("K", "V") and i >= S0: sp = cfg.get("msp", 4)
        if dq and dq[0].kind == "vmem" and dq[0].tag[0] == "WO": sp = cfg.get("osp", 4) if i < O0 else cfg.get("osp2", 4)
        if dq and dq[0].kind == "vmem" and dq[0].tag[0] == "rl": sp = cfg.get("rsp", 3)
        if cfg.get("rate") and dq and dq[0].kind == "vmem" and dq[0].after > 0: sp = cfg.get("minsp", 4)
        dma_due = dq and dq[0].kind == "vmem" and ok(dq[0], i) and i - lastdma >= sp and E.need_nops(dq[0]) == 0
        x = None
        if dma_due and (not urgent or i - max(lastdma + sp, dq[0].after) >= 2):
            x = dq.pop(0); lastdma = i
            if urgent:
                emit(urgent[0].pop(0)); over[ph] = over.get(ph, 0) + 4
        elif urgent: x = urgent[0].pop(0)
        elif PF and PF[0].after <= i and i - lastdma >= 2: x = PF.pop(0)
        else:
            cand = [q for q in cand if not ("b128" in q[0].text and i - lastb128 < cfg.get("b128sp", 2))]
            if cand: x = cand[0].pop(0)
        if x is None and dq and dq[0].kind == "salu" and ok(dq[0], i) and cfg.get("salup", 1):
            pass
        elif x is None:
            big = lambda z: not is4(z) and not (ismem(z) and z.cost > 8 and i - lastw < (cfg.get("wsp", 3) if z.kind == "ds" else cfg.get("ssp", 6)))
            y4 = pick(is4, i); y8 = pick(big, i)
            y = y8
            if y4 is not None and y8 is not None and VS.index(y4) < VS.index(y8):
                load = sum(z.cost for z in VS[:600] if z.before <= y4.before)
                if load / 8.0 > (y4.before - i) * cfg.get("urg", 0.6): y = y4
            if y is not None and not is4(y):
                VS.remove(y); x = y
                if ismem(y) and y.cost > 8: lastw = i
        if x is not None:
            if "read_b128" in x.text: lastb128 = i
            emit(x); bud -= x.cost
            if x.cost > BUD: over[ph] = over.get(ph, 0) + x.cost - BUD
        while bud >= 4:
            if dq and dq[0].kind == "salu" and ok(dq[0], i):
                emit(dq.pop(0)); bud -= 4; continue
            y = pick(is4, i)
            if y is None: break
            VS.remove(y); emit(y); bud -= 4
        if bud > 0: idle[ph] = idle.get(ph, 0) + bud
    now[0] = END
    over["tail"] = sum(x.cost for x in VS)
    for x in VS: emit(x)
    for x in dq: emit(x)
    assert not RA and not RB and not PF
    INK = cfg.get("ink", 1)
    if cfg.get("padstep") == 60: R("s_memrealtime s[70:71]")
    if INK:
        if stamps: stamp()
        E.skip = None
        import re as _re
        for tok in TAIL.split():
            m_ = _re.match(r"([a-z]+)(\d*)", tok)
            act((m_.group(1), int(m_.group(2))) if m_.group(2) else (m_.group(1),), True)
    if stamps:
        if not INK: stamp(); stamp(); stamp()
        R("s_waitcnt vmcnt(0)")
        stamp()
        R(f"s_memrealtime s[{sSTAMP+32}:{sSTAMP+33}]")
        R("s_waitcnt lgkmcnt(0)")
        n = stamp_n[0]
        R("s_add_u32 s8, s6, 0x8000000"); R("s_addc_u32 s9, s7, 0"); R("s_mov_b32 s10, 0x100000"); R("s_mov_b32 s11, 0x20000")
        R("s_lshl_b32 s12, s2, 2"); R(f"s_add_u32 s12, s12, s{sW}"); R("s_lshl_b32 s12, s12, 7")
        R("v_mov_b32 v2, s12")
        R(f"v_cmp_eq_u32 vcc, 0, v{vST}")
        R("s_and_saveexec_b64 s[14:15], vcc")
        for k in range(1, n):
            R(f"s_sub_u32 s13, s{sSTAMP+2*k}, s{sSTAMP+30 if cfg.get('rt', 1) and k != len(stamps) + 5 else sSTAMP}")
            R("v_mov_b32 v3, s13")
            R(f"buffer_store_dword v3, v2, s[8:11], 0 offen offset:{4*(k-1)}")
        R(f"v_mov_b32 v3, s{sSTAMP+30}")
        R(f"buffer_store_dword v3, v2, s[8:11], 0 offen offset:{4*30}")
        R(f"v_mov_b32 v3, s{sSTAMP+32}")
        R(f"buffer_store_dword v3, v2, s[8:11], 0 offen offset:{4*31}")
    R("s_waitcnt vmcnt(0)")
    if cfg.get("padT") or cfg.get("padstep") is not None:
        R("s_memrealtime s[72:73]"); R("s_waitcnt lgkmcnt(0)")
        if cfg.get("padG"):
            R("s_load_dwordx2 s[76:77], s[0:1], 48"); R("s_waitcnt lgkmcnt(0)"); R("s_mov_b32 s78, 256"); R("s_mov_b32 s79, 0x20000")
            R("s_not_b32 s75, s68"); R("v_mov_b32 v50, s75"); R(f"v_lshlrev_b32 v51, 20, v{vST}")
            R("buffer_atomic_umax v50, v51, s[76:79], 0 offen sc1"); R("s_waitcnt vmcnt(0)")
            R("s_add_u32 s74, s68, 4000")
            E.label("L_pad0")
            R("s_memrealtime s[72:73]"); R("s_waitcnt lgkmcnt(0)")
            R("s_sub_u32 s75, s72, s74"); R("s_cmp_lt_i32 s75, 0"); R("s_cbranch_scc1 L_pad0")
            R("v_mov_b32 v51, 0"); R("buffer_load_dword v50, v51, s[76:79], 0 offen sc1"); R("s_waitcnt vmcnt(0)")
            R("v_readfirstlane_b32 s68, v50"); R("s_nop 3"); R("s_not_b32 s68, s68")
        if cfg.get("padT"): R(f"s_add_u32 s74, s68, {cfg['padT']}")
        else: R("s_sub_u32 s74, s70, s68"); R(f"s_mul_i32 s74, s74, {cfg.get('padk', 1)}"); R("s_add_u32 s74, s74, s72")
        E.label("L_pad")
        R("s_memrealtime s[72:73]"); R("s_waitcnt lgkmcnt(0)")
        R("s_sub_u32 s75, s72, s74"); R("s_cmp_lt_i32 s75, 0"); R("s_cbranch_scc1 L_pad")
    E.label("L_exit")
    R("s_endpgm")
    fb_lines = []
    if cfg.get("fb", 1) and INK:
        import gen_c32
        keep = E.out; E.out = []
        E.label("L_fallback")
        R("s_waitcnt vmcnt(0) lgkmcnt(0)"); R("s_nop 15"); R("s_barrier")
        R(f"v_accvgpr_write_b32 a250, v{vFO}"); R(f"v_accvgpr_write_b32 a251, v{vFV}")
        R(f"v_lshrrev_b32 v0, 4, v{vST}"); R(f"s_lshl_b32 s40, s{sW}, 6"); R("v_add_u32 v0, s40, v0")
        E.out += gen_c32.build({"sB": sBB, "sH": sH, "kearly": 0})
        E.label("L_ftail")
        R("s_waitcnt vmcnt(0) lgkmcnt(0)"); R("s_nop 15"); R("s_barrier")
        R(f"v_lshlrev_b32 v{vST}, 4, v1")
        R(f"v_accvgpr_read_b32 v{vFO}, a250"); R(f"v_accvgpr_read_b32 v{vFV}, a251")
        R(f"v_and_b32 v{vFA}, 0xf0, v{vST}"); R(f"v_lshlrev_b32 v{vFA}, 3, v{vFA}")
        reduce_setup()
        E.vmq = []; E.vm_known = 1 << 30; E.vm_len = 0; E.dsq = []
        publish(7); nchk[0] = npoll[0]; poll(); check(7, 7)
        for p in range(7):
            for x in rloads(p): E.emit(x)
        for p in range(7): rsum(p)
        for q in range(4): rstore(q)
        R("s_waitcnt vmcnt(0)"); R("s_endpgm")
        fb_lines = E.out; E.out = keep
    for k, (need, mine) in enumerate(spins):
        E.label(f"L_spin{k}")
        R("s_mov_b32 s28, 0")
        E.label(f"L_spinl{k}")
        R(f"buffer_load_dword v{vFN}, v{vFA}, {srd(sSRD_FL)}, 0 offen sc1")
        R("s_waitcnt vmcnt(0)")
        check_cond(need)
        R(f"s_cbranch_scc1 L_spun{k}")
        R("s_add_u32 s28, s28, 1")
        R("s_and_b32 s29, s28, 7")
        R(f"s_cbranch_scc1 L_spinl{k}")
        publish(mine)
        R("s_cmp_lt_u32 s28, 400000")
        R(f"s_cbranch_scc1 L_spinl{k}")
        R(f"s_branch L_spun{k}")
    E.label("L_end")
    E.out += fb_lines
    if cfg.get("verbose"):
        print(" ".join(f"{u[0]}{uidx[u]}:{issued[u]/28:.1f}/{twait.get(u,0)/28:.1f}" for u in units if u in issued), file=sys.stderr)
    print(f"main: nops {E.nops}, over {over}, idle {idle}, instrs {E.pos}", file=sys.stderr)

    KD = """.p2align 6
.amdhsa_kernel %s
  .amdhsa_next_free_vgpr %d
  .amdhsa_next_free_sgpr %d
  .amdhsa_accum_offset %d
  .amdhsa_group_segment_fixed_size 0
  .amdhsa_kernarg_size 64
  .amdhsa_user_sgpr_count 2
  .amdhsa_user_sgpr_kernarg_segment_ptr 1
  .amdhsa_system_sgpr_workgroup_id_x 1
.end_amdhsa_kernel
"""
    if INK:
        E.out.append('.section .rodata,"a"\n' + KD % (KN, 512, 102, 256))
        return "\n".join(E.out)
    E.out.append(""".globl gqa_reduce_kernel
.p2align 8
.type gqa_reduce_kernel,@function
gqa_reduce_kernel:""")
    R("s_cmp_ge_u32 s2, 448")
    R("s_cbranch_scc1 LR_exit")
    R("s_load_dwordx2 s[4:5], s[0:1], 40")
    R("s_load_dwordx2 s[6:7], s[0:1], 56")
    R("v_lshrrev_b32 v2, 6, v0")
    R("v_and_b32 v1, 63, v0")
    R("v_readfirstlane_b32 s3, v2")
    R(f"s_mul_hi_u32 s8, s2, {(2**32 + 27)//28}")
    R("s_mul_i32 s9, s8, 28")
    R("s_sub_u32 s9, s2, s9")
    R(f"s_mul_hi_u32 s10, s9, {(2**32 + 6)//7}")
    R("s_mul_i32 s11, s10, 7")
    R("s_sub_u32 s11, s9, s11")
    R("v_lshlrev_b32 v5, 4, v1")
    R("v_and_b32 v3, 15, v1"); R("v_lshrrev_b32 v4, 4, v1")
    R("s_mov_b32 s24, 14336")
    R("s_cmp_eq_u32 s3, 3")
    R("s_cbranch_scc0 LR_a")
    R("v_lshlrev_b32 v3, 1, v1"); R("v_and_b32 v3, 15, v3"); R("v_lshrrev_b32 v4, 3, v1")
    R("s_mov_b32 s24, 896")
    R("v_mov_b32 v6, 0x40000000")
    R("v_cmp_lt_u32 vcc, 31, v1")
    R("s_nop 1")
    R("v_cndmask_b32 v5, v5, v6, vcc")
    R("v_cndmask_b32 v3, v3, v6, vcc")
    R("v_min_u32 v3, 0x10000, v3")
    E.label("LR_a")
    R("v_mul_u32_u24 v7, 896, v3")
    R("v_lshl_add_u32 v7, v4, 3, v7")
    R("s_mul_i32 s13, s8, 1605632")
    R("s_mul_i32 s14, s9, 3584")
    R("s_add_u32 s13, s13, s14")
    R("s_lshl_b32 s14, s3, 10")
    R("s_add_u32 s13, s13, s14")
    R("s_waitcnt lgkmcnt(0)")
    R("s_add_u32 s16, s6, s13"); R("s_addc_u32 s17, s7, 0"); R("s_mov_b32 s18, 1605632"); R("s_mov_b32 s19, 0x20000")
    for h in range(16):
        R(f"s_mov_b32 s15, {h*100352}")
        R(f"buffer_load_dwordx4 v[{8+4*h}:{11+4*h}], v5, s[16:19], s15 offen {cfg.get('rlfl','')}")
    R("s_mul_i32 s13, s8, 100352")
    R("s_add_u32 s20, s4, s13"); R("s_addc_u32 s21, s5, 0"); R("s_mov_b32 s22, 100352"); R("s_mov_b32 s23, 0x20000")
    R("s_mul_i32 s14, s3, 28672")
    R("s_lshl_b32 s15, s11, 7"); R("s_add_u32 s14, s14, s15")
    R("s_lshl_b32 s15, s10, 5"); R("s_add_u32 s14, s14, s15")
    R("s_add_u32 s24, s24, s14")
    for h in range(16):
        R(f"s_waitcnt vmcnt({15-h})")
        for r in range(4):
            src = 8 + 4 * h + r
            if h == 0:
                R(f"v_lshlrev_b32 v{72+2*r}, 16, v{src}"); R(f"v_and_b32 v{73+2*r}, 0xffff0000, v{src}")
            else:
                R(f"v_lshlrev_b32 v80, 16, v{src}"); R(f"v_and_b32 v81, 0xffff0000, v{src}")
                R(f"v_add_f32 v{72+2*r}, v{72+2*r}, v80"); R(f"v_add_f32 v{73+2*r}, v{73+2*r}, v81")
    for r in range(4): R(f"v_cvt_pk_bf16_f32 v{84+r}, v{72+2*r}, v{73+2*r}")
    R("buffer_store_dwordx2 v[84:85], v7, s[20:23], s14 offen")
    R("buffer_store_dwordx2 v[86:87], v7, s[20:23], s24 offen")
    if stamps:
        R("s_waitcnt vmcnt(0)")
        R("s_memrealtime s[24:25]")
        R("s_waitcnt lgkmcnt(0)")
        R("s_add_u32 s16, s6, 0x8100000"); R("s_addc_u32 s17, s7, 0"); R("s_mov_b32 s18, 0x100000"); R("s_mov_b32 s19, 0x20000")
        R("s_lshl_b32 s12, s2, 2"); R("v_mov_b32 v2, s12"); R("v_mov_b32 v3, s24")
        R("v_cmp_eq_u32 vcc, 0, v0")
        R("s_and_saveexec_b64 s[14:15], vcc")
        R("buffer_store_dword v3, v2, s[16:19], 0 offen")
    R("s_waitcnt vmcnt(0)")
    E.label("LR_exit")
    R("s_endpgm")
    E.out.append(""".section .rodata,"a"
.p2align 6
.amdhsa_kernel gqa_main_kernel
  .amdhsa_next_free_vgpr 512
  .amdhsa_next_free_sgpr 102
  .amdhsa_accum_offset 256
  .amdhsa_group_segment_fixed_size 0
  .amdhsa_kernarg_size 64
  .amdhsa_user_sgpr_count 2
  .amdhsa_user_sgpr_kernarg_segment_ptr 1
  .amdhsa_system_sgpr_workgroup_id_x 1
.end_amdhsa_kernel
.p2align 6
.amdhsa_kernel gqa_reduce_kernel
  .amdhsa_next_free_vgpr 88
  .amdhsa_next_free_sgpr 32
  .amdhsa_accum_offset 88
  .amdhsa_group_segment_fixed_size 0
  .amdhsa_kernarg_size 64
  .amdhsa_user_sgpr_count 2
  .amdhsa_user_sgpr_kernarg_segment_ptr 1
  .amdhsa_system_sgpr_workgroup_id_x 1
.end_amdhsa_kernel
""")
    return "\n".join(E.out)

if __name__ == "__main__":
    ap = argparse.ArgumentParser()
    ap.add_argument("-o", default="a16.s")
    ap.add_argument("kv", nargs="*")
    a = ap.parse_args()
    cfg = {}
    for kv in a.kv:
        k, v = kv.split("=", 1)
        try: cfg[k] = eval(v)
        except Exception: cfg[k] = v
    txt = build(cfg)
    open(a.o, "w").write(txt)
```

```python
import sys, math, struct, argparse

def f2u(x): return struct.unpack("<I", struct.pack("<f", x))[0]
def V(lo, n=1): return {("v", lo + i) for i in range(n)}
def Ac(lo, n=1): return {("a", lo + i) for i in range(n)}
def vr(lo, n): return f"v[{lo}:{lo+n-1}]" if n > 1 else f"v{lo}"
def ar(lo, n): return f"a[{lo}:{lo+n-1}]"
INF = 1 << 30

class Ins:
    def __init__(s, text, kind, rd=(), wr=(), cost=4, after=-1, before=INF, tag=None, rdc=(), pre=None, res=None, passes=4):
        s.text, s.kind, s.rd, s.wr, s.cost = text, kind, set(rd), set(wr), cost
        s.after, s.before, s.tag, s.rdc = after, before, tag, set(rdc)
        s.pre = pre
        s.res = res
        s.passes = passes

class Emitter:
    def __init__(s):
        s.out = []; s.pos = 0
        s.dsq = []
        s.vmq = []
        s.lastw = {}; s.lastc = {}; s.lastst = {}
        s.nops = 0; s.skip = None
    def raw(s, text, n=1):
        s.out.append("    " + text); s.pos += n
    def label(s, l): s.out.append(l + ":")
    def comment(s, c): s.out.append("    ; " + c)
    def need_nops(s, i):
        need = 0
        def req(p, d):
            nonlocal need
            need = max(need, d - (s.pos - p - 1))
        for r in i.rd | i.wr:
            if r in s.lastw:
                k, p = s.lastw[r]
                if k == "mfma":
                    if i.kind == "mfma":
                        if r in i.rd and r not in i.rdc: req(p, 8)
                    else: req(p, 8)
                if r in i.rd:
                    if k in ("valu", "trans") and i.kind == "mfma": req(p, 2)
                    if k == "trans" and i.kind in ("valu", "trans", "perm", "vmem", "ds"): req(p, 1)
                    if k in ("valu", "trans") and i.kind == "perm": req(p, 2)
                    if k == "salu" and r == ("s", "m0") and i.kind == "vmem": req(p, 1)
        if i.kind in ("valu", "trans", "perm"):
            for r in i.wr:
                if r in s.lastc: req(s.lastc[r], 3)
                if r in s.lastst: req(s.lastst[r], 2)
        if i.kind == "mfma":
            for r in i.wr:
                if r in s.lastst: req(s.lastst[r], 2)
        return need
    def ds_idx(s, i):
        idx = -1
        for k, (d, _) in enumerate(s.dsq):
            if d & (i.rd | i.wr): idx = k
        return idx
    def wait_ds_idx(s, idx):
        n = len(s.dsq) - idx - 1
        if n > 15:
            idx += n - 15; n = 15
        s.raw(f"s_waitcnt lgkmcnt({n})")
        s.dsq = s.dsq[idx + 1:]
    def wait_ds_res(s, pred):
        idx = -1
        for k, (_, r) in enumerate(s.dsq):
            if r is not None and pred(r): idx = k
        if idx >= 0: s.wait_ds_idx(idx)
    def emit(s, i):
        idx = s.ds_idx(i)
        if idx >= 0: s.wait_ds_idx(idx)
        if i.kind == "ds" and len(s.dsq) >= 13: s.wait_ds_idx(len(s.dsq) - 1 - 9)
        n = s.need_nops(i)
        if n > 0:
            s.nops += n
            while n > 0:
                k = min(n, 16); s.raw(f"s_nop {k-1}", k); n -= k
        if not (s.skip and s.skip(i)): s.out.append("    " + i.text)
        p = s.pos; s.pos += 1
        kind = "valu" if i.kind == "perm" else i.kind
        for r in i.wr: s.lastw[r] = (kind, p)
        if i.kind == "mfma":
            for r in i.rdc: s.lastc[r] = p
        if i.kind == "ds": s.dsq.append((set(i.wr), i.res))
        if i.kind == "vmem":
            s.vmq.append(i.tag)
            if "buffer_store" in i.text:
                for r in i.rd: s.lastst[r] = p
    def wait_vm(s, tags, cnt=4):
        idx = -1
        for k, t in enumerate(s.vmq):
            if t in tags: idx = k
        for t in tags:
            assert s.vmq.count(t) == cnt, f"unit {t} not fully issued before its wait ({s.vmq.count(t)})"
        n = min(63, len(s.vmq) - idx - 1)
        if n < getattr(s, "vm_known", 1 << 30) + (len(s.vmq) - getattr(s, "vm_len", 0)):
            s.raw(f"s_waitcnt vmcnt({n})")
            s.vm_known = n; s.vm_len = len(s.vmq)

RING = 24576; NU = 6; UNIT = 4096
EB = 4 * RING
LB = EB + 57344
vLANE = 53
dK = 1
dV = 5
dWO = 9
vST = 10
vST2 = 5
rK = 12
rV = 16
rWO = 20
rE = 22
wP = 23
wO = 24
vL = 25
SACC = [32, 60]; PR = [88, 116]; OACC = 144
dX = 116
dWQ = 120
rX = 124
rWQ = 126
wQ = 130
AQ = 0
AK = 224
sSRD_X, sSRD_WQ, sSRD_K, sSRD_V, sSRD_WO, sSRD_WS = 16, 20, 24, 28, 32, 36
sRB = 42; sOFF = 43; sC = 44; sXB = 45; sW = 3; sST = 47
sSTAMP = 68
sSRD_FL, sSRD_FM, sSRD_PB, sSRD_OUT = 8, 12, 60, 64
sH = 56; sRO = 57; sBB = 58
FLOFF = 0x2000000
sSTO = 48
sPFO = 55
sW2K = 59
sSQ = 47; sSX = 41
vPFK = 11; vPFV = 11
def srd(n): return f"s[{n}:{n+3}]"
assert vL + 7 <= 32

def build(cfg):
    BUD = cfg.get("budget", 8)
    stamps = cfg.get("stamps", [])
    ntKV = "nt" if cfg.get("ntkv", 1) else ""
    ntW = "nt" if cfg.get("ntw", 0) else ""
    ntX = "nt" if cfg.get("ntx", 0) else ""
    stfl = cfg.get("stfl", "sc1")
    DMIN = cfg.get("dmin", 8)
    E = Emitter(); R = E.raw
    def s_sw(): R(f"s_and_b32 s40, s{sH}, 3" if cfg.get("swl", 1) else f"s_lshr_b32 s40, s{sH}, 2")
    def s_qd(): R(f"s_lshr_b32 s40, s{sH}, 2" if cfg.get("swl", 1) else f"s_and_b32 s40, s{sH}, 3")
    BL = 56
    Q0, S0, P0, O0, END = 0, 7 * BL, 15 * BL, 23 * BL, 30 * BL

    units = [("WQ", t) for t in range(14)] + [("K", i, h) for i in range(8) for h in range(2)] \
          + [("V", k) for k in range(16)] + [("WO", p, kh) for p in range(7) for kh in range(2)]
    uidx = {u: k for k, u in enumerate(units)}
    ESLOT = {8: 0, 9: 1, 10: 2, 11: 3}
    def uoff(u):
        if u[0] == "WO" and 2 * u[1] + u[2] >= 12: return ((uidx[u] - 10) % NU) * UNIT
        return (uidx[u] % NU) * UNIT
    rWOE = rK

    M = []
    def qa(j, ks, mt): return 32 * (j & 1) + 16 * ks + 4 * mt
    def qb(j, ks, nu): return 64 + 56 * (j & 1) + 28 * ks + 4 * nu
    def oacc(mt, nu): return OACC + 4 * (4 * nu + mt)
    first_use = {}; last_use = {}
    def use(name, i):
        first_use.setdefault(name, i); last_use[name] = i
    done_at = {}
    MQ = cfg.get("mq", 1)
    def qaq(j, ks, mt): return 176 + 16 * ks + 4 * mt if (MQ and j == 6) else qa(j, ks, mt)
    for js in ([[0], [1], [2], [3], [4], [5, 6]] if MQ else [[j] for j in range(7)]):
        for nu in range(7):
            for mt in range(4):
                for j in js:
                    for ks in range(2):
                        i = len(M)
                        M.append((oacc(mt, nu), qaq(j, ks, mt), qb(j, ks, nu), j == 0 and ks == 0))
                        use(("QA", j, ks, mt), i); use(("QB", j, ks, nu), i); done_at[("Q", mt, nu)] = i
    STGX = cfg.get("stgx", 0)
    def slotmap(lo, hi):
        busy = {k: -1 for k in range(56)}
        for i in range(lo, hi):
            for r in (M[i][1], M[i][2]):
                if not isinstance(r, tuple) and r < 224: busy[r // 4] = i
        order_ = sorted(range(56), key=lambda k: (busy[k], k))
        return {(kap, nu): AQ + 4 * order_[nu * 8 + kap] for nu in range(7) for kap in range(8)}, busy
    if STGX: QS, QBUSY = slotmap(0, len(M))
    else: QS, QBUSY = {(kap, nu): AQ + 4 * (kap * 7 + nu) for nu in range(7) for kap in range(8)}, None
    def ka(step, k):
        if STGX and step == 2: return ("v", OACC + 4 * k)
        return AK + 16 * (step & 1) + 4 * k
    SX = OACC + 112 - 28
    sbuf = [SACC[0], SACC[1], SX, SACC[0], SACC[1], SX, SACC[0], SACC[1]] if cfg.get("s3", 1) else [SACC[b & 1] for b in range(8)]
    for b in range(8):
        seq = [(h, nu, k) for h in range(2) for nu in range(7) for k in range(4)]
        if STGX and b == 0: seq = [(h, nu, k) for nu in range(7) for h in range(2) for k in range(4)]
        for h, nu, k in seq:
            i = len(M)
            M.append((sbuf[b] + 4 * nu, ka(2 * b + h, k), QS[(4 * h + k, nu)], h == 0 and k == 0))
            use(("SA", b, h, k), i); use(("SB", 4 * h + k, nu), i); done_at[("S", b, nu)] = i
            use(("Sacc", b, nu), i)
    qdie = sorted(range(56), key=lambda k: max(last_use[("SB",) + kn] for kn, r in QS.items() if r == AQ + 4 * k))
    def va(j, ks, mt): return AQ + 4 * qdie[(22 * (j & 1)) + 4 * ks + mt] if STGX else qa(j, ks, mt)
    def vb(j, ks, nu): return AQ + 4 * qdie[(22 * (j & 1)) + 8 + 2 * nu + ks] if STGX else qb(j, ks, nu)
    for j in range(8):
        for nu in range(7):
            for mt in range(4):
                for ks in range(2):
                    i = len(M)
                    M.append((oacc(mt, nu), va(j, ks, mt), vb(j, ks, nu), j == 0 and ks == 0))
                    use(("VA", j, ks, mt), i); use(("VB", j, ks, nu), i); done_at[("O", mt, nu)] = i
    if STGX: OS, OBUSY = slotmap(P0, len(M))
    else: OS, OBUSY = QS, None
    def oa(p, kap): return ("a", AK + 4 * kap) if p % 2 == 0 else ("v", PR[0] + 4 * kap)
    for p in range(7):
        for nu in range(7):
            for kap in range(8):
                i = len(M)
                M.append((SACC[p & 1] + 4 * nu, oa(p, kap), OS[(kap, nu)], kap == 0))
                use(("OA", p, kap >> 2, kap & 3), i); use(("OB", kap, nu), i); done_at[("Y", p, nu)] = i
                use(("Yacc", p, nu), i)
    assert len(M) == END
    def mfma(i):
        acc, a, b, cz = M[i]
        Cs = set() if cz else V(acc, 4)
        if not isinstance(a, tuple): a = ("a", a)
        at, as_ = (ar(a[1], 4), Ac(a[1], 4)) if a[0] == "a" else (vr(a[1], 4), V(a[1], 4))
        return Ins(f"v_mfma_f32_16x16x32_bf16 {vr(acc,4)}, {at}, {ar(b,4)}, {'0' if cz else vr(acc,4)}", "mfma",
                   rd=as_ | Ac(b, 4) | Cs, wr=V(acc, 4), rdc=Cs, cost=8)

    ev_done = set()
    events = {}
    def add_event(idx, name, fn): events.setdefault(idx, []).append((name, fn))
    def after_ev(*names): return lambda: all(n in ev_done for n in names)

    M0 = {("s", "m0")}
    reads_left = {}
    last_read = {}; now = [0]
    def res_idle(res):
        return reads_left.get(res, 0) == 0 and not any(r == res for _, r in E.dsq)

    def dma_unit(u, pre=None):
        L = []
        k = u[0]
        if k == "X":
            L.append(Ins(f"s_add_u32 m0, s{sXB}, {(u[1] % 4) * 16384}", "salu", wr=M0, pre=pre))
        elif k == "WO" and 2 * u[1] + u[2] in ESLOT:
            L.append(Ins(f"s_add_u32 m0, s{sXB}, {ESLOT[2 * u[1] + u[2]] * 16384}", "salu", wr=M0, pre=pre))
        else:
            L.append(Ins(f"s_add_u32 m0, s{sRB}, {uoff(u)}", "salu", wr=M0, pre=pre))
        def smov(val): L.append(Ins(f"s_mov_b32 s{sOFF}, {val}", "salu"))
        def sxor(val):
            smov(val)
        def ld(vreg, sr, j, fl):
            L.append(Ins(f"buffer_load_dwordx4 v{vreg}, {srd(sr)}, s{sOFF} offen offset:{j*1024} {fl} lds".replace("  ", " "),
                         "vmem", rd=M0 | V(vreg), tag=u, cost=8))
        if k == "X":
            if cfg.get("rot"): L.append(Ins(f"s_mov_b32 s{sOFF}, s{sSTO+u[1]}", "salu"))
            else: smov(128 * u[1])
            for j in range(4): ld(dX + j, sSRD_X, j, ntX)
        elif k == "WQ":
            if cfg.get("rot"):
                L.append(Ins(f"s_lshl_b32 s{sOFF}, s{sSTO+(u[1]>>1)}, 12", "salu"))
                if u[1] & 1: L.append(Ins(f"s_bitset1_b32 s{sOFF}, 18", "salu"))
            else: smov(u[1] * 32 * 8192)
            for j in range(4): ld(dWQ + j, sSRD_WQ, j, ntW)
        elif k == "K":
            sxor((u[1] >> 1) * 65536 + (u[1] & 1) * 8192 + u[2] * 256)
            for j in range(4): ld(dK + j, sSRD_K, j, ntKV)
        elif k == "V":
            sxor(u[1] * 16384)
            for j in range(4): ld(dV + j, sSRD_V, j, ntKV)
        elif k == "WO":
            for j in range(4):
                smov(u[2] * 128 * 896 + u[1] * 128 + j * (8 * 896 - 1024)); ld(dWO, sSRD_WO, j, "nt" if cfg.get("nto") else "")
        return L

    def rd(kind, dst, n, areg, off, res, after, before, pre=None):
        assert 0 <= off < 65536
        reads_left[res] = reads_left.get(res, 0) + 1
        if not isinstance(dst, tuple): dst = ("a", dst)
        dt, ds_ = (ar(dst[1], n), Ac(dst[1], n)) if dst[0] == "a" else (vr(dst[1], n), V(dst[1], n))
        return Ins(f"{kind} {dt}, v{areg} offset:{off}", "ds", rd=V(areg), wr=ds_, res=res,
                   after=after, before=max(before, after + 1), pre=pre, tag="read")

    RA = []; RB = []
    MID = cfg.get("mid", 40)
    A1, A2 = cfg.get("a1", 6), cfg.get("a2", 30)
    twait = {}
    def vmwait(tags): return (lambda: None) if cfg.get("novmw") else (lambda: E.wait_vm(tags))
    def bar(tags=(), wres=None, idle=()):
        def f():
            for r in idle: assert reads_left.get(r, 0) == 0, f"barrier releases {r} with reads pending"
            if wres is not None:
                assert not any(x.kind == "ds" and x.res is not None and wres(x.res) for x in VS), "publishing barrier before all writes were emitted"
            E.wait_ds_res(lambda r: r in idle or (wres is not None and wres(r)))
            if tags: E.wait_vm(list(tags))
            if not cfg.get("nobar"): R("s_barrier")
        return f
    def areads(base, j, kind, fu, areg, estride, busy=None, qa=qa):
        for ks in range(2):
            u = (kind, 2 * j + ks)
            at = base + (j - 1) * BL + ((A1, A2)[ks] if base == 0 else (cfg.get("v1", 6), cfg.get("v2", 30))[ks])
            if base == 0 and j == 0: at = -1
            if base == 0 and MQ and j == 5: at = 4 * BL + (0, 10)[ks]
            if base == 0 and MQ and j == 6: at = 4 * BL + (22, 34)[ks]
            name = ("Wa", u)
            add_event(at, name, vmwait([u])); twait[u] = at
            for mt in range(4):
                a0 = at if busy is None else max(at, busy(qa(j, ks, mt)))
                for e in range(2):
                    ar_, ex_ = (areg + (mt >> 1), 8 * (mt & 1)) if (kind == "WQ" and cfg.get("q128")) else (areg + mt, 0)
                    RA.append(rd("ds_read_b64_tr_b16", qa(j, ks, mt) + 2 * e, 2, ar_, uoff(u) + e * estride + ex_, u, a0,
                                 first_use[(fu, j, ks, mt)] - DMIN, after_ev(name)))
    XE = (5 * BL + cfg.get("xem", 18)) if MQ else (6 * BL + cfg.get("xe", 12))
    for j in range(7):
        at = (j - 1) * BL + MID if j > 0 else -1
        if MQ and j == 5: at = 4 * BL + 6
        if MQ and j == 6: at = 4 * BL + 44
        name = ("Bx", j)
        add_event(at, name, bar(tags=[("X", j)], idle=[("X", j - 1)] if 0 < j < 4 else []))
        areads(0, j, "WQ", "QA", rWQ, 512, qa=qaq)
        for nu in range(7):
            for ks in range(2):
                a0 = at
                if j >= 2: a0 = max(at, last_use[("QB", j - 2, ks, nu)])
                RB.append(rd("ds_read_b128", qb(j, ks, nu), 4, rX + ks, (j % 4) * 16384 + nu * 2048, ("X", j), a0,
                             min(first_use[("QB", j, ks, nu)] - DMIN, j * BL + MID - 6, XE - 4), after_ev(name)))
    add_event(XE, "Bxe", bar(idle=[("X", 3), ("X", 4), ("X", 5), ("X", 6)]))
    for st in range(16):
        b, h = st >> 1, st & 1
        at = S0 + (st - 1) * 28 + cfg.get("kat", 10)
        if STGX and st == 0: at = S0 - 40
        if STGX and st == 1: at = S0 - 20
        name = ("Wk", st)
        add_event(at, name, vmwait([("K", b, h)])); twait[("K", b, h)] = at
        RA += [rd("ds_read_b128", ka(st, k), 4, rK + k, uoff(("K", b, h)), ("K", b, h), at,
                  first_use[("SA", b, h, k)] - DMIN, after_ev(name)) for k in range(4)]
    QST = cfg.get("qst", [(-24, 3), (0, 5), (22, 7)]) if STGX else [(-1, 7)]
    qdead = {}
    lo_ = 0
    for n_, (pos, hi_) in enumerate(QST):
        add_event(S0 + pos, ("Bq", n_), bar(wres=(lambda h_: (lambda r: r[0] == "qw" and r[1] < h_))(hi_)))
        for nu in range(lo_, hi_): qdead[nu] = (S0 + pos, n_)
        lo_ = hi_
    for kap, nu in sorted(QS, key=lambda kn: first_use[("SB",) + kn]):
        a0 = qdead[nu][0]
        if STGX: a0 = max(a0, QBUSY[(QS[(kap, nu)] - AQ) // 4])
        RB.append(rd("ds_read_b128", QS[(kap, nu)], 4, rE, (kap * 7 + nu) * 1024, ("q",), a0,
                     first_use[("SB", kap, nu)] - DMIN, after_ev(("Bq", qdead[nu][1]))))
    add_event(S0 + BL + 4, "Bqe", bar(idle=[("q",)]))
    def qbusy(reg): return max(last_use[("SB",) + kn] for kn, r in QS.items() if r == reg)
    for j in range(8):
        at = P0 + (j - 1) * BL + MID
        c = j >> 1
        name = ("Bp", j & ~1)
        if j == 0: add_event(at, name, bar(wres=lambda r: r in (("pw", 0), ("pw", 1))))
        elif j == 2: add_event(at, name, bar(idle=[("P", 0)]))
        elif j == 4: add_event(at, name, bar(idle=[("P", 1)], wres=lambda r: r == ("pw", 2)))
        elif j == 6: add_event(at, name, bar(idle=[("P", 2)], wres=lambda r: r in (("pw", 3), ("lw",))))
        areads(P0, j, "V", "VA", rV, 2048, qbusy if j < 2 else None, qa=va)
        if j & 1: at = P0 + (j - 1) * BL + cfg.get("mid2", 30)
        for nu in range(7):
            for ks in range(2):
                a0 = max(at, qbusy(vb(j, ks, nu))) if j < 2 else at
                wprod = 2 * (j & 1) + ks
                RB.append(rd("ds_read_b128", vb(j, ks, nu), 4, rE, (c & 1) * 28672 + (wprod * 7 + nu) * 1024, ("P", c), a0,
                             min(first_use[("VB", j, ks, nu)] - DMIN, P0 + j * BL + (MID - 6 if j < 7 else cfg.get("xe", 12) - 4)), after_ev(name)))
    add_event(P0 + 7 * BL + cfg.get("xe", 12), "Bpe", bar(idle=[("P", 3)]))
    OST = cfg.get("ost", [(-18, 3), (0, 5), (20, 7)]) if STGX else [(-1, 7)]
    wo = lambda p: [("WO", p, 0), ("WO", p, 1)]
    odead = {}; lo_ = 0
    nb = len(OST)
    for n_, (pos, hi_) in enumerate(OST):
        tags = []; idle = []
        if STGX:
            if n_ == 0: tags = wo(0)
            if n_ == 1: idle = wo(0)
            if n_ == 2: tags = wo(1)
        else: idle = wo(0)
        add_event(O0 + pos, ("Box", n_), bar(wres=(lambda h_: (lambda r: r[0] == "ow" and r[1] < h_))(hi_), tags=tags, idle=idle))
        for nu in range(lo_, hi_): odead[nu] = (O0 + pos, n_)
        lo_ = hi_
    REL0 = ("Box", 1 if STGX else 0)
    for p in range(7):
        at = O0 + (p - 1) * BL + cfg.get("oat", 24)
        name = ("Bo", p)
        if STGX and p == 0: name, at = ("Box", 0), O0 + OST[0][0]
        elif STGX and p == 1: name, at = ("Box", 2), O0 + OST[2][0]
        elif p == 0:
            at = O0 - BL + cfg.get("oat0", 38); add_event(at, name, bar(tags=wo(p)))
        elif p == 1:
            at = O0 + cfg.get("oat1", 20); add_event(at, name, bar(tags=wo(p)))
        elif p == 2:
            at = O0 + BL - 2
            add_event(at, name, bar(tags=wo(p), idle=[("o",)] + wo(1)))
        else: add_event(at, name, bar(tags=wo(p)))
        twait[("WO", p, 0)] = twait[("WO", p, 1)] = at
        if p == 2: at = O0 + BL + 8
        for h in range(2):
            st = 2 * p + h
            for k in range(4):
                for e in range(2):
                    if st in ESLOT: areg, off = rWOE, ESLOT[st] * 16384 + k * 4096 + e * 2048
                    else: areg, off = rWO + (k >> 1), (k & 1) * RING + uoff(("WO", p, h)) + e * 2048
                    d = oa(p, 4 * h + k)
                    bef = first_use[("OA", p, h, k)] - DMIN
                    if p == 0: bef = min(bef, O0 - 5)
                    if p == 1: bef = min(bef, at + ((O0 + 48 - at) * (8 * h + 2 * k + e)) // 16 + 2)
                    RA.append(rd("ds_read_b64_tr_b16", (d[0], d[1] + 2 * e), 2, areg, off, ("WO", p, h), at, bef, after_ev(name)))
    for nu in range(7):
        for kap in range(8):
            a0 = odead[nu][0]
            if STGX: a0 = max(a0, OBUSY[(OS[(kap, nu)] - AQ) // 4])
            RB.append(rd("ds_read_b128", OS[(kap, nu)], 4, rE, (kap * 7 + nu) * 1024, ("o",), a0,
                         first_use[("OB", kap, nu)] - DMIN, after_ev(("Box", odead[nu][1]))))

    DQ = []
    order = []
    xs = [("X", j) for j in range(7)]
    order = [xs[0], units[0], units[1], xs[1], units[2], units[3], xs[2], units[4], units[5], xs[3]]
    k = 6
    for j in range(4, 7):
        order += [units[k], units[k + 1], xs[j]]; k += 2
    order += units[k:]
    if cfg.get("xlast"):
        order = [xs[0], units[0], units[1]]
        for j in range(1, 7): order += [units[2 * j], units[2 * j + 1], xs[j]]
        order += units[14:]
    for u in order:
        if u[0] == "X":
            pre = after_ev(("Bx", u[1] - 3)) if u[1] >= 4 else None
        else:
            k = uidx[u]
            if k < NU: pre = None
            elif units[k - NU][0] == "WO":
                st = 2 * u[1] + u[2]
                pre = after_ev(REL0) if st < 8 else after_ev(("Bo", 2))
            else:
                pre = (lambda r: (lambda: reads_left[r] == 0 and now[0] - last_read[r] >= cfg.get("rel", 7)))(units[k - NU])
        L = dma_unit(u, pre)
        if cfg.get("look") and u[0] in cfg.get("lookk", ("K", "V")):
            k = uidx[u]
            n_ = k - 14
            if n_ >= cfg.get("nfree", 7):
                L[0].after = min(int(S0 + cfg.get("poff", 10) + (n_ - cfg.get("nfree", 7)) * cfg.get("pace", 35)), twait[units[k - cfg["look"]]])
        if u[0] != "X" and uidx[u] >= NU and units[uidx[u] - NU][0] != "WO": L[0].res = units[uidx[u] - NU]
        if cfg.get("rate") and u[0] in ("K", "V", "WO") and uidx[u] < 46 + cfg.get("nwo", 6):
            m_ = 4 * (uidx[u] - 14)
            lds_ = [x for x in L if x.kind == "vmem"]
            for j_, x in enumerate(lds_):
                mm = m_ + j_
                t_ = cfg.get("g0", 8.5) * 28 + min(mm, 128) * cfg["rate"] + max(0, mm - 128) * cfg.get("rate2", cfg["rate"])
                if t_ > S0: t_ -= cfg.get("tgap", 0)
                x.after = int(t_)
            L[0].after = lds_[0].after - 4
        if u[0] == "V" and u[1] in cfg.get("dummy", []):
            t_ = cfg["dummy"].index(u[1]) + 6
            ex = []
            va_ = [x for x in L if x.kind == "vmem"][0].after
            for j in range(4):
                ex.append(Ins(f"s_mov_b32 s{sOFF}, {(t_ & 1) * 128 * 896 + (t_ >> 1) * 128 + j * (8 * 896 - 1024)}", "salu"))
                ex.append(Ins(f"buffer_load_dwordx4 v{dWO}, {srd(sSRD_WO)}, s{sOFF} offen offset:{j*1024} lds", "vmem", rd=M0 | V(dWO), tag=("dm",), cost=8, after=va_ - 6))
            L[0].after -= 6
            L[1:1] = ex
        if u[0] == "WO" and 2 * u[1] + u[2] < len(cfg.get("woat", [])): L[0].after = O0 + cfg["woat"][2 * u[1] + u[2]]
        if cfg.get("wopfq") is not None and u[0] != "X" and uidx[u] == 46 + cfg["wopfq"]:
            L.insert(0, Ins(f"buffer_load_dword v{vPFV}, v{vPFV}, {srd(sSRD_WO)}, 0 offen", "vmem", rd=V(vPFV), tag=("pf",), cost=8, after=O0 + cfg.get("pfat", -10000)))
        DQ.append((u, L))

    def valu(text, rd_, wr_, after, before=INF, kind="valu", cost=4, pre=None):
        return Ins(text, kind, rd=rd_, wr=wr_, after=after, before=before, cost=cost, pre=pre)
    VS = []
    for nu in range(7 if cfg.get("q128") else 0):
        dl = qdead[nu][0] + 1 - (cfg.get("wlead", 3) if STGX else 0)
        for al in range(2):
            r = oacc(2 * al, nu)
            for x in range(8): VS.append(valu(f"v_mul_f32 v{r+x}, s{sC}, v{r+x}", V(r + x), V(r + x), done_at[("Q", 2 * al + (x >> 2), nu)], dl))
            aft = done_at[("Q", 2 * al + 1, nu)]
            for x in range(4):
                VS.append(valu(f"v_cvt_pk_bf16_f32 v{r+x}, v{r+2*x}, v{r+2*x+1}", V(r + 2 * x, 2), V(r + x), aft, dl))
            VS.append(Ins(f"ds_write_b128 v{wO}, {vr(r,4)} offset:{(al*7+nu)*1024}", "ds", rd=V(wO) | V(r, 4), res=("qw", nu),
                          after=aft, before=dl, pre=after_ev("Bxe"), cost=20))
    for nu in range(0 if cfg.get("q128") else 7):
        wr = []
        for mt in range(4):
            aft = done_at[("Q", mt, nu)]
            r = oacc(mt, nu)
            for x in range(4): VS.append(valu(f"v_mul_f32 v{r+x}, s{sC}, v{r+x}", V(r + x), V(r + x), aft, qdead[nu][0] + 1 - (cfg.get("wlead", 3) if STGX else 0)))
            VS += wr
            VS.append(valu(f"v_cvt_pk_bf16_f32 v{r}, v{r}, v{r+1}", V(r, 2), V(r), aft, qdead[nu][0] + 1 - (cfg.get("wlead", 3) if STGX else 0)))
            VS.append(valu(f"v_cvt_pk_bf16_f32 v{r+1}, v{r+2}, v{r+3}", V(r + 2, 2), V(r + 1), aft, qdead[nu][0] + 1 - (cfg.get("wlead", 3) if STGX else 0)))
            off = ((mt >> 1) * 7 + nu) * 1024 + (mt & 1) * 512
            wr = [Ins(f"ds_write_b64 v{wQ}, {vr(r,2)} offset:{off}", "ds", rd=V(wQ) | V(r, 2), res=("qw", nu),
                      after=aft, before=qdead[nu][0] + 1 - (cfg.get("wlead", 3) if STGX else 0), pre=after_ev("Bxe"), cost=12)]
        VS += wr
    def pw(c, nu, hf, aft, bef, evn):
        r = PR[c & 1] + 4 * nu + 2 * hf
        return Ins(f"ds_write_b64 v{wP}, {vr(r,2)} offset:{(c&1)*28672+nu*1024+8*hf}", "ds", rd=V(wP) | V(r, 2), res=("pw", c),
                   after=aft, before=bef, pre=after_ev(evn), cost=12)
    pend = []
    WS = []
    pvfirst = {}
    for i in range(P0, P0 + BL): pvfirst.setdefault(M[i][0], i)
    for b in range(8):
        c, hf = b >> 1, b & 1
        for nu in range(7):
            acc = sbuf[b] + 4 * nu
            aft = done_at[("S", b, nu)]
            nxt = [bb for bb in range(b + 1, 8) if sbuf[bb] == sbuf[b]]
            pdead = (P0 - BL + MID, P0 - BL + MID, P0 + 3 * BL + MID, P0 + 5 * BL + MID)[c]
            if nxt: bef = first_use[("Sacc", nxt[0], nu)]
            elif acc in pvfirst: bef = pvfirst[acc]
            else: bef = INF
            bef = min(bef, pdead - 2)
            pr = PR[c & 1] + 4 * nu + 2 * hf
            ex = [valu(f"v_exp_f32 v{acc+x}, v{acc+x}", V(acc + x), V(acc + x), aft, bef, kind="trans", cost=8) for x in range(4)]
            if b == 0:
                ad = [valu(f"v_add_f32 v{vL+nu}, v{acc}, v{acc+1}", V(acc, 2), V(vL + nu), aft, bef)]
                ad += [valu(f"v_add_f32 v{vL+nu}, v{vL+nu}, v{acc+x}", V(vL + nu) | V(acc + x), V(vL + nu), aft, bef) for x in (2, 3)]
                ad = [None] + ad
            else:
                ad = [valu(f"v_add_f32 v{vL+nu}, v{vL+nu}, v{acc+x}", V(vL + nu) | V(acc + x), V(vL + nu), aft, bef) for x in range(4)]
            cv = [valu(f"v_cvt_pk_bf16_f32 v{pr}, v{acc}, v{acc+1}", V(acc, 2), V(pr), aft, bef),
                  valu(f"v_cvt_pk_bf16_f32 v{pr+1}, v{acc+2}, v{acc+3}", V(acc + 2, 2), V(pr + 1), aft, bef)]
            tail = [ad[0], cv[0], ad[1], cv[1], ad[2], ad[3]]
            tail = [x for x in tail if x is not None]
            if cfg.get("pw128"):
                if hf == 1:
                    r = PR[c & 1] + 4 * nu
                    tail.append(Ins(f"ds_write_b128 v{wP}, {vr(r,4)} offset:{(c&1)*28672+nu*1024}", "ds", rd=V(wP) | V(r, 4), res=("pw", c),
                                    after=aft, before=pdead, pre=after_ev(("Bqe", "Bqe", ("Bp", 2), ("Bp", 4))[c]), cost=20))
            else:
                tail.append(pw(c, nu, hf, aft, pdead, ("Bqe", "Bqe", ("Bp", 2), ("Bp", 4))[c]))
            seq = []
            for x in range(4):
                seq.append(ex[x])
                seq += pend[:2]; pend = pend[2:]
            seq += pend
            pend = tail
            VS += seq
    VS += pend
    lbef = P0 + 5 * BL + MID
    T0 = SACC[0]
    aft = done_at[("S", 7, 6)]
    for nu in range(7): VS.append(valu(f"v_mov_b32 v{T0+nu}, v{vL+nu}", V(vL + nu), V(T0 + nu), aft, lbef))
    for nu in range(7): VS.append(valu(f"v_permlane32_swap_b32 v{vL+nu}, v{T0+nu}", V(vL + nu) | V(T0 + nu), V(vL + nu) | V(T0 + nu), aft, lbef, kind="perm", cost=8))
    for nu in range(7): VS.append(valu(f"v_add_f32 v{vL+nu}, v{vL+nu}, v{T0+nu}", V(vL + nu) | V(T0 + nu), V(vL + nu), aft, lbef))
    for nu in range(7): VS.append(valu(f"v_mov_b32 v{T0+nu}, v{vL+nu}", V(vL + nu), V(T0 + nu), aft, lbef))
    for nu in range(7): VS.append(valu(f"v_permlane16_swap_b32 v{vL+nu}, v{T0+nu}", V(vL + nu) | V(T0 + nu), V(vL + nu) | V(T0 + nu), aft, lbef, kind="perm", cost=8))
    for nu in range(7): VS.append(valu(f"v_add_f32 v{T0+8+nu}, v{vL+nu}, v{T0+nu}", V(vL + nu) | V(T0 + nu), V(T0 + 8 + nu), aft, lbef))
    VS.append(valu(f"v_add_u32 v{T0+7}, s{sXB}, v{vST}", V(vST), V(T0+7), aft, lbef))
    VS.append(valu(f"v_subrev_u32 v{T0+7}, s{sW2K}, v{T0+7}", V(T0+7), V(T0+7), aft, lbef))
    for hh in range(2):
        VS.append(Ins(f"ds_write_b128 v{T0+7}, {vr(T0+8+4*hh,4)} offset:{57344+hh*1024}", "ds", rd=V(T0+7) | V(T0 + 8 + 4 * hh, 4),
                      res=("lw",), after=aft, before=lbef, cost=20))
    rb = P0 + 7 * BL
    for w in range(4):
        for hh in range(2):
            d = T0 + 8 * w + 4 * hh
            VS.append(Ins(f"ds_read_b128 {vr(d,4)}, v{rE} offset:{57344+w*2048+hh*1024}", "ds", rd=V(rE), wr=V(d, 4), res=("lr",),
                          after=0, before=rb, pre=after_ev(("Bp", 6))))
    la = P0 + 6 * BL + 20
    for nu in range(7): VS.append(valu(f"v_add_f32 v{T0+nu}, v{T0+nu}, v{T0+8+nu}", V(T0 + nu) | V(T0 + 8 + nu), V(T0 + nu), la, O0))
    for nu in range(7): VS.append(valu(f"v_add_f32 v{T0+16+nu}, v{T0+16+nu}, v{T0+24+nu}", V(T0 + 16 + nu) | V(T0 + 24 + nu), V(T0 + 16 + nu), la, O0))
    for nu in range(7): VS.append(valu(f"v_add_f32 v{T0+nu}, v{T0+nu}, v{T0+16+nu}", V(T0 + nu) | V(T0 + 16 + nu), V(T0 + nu), la, O0))
    if cfg.get("fb", 1):
        a_, b_ = T0 + 8, T0 + 9
        VCC = {("s", "vcc")}
        VS.append(valu(f"v_max3_f32 v{a_}, v{T0}, v{T0+1}, v{T0+2}", V(T0, 3), V(a_), la, O0))
        VS.append(valu(f"v_min3_f32 v{b_}, v{T0}, v{T0+1}, v{T0+2}", V(T0, 3), V(b_), la, O0))
        for r in (3, 5):
            VS.append(valu(f"v_max3_f32 v{a_}, v{a_}, v{T0+r}, v{T0+r+1}", V(a_) | V(T0 + r, 2), V(a_), la, O0))
            VS.append(valu(f"v_min3_f32 v{b_}, v{b_}, v{T0+r}, v{T0+r+1}", V(b_) | V(T0 + r, 2), V(b_), la, O0))
        hi_, lo_ = f2u(2.0 ** cfg.get("lim", 40)), f2u(2.0 ** -cfg.get("lim", 40))
        VS.append(valu(f"v_cmp_nge_f32 vcc, {hi_:#x}, v{a_}\n    s_cbranch_vccnz L_fallback", V(a_), VCC, la, O0, cost=8))
        VS.append(valu(f"v_cmp_nle_f32 vcc, {lo_:#x}, v{b_}\n    s_cbranch_vccnz L_fallback", V(b_), VCC, la, O0, cost=8))
    for nu in range(7): VS.append(valu(f"v_rcp_f32 v{vL+nu}, v{T0+nu}", V(T0 + nu), V(vL + nu), la, O0, kind="trans", cost=8))
    VS.append(valu(f"v_add_u32 v{rWOE}, {EB}, v{rWO}", V(rWO), V(rWOE), P0 + 6 * BL, O0))
    VS.append(valu(f"v_lshrrev_b32 v{vST2}, 1, v{vST}", V(vST), V(vST2), P0 + 6 * BL, O0))
    for p in range(7): VS.append(Ins(f"s_mov_b32 s{sSTO+p}, {p*3584}", "salu", after=P0 + 5 * BL, before=O0))
    for nu in range(7):
        for al in range(2):
            aft = done_at[("O", 2 * al + 1, nu)]
            r = oacc(2 * al, nu)
            for x in range(4):
                VS.append(valu(f"v_cvt_pk_bf16_f32 v{r+x}, v{r+2*x}, v{r+2*x+1}", V(r + 2 * x, 2), V(r + x), aft, odead[nu][0] + 1 - (cfg.get("wlead", 3) if STGX else 0)))
            VS.append(Ins(f"ds_write_b128 v{wO}, {vr(r,4)} offset:{(al*7+nu)*1024}", "ds", rd=V(wO) | V(r, 4), res=("ow", nu),
                          after=aft, before=odead[nu][0] + 1 - (cfg.get("wlead", 3) if STGX else 0), pre=after_ev("Bpe"), cost=20))
    SQ = []
    for p in range(7):
        stg = OACC + 16 * p
        for nu in range(7):
            acc = SACC[p & 1] + 4 * nu
            aft = done_at[("Y", p, nu)]
            bef = first_use[("Yacc", p + 2, nu)] if p < 5 else INF
            for x in range(4): VS.append(valu(f"v_mul_f32 v{acc+x}, v{vL+nu}, v{acc+x}", V(acc + x) | V(vL + nu), V(acc + x), aft, bef))
            d = stg + 2 * nu
            VS.append(valu(f"v_cvt_pk_bf16_f32 v{d}, v{acc}, v{acc+1}", V(acc, 2), V(d), aft, bef))
            VS.append(valu(f"v_cvt_pk_bf16_f32 v{d+1}, v{acc+2}, v{acc+3}", V(acc + 2, 2), V(d + 1), aft, bef))
            gate = (lambda: not dq) if cfg.get("gate", 1) else None
            if nu & 1:
                VS.append(Ins(f"buffer_store_dwordx4 {vr(d-2,4)}, v{vST}, {srd(sSRD_WS)}, s{sSTO+p} offen offset:{(nu>>1)*1024} {stfl}",
                              "vmem", rd=V(d - 2, 4) | V(vST), tag=("st", p), after=aft, before=aft + cfg.get("stdl", INF), cost=32, pre=gate))
            if nu == 6:
                VS.append(Ins(f"buffer_store_dwordx2 {vr(d,2)}, v{vST2}, {srd(sSRD_WS)}, s{sSTO+p} offen offset:3072 {stfl}",
                              "vmem", rd=V(d, 2) | V(vST2), tag=("st", p), after=aft, before=aft + cfg.get("stdl", INF), cost=18, pre=gate))

    vFA, vFO, vFN, vFV = dK, dK + 1, dK + 2, dK + 3
    vRA, vOA, vOA2, vZ = 6, 7, 8, 0
    SEL = 120; RD_ = 128
    def publish(cnt):
        pubd[0] = cnt
        R(f"v_and_b32 v{vFV}, -16, v{vFV}")
        R(f"v_add_u32 v{vFV}, {16 + cnt}, v{vFV}")
        E.emit(Ins(f"buffer_store_dword v{vFV}, v{vZ}, {srd(sSRD_FM)}, 0 offen {cfg.get('ffl','sc1')}", "vmem", rd=V(vFV) | V(vZ), tag="fl"))
    def reduce_setup():
        t = RD_
        R(f"v_lshrrev_b32 v{t}, 4, v{vST}")
        R(f"v_and_b32 v{t+1}, 15, v{t}")
        R(f"v_lshrrev_b32 v{t+2}, 4, v{t}")
        R(f"v_lshlrev_b32 v{vZ}, 24, v{t}")
        R(f"v_and_b32 v{t+3}, 16, v{vST}")
        R(f"v_mov_b32 v{t+4}, 0x3f80"); R(f"v_lshlrev_b32 v{t+3}, v{t+3}, v{t+4}")
        R(f"v_bfe_u32 v{t+4}, v{t}, 1, 3")
        for io in range(0, 8, 2):
            R(f"v_cmp_eq_u32 vcc, {io}, v{t+4}"); R(f"v_cmp_eq_u32 s[24:25], {io+1}, v{t+4}"); R("s_nop 0")
            R(f"v_cndmask_b32 v{SEL+io}, 0, v{t+3}, vcc"); R(f"v_cndmask_b32 v{SEL+io+1}, 0, v{t+3}, s[24:25]")
        R(f"s_lshl_b32 s40, s{sW}, 4"); R(f"v_add_u32 v{t+3}, s40, v{t+1}")
        R(f"v_cmp_gt_u32 s[24:25], 56, v{t+3}")
        R(f"v_mul_u32_u24 v{vRA}, 100352, v{t+2}"); R(f"v_lshl_add_u32 v{vRA}, v{t+3}, 4, v{vRA}")
        R(f"v_mov_b32 v{t+4}, 0x7ffffff0")
        R(f"v_cndmask_b32 v{vRA}, v{t+4}, v{vRA}, s[24:25]")
        s_qd(); R("s_mul_i32 s40, s40, 56"); R(f"v_add_u32 v{t+3}, s40, v{t+3}")
        R(f"v_and_b32 v{t+5}, 1, v{t+2}")
        R(f"v_lshrrev_b32 v{t+6}, 6, v{t+3}"); R(f"v_and_b32 v{t+7}, 15, v{t+3}")
        R(f"v_lshl_add_u32 v{t+6}, v{t+6}, 5, v{t+7}"); R(f"v_lshl_add_u32 v{t+6}, v{t+5}, 4, v{t+6}")
        R(f"v_bfe_u32 v{t+7}, v{t+3}, 4, 2")
        R(f"v_cmp_lt_u32 vcc, 191, v{t+3}")
        R(f"v_and_b32 v{t+8}, 7, v{t+3}"); R(f"v_lshl_add_u32 v{t+8}, v{t+8}, 1, v{t+5}"); R(f"v_add_u32 v{t+8}, 96, v{t+8}")
        R(f"v_bfe_u32 v{t+9}, v{t+3}, 3, 2")
        R(f"v_cndmask_b32 v{t+6}, v{t+6}, v{t+8}, vcc"); R(f"v_cndmask_b32 v{t+7}, v{t+7}, v{t+9}, vcc")
        R(f"v_mul_u32_u24 v{vOA}, 896, v{t+6}"); R(f"v_lshl_add_u32 v{vOA}, v{t+7}, 3, v{vOA}")
        R(f"v_lshrrev_b32 v{t+5}, 1, v{t+2}"); R(f"v_lshl_add_u32 v{vOA}, v{t+5}, 7, v{vOA}")
        R(f"v_cmp_gt_u32 vcc, 32, v{t}")
        s_sw(); R("s_lshl_b32 s40, s40, 5"); R(f"v_add_u32 v{vOA}, s40, v{vOA}")
        R(f"v_cndmask_b32 v{vOA}, v{t+4}, v{vOA}, s[24:25]")
        R(f"v_cndmask_b32 v{vOA2}, v{t+4}, v{vOA}, vcc")
    npoll = [0]; nchk = [0]; pubd = [0]
    spins = []
    def preg(k): return rV + (k & 3)
    def poll():
        npoll[0] += 1
        r = preg(npoll[0])
        E.emit(Ins(f"buffer_load_dword v{r}, v{vFA}, {srd(sSRD_FL)}, 0 offen sc1", "vmem", rd=V(vFA), wr=V(r), tag=("poll", npoll[0])))
    def check_cond(need, r=None):
        r = vFN if r is None else r
        R(f"v_cmp_ne_u32 vcc, v{r}, v{vFO}")
        R(f"v_and_b32 v{vFN}, 15, v{r}")
        R(f"v_cmp_le_u32 s[26:27], {need}, v{vFN}")
        R("s_and_b64 vcc, vcc, s[26:27]")
        R("s_cmp_eq_u64 vcc, -1")
    def check(need, mine):
        nchk[0] += 1
        E.wait_vm([("poll", nchk[0])], 1)
        check_cond(need, preg(nchk[0]))
        k = len(spins); spins.append((need, mine))
        R(f"s_cbranch_scc0 L_spin{k}")
        E.label(f"L_spun{k}")
    def rreg(p, g): return OACC + 16 * p + 4 * g
    def rloads(p):
        L = []
        for g in range(4):
            L.append(Ins(f"s_add_u32 s{sOFF}, s{sRO}, {g*4*100352 + p*3584}", "salu"))
            L.append(Ins(f"buffer_load_dwordx4 {vr(rreg(p,g),4)}, v{vRA}, {srd(sSRD_PB)}, s{sOFF} offen {cfg.get('rfl','sc1')}", "vmem",
                         rd=V(vRA), wr=V(rreg(p, g), 4), tag=("rl", p, g), cost=8))
        return L
    def rsum(p, nxt=None):
        d = RD_ + 4 * (p >> 1); sel = SEL + 4 * (p & 1)
        nl = rloads(nxt) if nxt is not None else None
        for g in range(4):
            if nl:
                E.wait_vm([("rl", p, g)], 1)
                E.emit(nl[2 * g]); E.emit(nl[2 * g + 1])
            E.wait_vm([("rl", p, g)], 1)
            cz = (p & 1) == 0 and g == 0
            E.emit(Ins(f"v_mfma_f32_16x16x32_bf16 {vr(d,4)}, {vr(sel,4)}, {vr(rreg(p,g),4)}, {'0' if cz else vr(d,4)}", "mfma",
                       rd=V(sel, 4) | V(rreg(p, g), 4) | (set() if cz else V(d, 4)), wr=V(d, 4), rdc=set() if cz else V(d, 4)))
    def rstore(q):
        d = RD_ + 4 * q
        E.emit(valu(f"v_cvt_pk_bf16_f32 v{d}, v{d}, v{d+1}", V(d, 2), V(d), 0))
        E.emit(valu(f"v_cvt_pk_bf16_f32 v{d+1}, v{d+2}, v{d+3}", V(d + 2, 2), V(d + 1), 0))
        va = vOA if q < 3 else vOA2
        E.emit(Ins(f"buffer_store_dwordx2 {vr(d,2)}, v{va}, {srd(sSRD_OUT)}, 0 offen offset:{256*q} {cfg.get('ofl','')}", "vmem", rd=V(d, 2) | V(va), tag="ost"))
    def dyn_tail():
        vA, vLd, vI, vM = 32, 36, 40, 41
        def avail(r):
            R(f"v_cmp_ne_u32 vcc, v{r}, v{vFO}")
            R(f"v_and_b32 v{vFN}, 15, v{r}")
            R("s_nop 0")
            R(f"v_cndmask_b32 v{vFN}, 0, v{vFN}, vcc")
            for g in range(4): R(f"ds_bpermute_b32 v{vA+g}, v{vI}, v{vFN} offset:{16*g}")
            R("s_waitcnt lgkmcnt(0)")
        def piece(p, g, first, track):
            L = rloads(p)
            E.emit(L[2 * g])
            R(f"v_cmpx_lt_u32 vcc, {p}, v{vA+g}")
            if not first: R(f"v_cmpx_ge_u32 vcc, {p}, v{vLd+g}")
            if track: E.emit(L[2 * g + 1])
            else: R(L[2 * g + 1].text)
            R("s_mov_b64 exec, -1")
        poll()
        R(f"v_lshrrev_b32 v{vI}, 8, v{vST}"); R(f"v_lshlrev_b32 v{vI}, 2, v{vI}")
        E.wait_vm([("st", p) for p in range(7)]); publish(7)
        if stamps: stamp()
        nchk[0] += 1; E.wait_vm([("poll", nchk[0])], 1)
        avail(preg(nchk[0]))
        for p in range(7):
            for g in range(4): piece(p, g, True, True)
            if p == cfg.get("dynp", 3):
                R(f"v_mov_b32 v{preg(npoll[0] + 1)}, v{vFO}")
                poll()
        R("s_mov_b32 s28, 0")
        nchk[0] += 1; E.wait_vm([("poll", nchk[0])], 1)
        R(f"v_mov_b32 v{vFN}, v{preg(nchk[0])}")
        E.label("L_dyn")
        for g in range(4): R(f"v_mov_b32 v{vLd+g}, v{vA+g}")
        R(f"v_min3_u32 v{vM}, v{vA}, v{vA+1}, v{vA+2}"); R(f"v_min_u32 v{vM}, v{vM}, v{vA+3}")
        R(f"v_cmp_gt_u32 vcc, 7, v{vM}")
        R("s_cbranch_vccz L_dyn_done")
        avail(vFN)
        for p in range(7):
            R(f"v_cmp_ge_u32 vcc, {p}, v{vM}")
            R(f"s_cbranch_vccz L_dyn_s{p}")
            for g in range(4): piece(p, g, False, False)
            E.label(f"L_dyn_s{p}")
        R(f"v_min3_u32 v{vM}, v{vA}, v{vA+1}, v{vA+2}"); R(f"v_min_u32 v{vM}, v{vM}, v{vA+3}")
        R(f"v_cmp_gt_u32 vcc, 7, v{vM}")
        R("s_cbranch_vccz L_dyn_done")
        R("s_add_u32 s28, s28, 1")
        R("s_and_b32 s29, s28, 7")
        R("s_cbranch_scc1 L_dyn_np")
        publish(7)
        E.label("L_dyn_np")
        R(f"buffer_load_dword v{vFN}, v{vFA}, {srd(sSRD_FL)}, 0 offen sc1")
        R("s_waitcnt vmcnt(0)")
        R("s_cmp_lt_u32 s28, 400000")
        R("s_cbranch_scc1 L_dyn")
        E.label("L_dyn_done")
        if stamps: stamp()
        R("s_waitcnt vmcnt(0)")
        E.vm_known = 0; E.vm_len = len(E.vmq)
        st = 0
        for p in range(7):
            rsum(p)
            while 2 * st + 1 < p: rstore(st); st += 1
        while st < 4: rstore(st); st += 1
    PROG = cfg.get("prog", 1) and cfg.get("ink", 1)
    if cfg.get("ink", 1):
        def ev_setup():
            assert not any(x.kind == "vmem" and x.tag[0] == "V" for x in dq)
            assert not any(x.res == ("pw", 3) for x in VS)
            reduce_setup()
        if cfg.get("rsat") is not None:
            events.setdefault(O0 + int(cfg["rsat"] * BL), []).insert(0, ("rsetup", ev_setup))
        VS.append(valu(f"v_lshlrev_b32 v{vZ}, 20, v{vST}", V(vST), V(vZ), O0 + BL, O0 + 3 * BL))
    def act(a_, inline):
        k = a_[0]
        if k == "pub": E.wait_vm([("st", p) for p in range(a_[1])]); publish(a_[1])
        elif k == "poll": poll()
        elif k == "chk": check(a_[1], pubd[0])
        elif k == "ld":
            if inline:
                for x in rloads(a_[1]): E.emit(x)
            else: dq.extend(rloads(a_[1]))
        elif k == "sum": rsum(a_[1])
        elif k == "sl": rsum(a_[1] // 10, a_[1] % 10)
        elif k == "out": rstore(a_[1])
        elif k == "setup":
            if cfg.get("rsat") is None: reduce_setup()
        elif k == "stamp":
            if stamps: stamp()
    MIDS = cfg.get("mids", [(4.2, ("pub", 3))]) if PROG else []
    for n_, (pos, a_) in enumerate(MIDS):
        add_event(O0 + int(pos * BL), ("mid", n_), (lambda z: (lambda: act(z, False)))(a_))
    TAIL = cfg.get("tail", "poll setup pub7 stamp chk3 ld0 ld1 poll ld2 sum0 sum1 out0 chk7 stamp ld3 ld4 ld5 ld6 sum2 sum3 sum4 out1 sum5 sum6 out2 out3") if PROG \
        else "setup pub7 stamp poll chk7 stamp ld0 ld1 ld2 ld3 ld4 ld5 ld6 sum0 sum1 sum2 out0 sum3 sum4 out1 sum5 sum6 out2 out3"
    if cfg.get("ink", 1):
        fa = P0 - 28
        VS.insert(0, valu(f"v_and_b32 v{vFA}, 0xf0, v{vST}", V(vST), V(dK, 4), fa, P0 + BL, pre=lambda: not any(x.kind == "vmem" and x.tag[0] == "K" for x in dq)))
        VS.insert(1, valu(f"v_lshlrev_b32 v{vFA}, 3, v{vFA}", V(vFA), V(vFA), fa, P0 + BL))
        VS.insert(2, valu(f"v_mov_b32 v{vFN}, 0", set(), V(vFN), fa, P0 + BL))
        VS.insert(3, Ins(f"buffer_load_dword v{vFO}, v{vFA}, {srd(sSRD_FL)}, 0 offen sc1", "vmem", rd=V(vFA), wr=V(vFO), tag="pf", after=fa, before=P0 + BL, cost=8))
        VS.insert(4, Ins(f"buffer_load_dword v{vFV}, v{vFN}, {srd(sSRD_FM)}, 0 offen sc1", "vmem", rd=V(vFN), wr=V(vFV), tag="pf", after=fa, before=P0 + BL, cost=8))

    PF = []
    if cfg.get("wopf") is not None:
        PF.append(Ins(f"buffer_load_dword v{vPFV}, v{vPFV}, {srd(sSRD_WO)}, 0 offen", "vmem", rd=V(vPFV), tag="pf",
                      after=int(cfg["wopf"] * 28), cost=8))

    KN = "standalone__gqa_block_cached__near_ridge_kernel" if cfg.get("ink", 1) else "gqa_main_kernel"
    if cfg.get("ink", 1):
        E.out.append("; fused GQA block: q-proj + attention + out-proj + cross-workgroup head reduction")
        E.out.append("; @launch grid=(256,1,1) block=(256,1,1) lds=163840")
    else:
        E.out.append("""; fused GQA block: q-proj + attention + out-proj partials (main), then head reduction (reduce)
; @launch kernel=gqa_main_kernel grid=(256,1,1) block=(256,1,1) lds=163840
; @launch kernel=gqa_reduce_kernel grid=(448,1,1) block=(256,1,1) lds=0""")
    E.out.append(f""".amdgcn_target "amdgcn-amd-amdhsa--gfx950"
.text
.globl {KN}
.p2align 8
.type {KN},@function
{KN}:""")
    R("s_cmp_ge_u32 s2, 256")
    R("s_cbranch_scc1 L_exit")
    R("s_load_dwordx8 s[8:15], s[0:1], 0")
    R("s_load_dwordx2 s[4:5], s[0:1], 32")
    R(f"s_load_dwordx2 s[{sSRD_OUT}:{sSRD_OUT+1}], s[0:1], 40")
    R("s_load_dwordx2 s[6:7], s[0:1], 56")
    if cfg.get("padT") or cfg.get("padstep") is not None: R("s_memrealtime s[68:69]")
    if stamps:
        R(f"s_memtime s[{sSTAMP}:{sSTAMP+1}]"); R(f"s_memrealtime s[{sSTAMP+30}:{sSTAMP+31}]")
    if cfg.get("cpf", 1):
        R("s_getpc_b64 s[24:25]")
        E.label("L_pc")
        R("s_mov_b32 s26, L_end-L_pc"); R("s_mov_b32 s27, 0x20000")
        R("v_lshlrev_b32 v54, 7, v0"); R("v_lshrrev_b32 v55, 4, v0"); R("s_lshr_b32 s40, s2, 3"); R("s_lshl_b32 s40, s40, 11")
        R("v_lshl_add_u32 v54, v55, 24, v54")
        E.emit(Ins(f"buffer_load_dword v56, v54, s[24:27], s40 offen", "vmem", tag="pf"))
    t0, t1, t2, t3, t4, t5 = 40, 41, 42, 43, 44, 45
    vA, vP8, vG, vP16, vW, vR, vC4 = 46, 47, 48, 49, 50, 51, 52
    R(f"v_lshrrev_b32 v{vW}, 6, v0")
    R(f"v_and_b32 v{vLANE}, 63, v0")
    R(f"v_readfirstlane_b32 s{sW}, v{vW}")
    R(f"v_lshrrev_b32 v{vA}, 3, v{vLANE}")
    R(f"v_and_b32 v{vP8}, 7, v{vLANE}")
    R(f"v_lshrrev_b32 v{vG}, 4, v{vLANE}")
    R(f"v_and_b32 v{vP16}, 15, v{vLANE}")
    R("s_bfe_u32 s46, s2, 0x10003")
    if cfg.get("kmap", 2) == 1:
        R("s_and_b32 s55, s2, 7")
        R("s_lshr_b32 s58, s2, 4")
        R(f"s_mov_b32 s{sSQ}, s58"); R(f"s_mov_b32 s{sSX}, s46")
    elif cfg.get("kmap", 2) == 8:
        R("s_bfe_u32 s55, s2, 0x30004")
        R("s_and_b32 s58, s2, 7"); R("s_lshl_b32 s58, s58, 1"); R(f"s_lshr_b32 s{sSQ}, s2, 7"); R(f"s_add_u32 s58, s58, s{sSQ}")
        R(f"s_bfe_u32 s{sSX}, s2, 0x40003")
    elif cfg.get("kmap", 2) == 4:
        R("s_and_b32 s55, s2, 1"); R("s_lshl_b32 s55, s55, 2"); R("s_bfe_u32 s40, s2, 0x20004"); R("s_add_u32 s55, s55, s40")
        R(f"s_lshr_b32 s{sSQ}, s2, 6"); R("s_bfe_u32 s40, s2, 0x20001"); R("s_lshl_b32 s58, s40, 2"); R(f"s_add_u32 s58, s58, s{sSQ}")
        R(f"s_bfe_u32 s{sSX}, s2, 0x30003")
    else:
        R("s_and_b32 s55, s2, 3"); R("s_lshl_b32 s55, s55, 1"); R("s_bfe_u32 s40, s2, 0x10004"); R("s_add_u32 s55, s55, s40")
        R(f"s_lshr_b32 s{sSQ}, s2, 5"); R("s_bfe_u32 s40, s2, 0x10002"); R("s_lshl_b32 s58, s40, 3"); R(f"s_add_u32 s58, s58, s{sSQ}")
        R(f"s_bfe_u32 s{sSX}, s2, 0x20003")
    R("s_lshl_b32 s56, s55, 1")
    R("s_add_u32 s56, s56, s46")
    STG = 0
    if cfg.get("rot"):
        R(f"s_lshl_b32 s40, s{sSX}, {cfg.get('rotsh', 1)}"); R(f"s_add_u32 s40, s40, s{sSQ}")
        R("s_mul_i32 s43, s40, 37"); R("s_lshr_b32 s43, s43, 8"); R("s_mul_i32 s43, s43, 7"); R("s_sub_u32 s40, s40, s43")
        R(f"s_lshl_b32 s{sSTO}, s40, 7")
    R(f"s_mul_i32 s{sRB}, s{sW}, {RING}")
    R(f"s_lshl_b32 s{sXB}, s{sW}, 12"); R(f"s_add_u32 s{sXB}, s{sXB}, {EB}")
    R(f"v_lshl_add_u32 v{t0}, v{vW}, 5, v{vA}")
    R(f"v_mul_u32_u24 v{t1}, 896, v{t0}")
    R(f"v_xor_b32 v{t2}, v{vP8}, v{vG}")
    R(f"v_lshlrev_b32 v{t2}, 4, v{t2}")
    R(f"v_xor_b32 v{t3}, 64, v{t2}")
    R(f"v_add_u32 v{dX}, v{t1}, v{t2}")
    R(f"v_add_u32 v{dX+1}, v{t1}, v{t3}")
    R(f"v_add_u32 v{dX+2}, {2*6144}, v{dX}")
    R(f"v_add_u32 v{dX+3}, {3*6144}, v{dX+1}")
    R(f"v_add_u32 v{dX+1}, {6144}, v{dX+1}")
    R(f"v_and_b32 v{t2}, 1, v{vG}")
    R(f"v_lshlrev_b32 v{t2}, 1, v{t2}")
    R(f"v_xor_b32 v{t2}, v{vP8}, v{t2}")
    R(f"v_lshlrev_b32 v{t2}, 4, v{t2}")
    R(f"v_lshl_add_u32 v{t2}, v{vW}, 7, v{t2}")
    R(f"v_lshl_add_u32 v{dWQ}, v{vA}, 13, v{t2}")
    R(f"v_xor_b32 v{dWQ+1}, 64, v{dWQ}")
    R(f"v_add_u32 v{dWQ+2}, {2*64512}, v{dWQ}")
    R(f"v_add_u32 v{dWQ+3}, {3*64512}, v{dWQ+1}")
    R(f"v_add_u32 v{dWQ+1}, {64512}, v{dWQ+1}")
    R(f"s_mov_b32 s{sSRD_X+2}, 100352"); R(f"s_mov_b32 s{sSRD_X+3}, 0x20000")
    R(f"s_mul_i32 s{sSRD_X}, s58, 100352")
    R(f"s_lshl_b32 s{sSRD_WQ}, s56, 9")
    R(f"s_sub_u32 s{sSRD_WQ+2}, {448*8192}, s{sSRD_WQ}"); R(f"s_mov_b32 s{sSRD_WQ+3}, 0x20000")
    if cfg.get("padstep") == -3: R("s_memrealtime s[70:71]")
    R("s_waitcnt lgkmcnt(0)")
    if cfg.get("padstep") == -2: R("s_memrealtime s[70:71]")
    R(f"s_add_u32 s{sSRD_X}, s8, s{sSRD_X}"); R(f"s_addc_u32 s{sSRD_X+1}, s9, 0")
    R(f"s_add_u32 s{sSRD_WQ}, s14, s{sSRD_WQ}"); R(f"s_addc_u32 s{sSRD_WQ+1}, s15, 0")
    npro = cfg.get("npro", 3); npro3 = cfg.get("npro3", 6)
    for u, L in DQ[:npro]:
        for x in L: E.emit(x)
    km = cfg.get("kmap", 2)
    if cfg.get("rot"):
        for j in range(1, 7):
            R(f"s_add_u32 s{sSTO+j}, s{sSTO+j-1}, 128"); R(f"s_cmp_eq_u32 s{sSTO+j}, 896"); R(f"s_cselect_b32 s{sSTO+j}, 0, s{sSTO+j}")
    R(f"s_mov_b32 s{sC}, {f2u(math.log2(math.e) / 16.0):#x}")
    R(f"s_lshl_b32 s{sW2K}, s{sW}, 11")
    R(f"s_mul_i32 s40, s{sSQ}, {16*km}"); R(f"v_add_u32 v58, s40, v{vA}")
    R(f"v_mul_u32_u24 v59, {4*km}, v{vW}"); R("v_add_u32 v58, v58, v59"); R("v_mul_u32_u24 v58, 896, v58")
    R(f"v_lshl_add_u32 v{vPFV}, v{vP8}, 7, v58")
    R(f"v_cmp_gt_u32 vcc, {32*km}, v{vLANE}"); R("v_mov_b32 v59, 0x7ffffff0")
    R(f"v_bfe_u32 v{vR}, v{vLANE}, 2, 2")
    R(f"v_cndmask_b32 v{vPFV}, v59, v{vPFV}, vcc")
    R(f"v_and_b32 v{vC4}, 3, v{vLANE}")
    R(f"v_lshlrev_b32 v{vST}, 4, v{vLANE}")
    R(f"v_bfe_u32 v{t2}, v{vLANE}, 1, 3")
    R(f"v_xor_b32 v{t2}, v{t2}, v{vG}")
    R(f"v_lshlrev_b32 v{t2}, 4, v{t2}")
    R(f"v_lshl_add_u32 v{t2}, v{vP16}, 7, v{t2}")
    R(f"v_add_u32 v{rX}, {EB}, v{t2}")
    R(f"v_xor_b32 v{rX+1}, 64, v{rX}")
    R(f"v_lshrrev_b32 v{t4}, 1, v{vR}")
    R(f"v_and_b32 v{t2}, 1, v{vG}")
    R(f"v_lshl_add_u32 v{t5}, v{t2}, 1, v{t4}")
    R(f"v_lshlrev_b32 v{t3}, 3, v{vC4}")
    R(f"v_lshl_add_u32 v{t3}, v{t5}, 5, v{t3}")
    R(f"v_add_u32 v{t4}, s{sRB}, v{t3}")
    R(f"v_lshl_add_u32 v{t2}, v{vG}, 3, v{vR}")
    R(f"v_lshl_add_u32 v{rWQ}, v{t2}, 7, v{t4}")
    for m in range(1, 4): R(f"v_xor_b32 v{rWQ+m}, {32*m}, v{rWQ}")
    if cfg.get("q128"):
        R(f"v_lshlrev_b32 v{rWQ+2}, 1, v{t5}"); R(f"v_xor_b32 v{rWQ+2}, v{rWQ+2}, v{vC4}"); R(f"v_lshlrev_b32 v{rWQ+2}, 4, v{rWQ+2}")
        R(f"v_lshl_add_u32 v{rWQ+2}, v{t2}, 7, v{rWQ+2}"); R(f"v_add_u32 v{rWQ}, s{sRB}, v{rWQ+2}"); R(f"v_xor_b32 v{rWQ+1}, 64, v{rWQ}")
    R(f"v_lshl_add_u32 v{t2}, v{vG}, 2, v{vR}")
    R(f"v_lshl_add_u32 v{rV}, v{t2}, 7, v{t4}")
    for m in range(1, 4): R(f"v_xor_b32 v{rV+m}, {32*m}, v{rV}")
    R(f"v_lshl_add_u32 v{rWO}, v{t2}, 7, v{t3}")
    R(f"v_lshlrev_b32 v{t2}, 5, v{vW}")
    R(f"v_xor_b32 v{rWO}, v{rWO}, v{t2}")
    R(f"v_add_u32 v{rWO+1}, {2*RING}, v{rWO}")
    R(f"v_xor_b32 v{t3}, v{vG}, v{vP16}")
    R(f"v_lshlrev_b32 v{t3}, 4, v{t3}")
    R(f"v_lshl_add_u32 v{t2}, v{vP16}, 8, v{t3}")
    R(f"v_add_u32 v{rK}, s{sRB}, v{t2}")
    for k in range(1, 4): R(f"v_xor_b32 v{rK+k}, {64*k}, v{rK}")
    R(f"v_lshl_add_u32 v{t2}, v{vW}, 5, v{vG}")
    R(f"v_lshl_add_u32 v{dK}, v{t2}, 9, v{t3}")
    for j in range(1, 4):
        R(f"v_xor_b32 v{dK+j}, {64*j}, v{dK}")
        R(f"v_add_u32 v{dK+j}, {1024*j}, v{dK+j}")
    R(f"v_lshlrev_b32 v{t2}, 1, v{vG}")
    R(f"v_xor_b32 v{t2}, v{vP8}, v{t2}")
    R(f"v_lshlrev_b32 v{t2}, 4, v{t2}")
    R(f"v_add_u32 v{dWO}, v{t1}, v{t2}")
    R(f"v_lshl_add_u32 v{t2}, v{vW}, 7, v{t2}")
    R(f"v_lshl_add_u32 v{dV}, v{vA}, 9, v{t2}")
    for j in range(1, 4): R(f"v_add_u32 v{dV+j}, {3072*j}, v{dV}")
    R(f"v_add_u32 v{rE}, {EB}, v{vST}")
    R(f"v_mul_u32_u24 v{t2}, 7168, v{vW}")
    R(f"v_add_u32 v{wP}, v{rE}, v{t2}")
    R(f"v_add_u32 v{wO}, v{wP}, v{t2}")
    R(f"v_lshrrev_b32 v{t3}, 1, v{vG}")
    R(f"v_lshl_add_u32 v{t3}, v{t3}, 4, v{vP16}")
    R(f"v_and_b32 v{t4}, 1, v{vG}")
    R(f"v_lshlrev_b32 v{t4}, 3, v{t4}")
    R(f"v_lshl_add_u32 v{t3}, v{t3}, 4, v{t4}")
    R(f"v_lshl_add_u32 v{t3}, v{t2}, 1, v{t3}")
    R(f"v_add_u32 v{wQ}, {EB}, v{t3}")
    for sr, size in ((sSRD_K, 262144), (sSRD_V, 262144), (sSRD_WO, 229376), (sSRD_WS, 25088), (sSRD_OUT, 100352), (sSRD_PB, 1605632)):
        R(f"s_mov_b32 s{sr+2}, {size}"); R(f"s_mov_b32 s{sr+3}, 0x20000")
    R(f"s_lshl_b32 s40, s58, 3"); R("s_add_u32 s40, s40, s55"); R(f"s_lshl_b32 s{sSRD_V}, s40, 18")
    if cfg.get("l2kv"): R(f"s_lshl_b32 s{sSRD_V}, s55, 18")
    R(f"s_mul_i32 s{sSRD_WO}, s56, 229376")
    R("s_lshl_b32 s40, s58, 4"); R("s_add_u32 s40, s40, s56"); R("s_lshl_b32 s40, s40, 2"); R(f"s_add_u32 s40, s40, s{sW}")
    R(f"s_mul_i32 s{sSRD_WS}, s40, 25088")
    R(f"s_mul_i32 s{sSRD_PB}, s58, 1605632")
    s_sw(); R(f"s_mul_i32 s{sRO}, s40, 25088"); s_qd(); R("s_mul_i32 s40, s40, 896"); R(f"s_add_u32 s{sRO}, s{sRO}, s40")
    R(f"s_lshl_b32 s46, s{sBB}, 2"); s_sw(); R("s_add_u32 s40, s40, s46"); R("s_lshl_b32 s40, s40, 11"); R(f"s_add_u32 s41, s40, {FLOFF}")
    R(f"s_add_u32 s40, s46, s{sW}"); R("s_lshl_b32 s40, s40, 4"); R(f"s_add_u32 s40, s40, s{sH}"); R("s_lshl_b32 s40, s40, 7"); R(f"s_add_u32 s46, s40, {FLOFF}")
    R(f"s_mul_i32 s40, s58, 100352")
    R(f"s_add_u32 s{sSRD_K}, s10, s{sSRD_V}"); R(f"s_addc_u32 s{sSRD_K+1}, s11, 0")
    R(f"s_add_u32 s{sSRD_V}, s12, s{sSRD_V}"); R(f"s_addc_u32 s{sSRD_V+1}, s13, 0")
    R(f"s_add_u32 s{sSRD_WO}, s4, s{sSRD_WO}"); R(f"s_addc_u32 s{sSRD_WO+1}, s5, 0")
    R(f"s_add_u32 s{sSRD_WS}, s6, s{sSRD_WS}"); R(f"s_addc_u32 s{sSRD_WS+1}, s7, 0")
    R(f"s_add_u32 s{sSRD_OUT}, s{sSRD_OUT}, s40"); R(f"s_addc_u32 s{sSRD_OUT+1}, s{sSRD_OUT+1}, 0")
    R(f"s_add_u32 s{sSRD_PB}, s6, s{sSRD_PB}"); R(f"s_addc_u32 s{sSRD_PB+1}, s7, 0")
    R(f"s_add_u32 s{sSRD_FL}, s6, s41"); R(f"s_addc_u32 s{sSRD_FL+1}, s7, 0"); R(f"s_mov_b32 s{sSRD_FL+2}, 2048"); R(f"s_mov_b32 s{sSRD_FL+3}, 0x20000")
    R(f"s_add_u32 s{sSRD_FM}, s6, s46"); R(f"s_addc_u32 s{sSRD_FM+1}, s7, 0"); R(f"s_mov_b32 s{sSRD_FM+2}, 128"); R(f"s_mov_b32 s{sSRD_FM+3}, 0x20000")
    for u, L in DQ[npro:npro3]:
        for x in L: E.emit(x)
    if cfg.get("padstep") == -1: R("s_memrealtime s[70:71]")
    dq = [x for u, L in DQ[npro3:] for x in L]

    stamp_n = [1]
    def stamp():
        k = stamp_n[0]; stamp_n[0] += 1
        R(f"{'s_memrealtime' if cfg.get('rt', 1) and k != len(stamps) + 5 else 's_memtime'} s[{sSTAMP+2*k}:{sSTAMP+2*k+1}]")
    def skipf(i):
        if cfg.get("nodma") and i.kind == "vmem" and "lds" in i.text: return True
        if cfg.get("nost") and "buffer_store" in i.text: return True
        if cfg.get("skipwo") and i.kind == "vmem" and i.tag[0] == "WO" and 2 * i.tag[1] + i.tag[2] >= cfg["skipwo"]: return True
        if cfg.get("nosoft") and (i.text.startswith("v_exp") or i.text.startswith("v_add_f32")): return True
        if cfg.get("nopw") and i.kind == "ds" and i.res and i.res[0] == "pw": return True
        if cfg.get("nodsw") and "ds_write" in i.text: return True
        if cfg.get("novalu") and i.kind in ("valu", "trans", "perm"): return True
        return False

    wgap = {}; issued = {}
    def emit(x):
        if x.tag == "read":
            reads_left[x.res] -= 1; last_read[x.res] = now[0]
        if x.kind == "salu" and x.res is not None: E.wait_ds_res(lambda r: r == x.res)
        E.emit(x)
        if x.kind == "vmem": issued[x.tag] = now[0]
        for r in x.wr: wgap[r] = (now[0], x.kind)
    def ok(x, i): return x.after <= i and (x.pre is None or x.pre())
    def run_events(idx):
        for name, fn in events.get(idx, []):
            fn(); ev_done.add(name)
    def conflicts(x, y): return bool(x.rd & y.wr or x.wr & y.rd or x.wr & y.wr)
    def force_fifo(st, i, what):
        k = 0
        for kk, x in enumerate(st[:64]):
            if x.before <= i: k = kk + 1
        c = 0
        for x in st[:k]:
            assert ok(x, i), f"forced {what} not eligible at {i}: {x.text}"
            emit(x); c += x.cost
        del st[:k]
        return c
    c2 = [0]
    def force_vs(i):
        c2[0] = 0
        need = [False] * min(len(VS), 600)
        for k in range(len(need) - 1, -1, -1):
            if VS[k].before <= i: need[k] = True
            if need[k]:
                for kk in range(k):
                    if not need[kk] and conflicts(VS[k], VS[kk]): need[kk] = True
        c = 0
        sel = [VS[k] for k in range(len(need)) if need[k]]
        for x in sel:
            assert ok(x, i), f"forced valu not eligible at {i}: {x.text}"
            VS.remove(x); emit(x); c += x.cost
            c2[0] += x.cost
            if c2[0] >= 96 and dq and ok(dq[0], i):
                c2[0] = 0
                while dq and ok(dq[0], i):
                    y = dq.pop(0); emit(y); c += y.cost
                    if y.kind == "vmem": break
        return c
    WIN = cfg.get("win", 150)
    def ready(x, i):
        if not ok(x, i) or E.need_nops(x) > 0: return False
        k = E.ds_idx(x)
        if k >= 0 and any(wgap.get(r, (-99, 0))[1] == "ds" and i - wgap[r][0] < 10 for r in x.rd | x.wr): return False
        for r in x.rd:
            if r in wgap and wgap[r][1] == "trans" and wgap[r][0] >= i: return False
        return True
    def pick(pred, i):
        blocked = []
        n = 0
        for k, x in enumerate(VS):
            if x.after <= i:
                n += 1
                if n > WIN: return None
            if pred(x) and ready(x, i) and not any(conflicts(x, y) for y in blocked): return x
            blocked.append(x)
            if k > 400: return None
        return None
    ismem = lambda x: x.kind in ("ds", "vmem")
    is4 = lambda x: x.cost == 4 and not ismem(x)

    run_events(-1)
    if stamps: stamp()
    E.skip = skipf
    over = {}; lastdma = -10; lastb128 = -10; lastw = -10; idle = {}
    for i in range(END):
        now[0] = i
        ph = "QSPO"[(i >= S0) + (i >= P0) + (i >= O0)]
        if i % 28 == 0:
            E.comment(f"---- step {i//28} {units[i//28]}")
            if i // 28 in stamps: stamp()
            if cfg.get("padstep") == i // 28: R("s_memrealtime s[70:71]")
        c = force_fifo(RA, i - 4, "read") + force_fifo(RB, i - 4, "read") if i > 0 else force_fifo(RA, 0, "read") + force_fifo(RB, 0, "read")
        if i in (S0, O0) and not STGX: c += force_fifo(RB, i, "read")
        over[ph] = over.get(ph, 0) + c
        E.emit(mfma(i))
        bud = BUD
        if any(x.before <= i + 1 for x in VS[:600]):
            c = force_vs(i + 1); over[ph] = over.get(ph, 0) + max(0, c - bud); bud -= c
        run_events(i)
        if bud < BUD:
            continue
        cand = [q for q in (RA, RB) if q and ok(q[0], i)]
        cand.sort(key=lambda q: q[0].before)
        urgent = [q for q in cand if q[0].before <= i + 1 + sum(1 for x in q[:6] if x.before <= i + 6)]
        sp = cfg.get("dmasp", 4) if i >= cfg.get("fastuntil", 0) else cfg.get("fastsp", 2)
        if dq and dq[0].kind == "vmem" and dq[0].tag[0] == "K" and i < S0: sp = cfg.get("ksp", 8)
        if dq and dq[0].kind == "vmem" and dq[0].tag[0] in ("K", "V") and i >= S0: sp = cfg.get("msp", 4)
        if dq and dq[0].kind == "vmem" and dq[0].tag[0] == "WO": sp = cfg.get("osp", 4) if i < O0 else cfg.get("osp2", 4)
        if dq and dq[0].kind == "vmem" and dq[0].tag[0] == "rl": sp = cfg.get("rsp", 3)
        if cfg.get("rate") and dq and dq[0].kind == "vmem" and dq[0].after > 0: sp = cfg.get("minsp", 4)
        dma_due = dq and dq[0].kind == "vmem" and ok(dq[0], i) and i - lastdma >= sp and E.need_nops(dq[0]) == 0
        x = None
        if dma_due and (not urgent or i - max(lastdma + sp, dq[0].after) >= 2):
            x = dq.pop(0); lastdma = i
            if urgent:
                emit(urgent[0].pop(0)); over[ph] = over.get(ph, 0) + 4
        elif urgent: x = urgent[0].pop(0)
        elif PF and PF[0].after <= i and i - lastdma >= 2: x = PF.pop(0)
        else:
            cand = [q for q in cand if not ("b128" in q[0].text and i - lastb128 < cfg.get("b128sp", 2))]
            if cand: x = cand[0].pop(0)
        if x is None and dq and dq[0].kind == "salu" and ok(dq[0], i) and cfg.get("salup", 1):
            pass
        elif x is None:
            big = lambda z: not is4(z) and not (ismem(z) and z.cost > 8 and i - lastw < (cfg.get("wsp", 3) if z.kind == "ds" else cfg.get("ssp", 6)))
            y4 = pick(is4, i); y8 = pick(big, i)
            y = y8
            if y4 is not None and y8 is not None and VS.index(y4) < VS.index(y8):
                load = sum(z.cost for z in VS[:600] if z.before <= y4.before)
                if load / 8.0 > (y4.before - i) * cfg.get("urg", 0.6): y = y4
            if y is not None and not is4(y):
                VS.remove(y); x = y
                if ismem(y) and y.cost > 8: lastw = i
        if x is not None:
            if "read_b128" in x.text: lastb128 = i
            emit(x); bud -= x.cost
            if x.cost > BUD: over[ph] = over.get(ph, 0) + x.cost - BUD
        while bud >= 4:
            if dq and dq[0].kind == "salu" and ok(dq[0], i):
                emit(dq.pop(0)); bud -= 4; continue
            y = pick(is4, i)
            if y is None: break
            VS.remove(y); emit(y); bud -= 4
        if bud > 0: idle[ph] = idle.get(ph, 0) + bud
    now[0] = END
    over["tail"] = sum(x.cost for x in VS)
    for x in VS: emit(x)
    for x in dq: emit(x)
    assert not RA and not RB and not PF
    INK = cfg.get("ink", 1)
    if cfg.get("padstep") == 60: R("s_memrealtime s[70:71]")
    if INK:
        if stamps: stamp()
        E.skip = None
        if cfg.get("dyn"):
            dyn_tail()
            TAIL = ""
        import re as _re
        for tok in TAIL.split():
            m_ = _re.match(r"([a-z]+)(\d*)", tok)
            act((m_.group(1), int(m_.group(2))) if m_.group(2) else (m_.group(1),), True)
    if stamps:
        if not INK: stamp(); stamp(); stamp()
        R("s_waitcnt vmcnt(0)")
        stamp()
        R(f"s_memrealtime s[{sSTAMP+32}:{sSTAMP+33}]")
        R("s_waitcnt lgkmcnt(0)")
        n = stamp_n[0]
        R("s_add_u32 s8, s6, 0x8000000"); R("s_addc_u32 s9, s7, 0"); R("s_mov_b32 s10, 0x100000"); R("s_mov_b32 s11, 0x20000")
        R("s_lshl_b32 s12, s2, 2"); R(f"s_add_u32 s12, s12, s{sW}"); R("s_lshl_b32 s12, s12, 7")
        R("v_mov_b32 v2, s12")
        R(f"v_cmp_eq_u32 vcc, 0, v{vST}")
        R("s_and_saveexec_b64 s[14:15], vcc")
        for k in range(1, n):
            R(f"s_sub_u32 s13, s{sSTAMP+2*k}, s{sSTAMP+30 if cfg.get('rt', 1) and k != len(stamps) + 5 else sSTAMP}")
            R("v_mov_b32 v3, s13")
            R(f"buffer_store_dword v3, v2, s[8:11], 0 offen offset:{4*(k-1)}")
        R(f"v_mov_b32 v3, s{sSTAMP+30}")
        R(f"buffer_store_dword v3, v2, s[8:11], 0 offen offset:{4*30}")
        R(f"v_mov_b32 v3, s{sSTAMP+32}")
        R(f"buffer_store_dword v3, v2, s[8:11], 0 offen offset:{4*31}")
    if stamps or cfg.get("padT") or cfg.get("padstep") is not None or cfg.get("fw"): R("s_waitcnt vmcnt(0)")
    if cfg.get("padT") or cfg.get("padstep") is not None:
        R("s_memrealtime s[72:73]"); R("s_waitcnt lgkmcnt(0)")
        if cfg.get("padG"):
            R("s_load_dwordx2 s[76:77], s[0:1], 48"); R("s_waitcnt lgkmcnt(0)"); R("s_mov_b32 s78, 256"); R("s_mov_b32 s79, 0x20000")
            R("s_not_b32 s75, s68"); R("v_mov_b32 v50, s75"); R(f"v_lshlrev_b32 v51, 20, v{vST}")
            R("buffer_atomic_umax v50, v51, s[76:79], 0 offen sc1"); R("s_waitcnt vmcnt(0)")
            R("s_add_u32 s74, s68, 4000")
            E.label("L_pad0")
            R("s_memrealtime s[72:73]"); R("s_waitcnt lgkmcnt(0)")
            R("s_sub_u32 s75, s72, s74"); R("s_cmp_lt_i32 s75, 0"); R("s_cbranch_scc1 L_pad0")
            R("v_mov_b32 v51, 0"); R("buffer_load_dword v50, v51, s[76:79], 0 offen sc1"); R("s_waitcnt vmcnt(0)")
            R("v_readfirstlane_b32 s68, v50"); R("s_nop 3"); R("s_not_b32 s68, s68")
        if cfg.get("padT"): R(f"s_add_u32 s74, s68, {cfg['padT']}")
        else: R("s_sub_u32 s74, s70, s68"); R(f"s_mul_i32 s74, s74, {cfg.get('padk', 1)}"); R("s_add_u32 s74, s74, s72")
        E.label("L_pad")
        R("s_memrealtime s[72:73]"); R("s_waitcnt lgkmcnt(0)")
        R("s_sub_u32 s75, s72, s74"); R("s_cmp_lt_i32 s75, 0"); R("s_cbranch_scc1 L_pad")
    E.label("L_exit")
    R("s_endpgm")
    fb_lines = []
    if cfg.get("fb", 1) and INK:
        import gen_c32
        keep = E.out; E.out = []
        E.label("L_fallback")
        R("s_waitcnt vmcnt(0) lgkmcnt(0)"); R("s_nop 15"); R("s_barrier")
        R(f"v_accvgpr_write_b32 a250, v{vFO}"); R(f"v_accvgpr_write_b32 a251, v{vFV}")
        R(f"v_lshrrev_b32 v0, 4, v{vST}"); R(f"s_lshl_b32 s40, s{sW}, 6"); R("v_add_u32 v0, s40, v0")
        E.out += gen_c32.build({"sB": sBB, "sH": sH, "kearly": 0})
        E.label("L_ftail")
        R("s_waitcnt vmcnt(0) lgkmcnt(0)"); R("s_nop 15"); R("s_barrier")
        R(f"v_lshlrev_b32 v{vST}, 4, v1")
        R(f"v_accvgpr_read_b32 v{vFO}, a250"); R(f"v_accvgpr_read_b32 v{vFV}, a251")
        R(f"v_and_b32 v{vFA}, 0xf0, v{vST}"); R(f"v_lshlrev_b32 v{vFA}, 3, v{vFA}")
        reduce_setup()
        E.vmq = []; E.vm_known = 1 << 30; E.vm_len = 0; E.dsq = []
        publish(7); nchk[0] = npoll[0]; poll(); check(7, 7)
        for p in range(7):
            for x in rloads(p): E.emit(x)
        for p in range(7): rsum(p)
        for q in range(4): rstore(q)
        R("s_waitcnt vmcnt(0)"); R("s_endpgm")
        fb_lines = E.out; E.out = keep
    for k, (need, mine) in enumerate(spins):
        E.label(f"L_spin{k}")
        R("s_mov_b32 s28, 0")
        E.label(f"L_spinl{k}")
        R(f"buffer_load_dword v{vFN}, v{vFA}, {srd(sSRD_FL)}, 0 offen sc1")
        R("s_waitcnt vmcnt(0)")
        check_cond(need)
        R(f"s_cbranch_scc1 L_spun{k}")
        R("s_add_u32 s28, s28, 1")
        R("s_and_b32 s29, s28, 7")
        R(f"s_cbranch_scc1 L_spinl{k}")
        publish(mine)
        R("s_cmp_lt_u32 s28, 400000")
        R(f"s_cbranch_scc1 L_spinl{k}")
        R(f"s_branch L_spun{k}")
    E.label("L_end")
    E.out += fb_lines
    if cfg.get("verbose"):
        print(" ".join(f"{u[0]}{uidx[u]}:{issued[u]/28:.1f}/{twait.get(u,0)/28:.1f}" for u in units if u in issued), file=sys.stderr)
    print(f"main: nops {E.nops}, over {over}, idle {idle}, instrs {E.pos}", file=sys.stderr)

    KD = """.p2align 6
.amdhsa_kernel %s
  .amdhsa_next_free_vgpr %d
  .amdhsa_next_free_sgpr %d
  .amdhsa_accum_offset %d
  .amdhsa_group_segment_fixed_size 0
  .amdhsa_kernarg_size 64
  .amdhsa_user_sgpr_count 2
  .amdhsa_user_sgpr_kernarg_segment_ptr 1
  .amdhsa_system_sgpr_workgroup_id_x 1
.end_amdhsa_kernel
"""
    if INK:
        E.out.append('.section .rodata,"a"\n' + KD % (KN, 512, 102, 256))
        return "\n".join(E.out)
    E.out.append(""".globl gqa_reduce_kernel
.p2align 8
.type gqa_reduce_kernel,@function
gqa_reduce_kernel:""")
    R("s_cmp_ge_u32 s2, 448")
    R("s_cbranch_scc1 LR_exit")
    R("s_load_dwordx2 s[4:5], s[0:1], 40")
    R("s_load_dwordx2 s[6:7], s[0:1], 56")
    R("v_lshrrev_b32 v2, 6, v0")
    R("v_and_b32 v1, 63, v0")
    R("v_readfirstlane_b32 s3, v2")
    R(f"s_mul_hi_u32 s8, s2, {(2**32 + 27)//28}")
    R("s_mul_i32 s9, s8, 28")
    R("s_sub_u32 s9, s2, s9")
    R(f"s_mul_hi_u32 s10, s9, {(2**32 + 6)//7}")
    R("s_mul_i32 s11, s10, 7")
    R("s_sub_u32 s11, s9, s11")
    R("v_lshlrev_b32 v5, 4, v1")
    R("v_and_b32 v3, 15, v1"); R("v_lshrrev_b32 v4, 4, v1")
    R("s_mov_b32 s24, 14336")
    R("s_cmp_eq_u32 s3, 3")
    R("s_cbranch_scc0 LR_a")
    R("v_lshlrev_b32 v3, 1, v1"); R("v_and_b32 v3, 15, v3"); R("v_lshrrev_b32 v4, 3, v1")
    R("s_mov_b32 s24, 896")
    R("v_mov_b32 v6, 0x40000000")
    R("v_cmp_lt_u32 vcc, 31, v1")
    R("s_nop 1")
    R("v_cndmask_b32 v5, v5, v6, vcc")
    R("v_cndmask_b32 v3, v3, v6, vcc")
    R("v_min_u32 v3, 0x10000, v3")
    E.label("LR_a")
    R("v_mul_u32_u24 v7, 896, v3")
    R("v_lshl_add_u32 v7, v4, 3, v7")
    R("s_mul_i32 s13, s8, 1605632")
    R("s_mul_i32 s14, s9, 3584")
    R("s_add_u32 s13, s13, s14")
    R("s_lshl_b32 s14, s3, 10")
    R("s_add_u32 s13, s13, s14")
    R("s_waitcnt lgkmcnt(0)")
    R("s_add_u32 s16, s6, s13"); R("s_addc_u32 s17, s7, 0"); R("s_mov_b32 s18, 1605632"); R("s_mov_b32 s19, 0x20000")
    for h in range(16):
        R(f"s_mov_b32 s15, {h*100352}")
        R(f"buffer_load_dwordx4 v[{8+4*h}:{11+4*h}], v5, s[16:19], s15 offen {cfg.get('rlfl','')}")
    R("s_mul_i32 s13, s8, 100352")
    R("s_add_u32 s20, s4, s13"); R("s_addc_u32 s21, s5, 0"); R("s_mov_b32 s22, 100352"); R("s_mov_b32 s23, 0x20000")
    R("s_mul_i32 s14, s3, 28672")
    R("s_lshl_b32 s15, s11, 7"); R("s_add_u32 s14, s14, s15")
    R("s_lshl_b32 s15, s10, 5"); R("s_add_u32 s14, s14, s15")
    R("s_add_u32 s24, s24, s14")
    for h in range(16):
        R(f"s_waitcnt vmcnt({15-h})")
        for r in range(4):
            src = 8 + 4 * h + r
            if h == 0:
                R(f"v_lshlrev_b32 v{72+2*r}, 16, v{src}"); R(f"v_and_b32 v{73+2*r}, 0xffff0000, v{src}")
            else:
                R(f"v_lshlrev_b32 v80, 16, v{src}"); R(f"v_and_b32 v81, 0xffff0000, v{src}")
                R(f"v_add_f32 v{72+2*r}, v{72+2*r}, v80"); R(f"v_add_f32 v{73+2*r}, v{73+2*r}, v81")
    for r in range(4): R(f"v_cvt_pk_bf16_f32 v{84+r}, v{72+2*r}, v{73+2*r}")
    R("buffer_store_dwordx2 v[84:85], v7, s[20:23], s14 offen")
    R("buffer_store_dwordx2 v[86:87], v7, s[20:23], s24 offen")
    if stamps:
        R("s_waitcnt vmcnt(0)")
        R("s_memrealtime s[24:25]")
        R("s_waitcnt lgkmcnt(0)")
        R("s_add_u32 s16, s6, 0x8100000"); R("s_addc_u32 s17, s7, 0"); R("s_mov_b32 s18, 0x100000"); R("s_mov_b32 s19, 0x20000")
        R("s_lshl_b32 s12, s2, 2"); R("v_mov_b32 v2, s12"); R("v_mov_b32 v3, s24")
        R("v_cmp_eq_u32 vcc, 0, v0")
        R("s_and_saveexec_b64 s[14:15], vcc")
        R("buffer_store_dword v3, v2, s[16:19], 0 offen")
    R("s_waitcnt vmcnt(0)")
    E.label("LR_exit")
    R("s_endpgm")
    E.out.append(""".section .rodata,"a"
.p2align 6
.amdhsa_kernel gqa_main_kernel
  .amdhsa_next_free_vgpr 512
  .amdhsa_next_free_sgpr 102
  .amdhsa_accum_offset 256
  .amdhsa_group_segment_fixed_size 0
  .amdhsa_kernarg_size 64
  .amdhsa_user_sgpr_count 2
  .amdhsa_user_sgpr_kernarg_segment_ptr 1
  .amdhsa_system_sgpr_workgroup_id_x 1
.end_amdhsa_kernel
.p2align 6
.amdhsa_kernel gqa_reduce_kernel
  .amdhsa_next_free_vgpr 88
  .amdhsa_next_free_sgpr 32
  .amdhsa_accum_offset 88
  .amdhsa_group_segment_fixed_size 0
  .amdhsa_kernarg_size 64
  .amdhsa_user_sgpr_count 2
  .amdhsa_user_sgpr_kernarg_segment_ptr 1
  .amdhsa_system_sgpr_workgroup_id_x 1
.end_amdhsa_kernel
""")
    return "\n".join(E.out)

if __name__ == "__main__":
    ap = argparse.ArgumentParser()
    ap.add_argument("-o", default="a16.s")
    ap.add_argument("kv", nargs="*")
    a = ap.parse_args()
    cfg = {}
    for kv in a.kv:
        k, v = kv.split("=", 1)
        try: cfg[k] = eval(v)
        except Exception: cfg[k] = v
    txt = build(cfg)
    open(a.o, "w").write(txt)
```

```python
import sys, math, struct, argparse

def f2u(x): return struct.unpack("<I", struct.pack("<f", x))[0]
def V(lo, n=1): return {("v", lo + i) for i in range(n)}
def Ac(lo, n=1): return {("a", lo + i) for i in range(n)}
def vr(lo, n): return f"v[{lo}:{lo+n-1}]" if n > 1 else f"v{lo}"
def ar(lo, n): return f"a[{lo}:{lo+n-1}]"
INF = 1 << 30

class Ins:
    def __init__(s, text, kind, rd=(), wr=(), cost=4, after=-1, before=INF, tag=None, rdc=(), pre=None, res=None, passes=4):
        s.text, s.kind, s.rd, s.wr, s.cost = text, kind, set(rd), set(wr), cost
        s.after, s.before, s.tag, s.rdc = after, before, tag, set(rdc)
        s.pre = pre
        s.res = res
        s.passes = passes

class Emitter:
    def __init__(s):
        s.out = []; s.pos = 0
        s.dsq = []
        s.vmq = []
        s.lastw = {}; s.lastc = {}; s.lastst = {}
        s.nops = 0; s.skip = None
    def raw(s, text, n=1):
        s.out.append("    " + text); s.pos += n
    def label(s, l): s.out.append(l + ":")
    def comment(s, c): s.out.append("    ; " + c)
    def need_nops(s, i):
        need = 0
        def req(p, d):
            nonlocal need
            need = max(need, d - (s.pos - p - 1))
        for r in i.rd | i.wr:
            if r in s.lastw:
                k, p = s.lastw[r]
                if k == "mfma":
                    if i.kind == "mfma":
                        if r in i.rd and r not in i.rdc: req(p, 8)
                    else: req(p, 8)
                if r in i.rd:
                    if k in ("valu", "trans") and i.kind == "mfma": req(p, 2)
                    if k == "trans" and i.kind in ("valu", "trans", "perm", "vmem", "ds"): req(p, 1)
                    if k in ("valu", "trans") and i.kind == "perm": req(p, 2)
                    if k == "salu" and r == ("s", "m0") and i.kind == "vmem": req(p, 1)
        if i.kind in ("valu", "trans", "perm"):
            for r in i.wr:
                if r in s.lastc: req(s.lastc[r], 3)
                if r in s.lastst: req(s.lastst[r], 2)
        if i.kind == "mfma":
            for r in i.wr:
                if r in s.lastst: req(s.lastst[r], 2)
        return need
    def ds_idx(s, i):
        idx = -1
        for k, (d, _) in enumerate(s.dsq):
            if d & (i.rd | i.wr): idx = k
        return idx
    def wait_ds_idx(s, idx):
        n = len(s.dsq) - idx - 1
        if n > 15:
            idx += n - 15; n = 15
        s.raw(f"s_waitcnt lgkmcnt({n})")
        s.dsq = s.dsq[idx + 1:]
    def wait_ds_res(s, pred):
        idx = -1
        for k, (_, r) in enumerate(s.dsq):
            if r is not None and pred(r): idx = k
        if idx >= 0: s.wait_ds_idx(idx)
    def emit(s, i):
        idx = s.ds_idx(i)
        if idx >= 0: s.wait_ds_idx(idx)
        if i.kind == "ds" and len(s.dsq) >= 13: s.wait_ds_idx(len(s.dsq) - 1 - 9)
        n = s.need_nops(i)
        if n > 0:
            s.nops += n
            while n > 0:
                k = min(n, 16); s.raw(f"s_nop {k-1}", k); n -= k
        if not (s.skip and s.skip(i)): s.out.append("    " + i.text)
        p = s.pos; s.pos += 1
        kind = "valu" if i.kind == "perm" else i.kind
        for r in i.wr: s.lastw[r] = (kind, p)
        if i.kind == "mfma":
            for r in i.rdc: s.lastc[r] = p
        if i.kind == "ds": s.dsq.append((set(i.wr), i.res))
        if i.kind == "vmem":
            s.vmq.append(i.tag)
            if "buffer_store" in i.text:
                for r in i.rd: s.lastst[r] = p
    def wait_vm(s, tags, cnt=4):
        idx = -1
        for k, t in enumerate(s.vmq):
            if t in tags: idx = k
        for t in tags:
            assert s.vmq.count(t) == cnt, f"unit {t} not fully issued before its wait ({s.vmq.count(t)})"
        n = min(63, len(s.vmq) - idx - 1)
        if n < getattr(s, "vm_known", 1 << 30) + (len(s.vmq) - getattr(s, "vm_len", 0)):
            s.raw(f"s_waitcnt vmcnt({n})")
            s.vm_known = n; s.vm_len = len(s.vmq)

RING = 24576; NU = 6; UNIT = 4096
EB = 4 * RING
LB = EB + 57344
vLANE = 53
dK = 1
dV = 5
dWO = 9
vST = 10
vST2 = 5
rK = 12
rV = 16
rWO = 20
rE = 22
wP = 23
wO = 24
vL = 25
SACC = [32, 60]; PR = [88, 116]; OACC = 144
dX = 116
dWQ = 120
rX = 124
rWQ = 126
wQ = 130
AQ = 0
AK = 224
sSRD_X, sSRD_WQ, sSRD_K, sSRD_V, sSRD_WO, sSRD_WS = 16, 20, 24, 28, 32, 36
sRB = 42; sOFF = 43; sC = 44; sXB = 45; sW = 3; sST = 47
sSTAMP = 68
sSRD_FL, sSRD_FM, sSRD_PB, sSRD_OUT = 8, 12, 60, 64
sH = 56; sRO = 57; sBB = 58
FLOFF = 0x2000000
sSTO = 48
sPFO = 55
sW2K = 59
sSQ = 47; sSX = 41
vPFK = 11; vPFV = 11
def srd(n): return f"s[{n}:{n+3}]"
assert vL + 7 <= 32

def build(cfg):
    BUD = cfg.get("budget", 8)
    stamps = cfg.get("stamps", [])
    ntKV = "nt" if cfg.get("ntkv", 1) else ""
    ntW = "nt" if cfg.get("ntw", 0) else ""
    ntX = "nt" if cfg.get("ntx", 0) else ""
    stfl = cfg.get("stfl", "sc1")
    DMIN = cfg.get("dmin", 8)
    E = Emitter(); R = E.raw
    def s_sw(): R(f"s_and_b32 s40, s{sH}, 3" if cfg.get("swl", 1) else f"s_lshr_b32 s40, s{sH}, 2")
    def s_qd(): R(f"s_lshr_b32 s40, s{sH}, 2" if cfg.get("swl", 1) else f"s_and_b32 s40, s{sH}, 3")
    BL = 56
    Q0, S0, P0, O0, END = 0, 7 * BL, 15 * BL, 23 * BL, 30 * BL

    units = [("WQ", t) for t in range(14)] + [("K", i, h) for i in range(8) for h in range(2)] \
          + [("V", k) for k in range(16)] + [("WO", p, kh) for p in range(7) for kh in range(2)]
    uidx = {u: k for k, u in enumerate(units)}
    ESLOT = {8: 0, 9: 1, 10: 2, 11: 3}
    def uoff(u):
        if u[0] == "WO" and 2 * u[1] + u[2] >= 12: return ((uidx[u] - 10) % NU) * UNIT
        return (uidx[u] % NU) * UNIT
    rWOE = rK

    M = []
    def qa(j, ks, mt): return 32 * (j & 1) + 16 * ks + 4 * mt
    def qb(j, ks, nu): return 64 + 56 * (j & 1) + 28 * ks + 4 * nu
    def oacc(mt, nu): return OACC + 4 * (4 * nu + mt)
    first_use = {}; last_use = {}
    def use(name, i):
        first_use.setdefault(name, i); last_use[name] = i
    done_at = {}
    MQ = cfg.get("mq", 1)
    def qaq(j, ks, mt): return 176 + 16 * ks + 4 * mt if (MQ and j == 6) else qa(j, ks, mt)
    for js in ([[0], [1], [2], [3], [4], [5, 6]] if MQ else [[j] for j in range(7)]):
        for nu in range(7):
            for mt in range(4):
                for j in js:
                    for ks in range(2):
                        i = len(M)
                        M.append((oacc(mt, nu), qaq(j, ks, mt), qb(j, ks, nu), j == 0 and ks == 0))
                        use(("QA", j, ks, mt), i); use(("QB", j, ks, nu), i); done_at[("Q", mt, nu)] = i
    STGX = cfg.get("stgx", 0)
    def slotmap(lo, hi):
        busy = {k: -1 for k in range(56)}
        for i in range(lo, hi):
            for r in (M[i][1], M[i][2]):
                if not isinstance(r, tuple) and r < 224: busy[r // 4] = i
        order_ = sorted(range(56), key=lambda k: (busy[k], k))
        return {(kap, nu): AQ + 4 * order_[nu * 8 + kap] for nu in range(7) for kap in range(8)}, busy
    if STGX: QS, QBUSY = slotmap(0, len(M))
    else: QS, QBUSY = {(kap, nu): AQ + 4 * (kap * 7 + nu) for nu in range(7) for kap in range(8)}, None
    def ka(step, k):
        if STGX and step == 2: return ("v", OACC + 4 * k)
        return AK + 16 * (step & 1) + 4 * k
    SX = OACC + 112 - 28
    sbuf = [SACC[0], SACC[1], SX, SACC[0], SACC[1], SX, SACC[0], SACC[1]] if cfg.get("s3", 1) else [SACC[b & 1] for b in range(8)]
    for b in range(8):
        seq = [(h, nu, k) for h in range(2) for nu in range(7) for k in range(4)]
        if STGX and b == 0: seq = [(h, nu, k) for nu in range(7) for h in range(2) for k in range(4)]
        for h, nu, k in seq:
            i = len(M)
            M.append((sbuf[b] + 4 * nu, ka(2 * b + h, k), QS[(4 * h + k, nu)], h == 0 and k == 0))
            use(("SA", b, h, k), i); use(("SB", 4 * h + k, nu), i); done_at[("S", b, nu)] = i
            use(("Sacc", b, nu), i)
    qdie = sorted(range(56), key=lambda k: max(last_use[("SB",) + kn] for kn, r in QS.items() if r == AQ + 4 * k))
    def va(j, ks, mt): return AQ + 4 * qdie[(22 * (j & 1)) + 4 * ks + mt] if STGX else qa(j, ks, mt)
    def vb(j, ks, nu): return AQ + 4 * qdie[(22 * (j & 1)) + 8 + 2 * nu + ks] if STGX else qb(j, ks, nu)
    for j in range(8):
        for nu in range(7):
            for mt in range(4):
                for ks in range(2):
                    i = len(M)
                    M.append((oacc(mt, nu), va(j, ks, mt), vb(j, ks, nu), j == 0 and ks == 0))
                    use(("VA", j, ks, mt), i); use(("VB", j, ks, nu), i); done_at[("O", mt, nu)] = i
    if STGX: OS, OBUSY = slotmap(P0, len(M))
    else: OS, OBUSY = QS, None
    def oa(p, kap): return ("a", AK + 4 * kap) if p % 2 == 0 else ("v", PR[0] + 4 * kap)
    for p in range(7):
        for nu in range(7):
            for kap in range(8):
                i = len(M)
                M.append((SACC[p & 1] + 4 * nu, oa(p, kap), OS[(kap, nu)], kap == 0))
                use(("OA", p, kap >> 2, kap & 3), i); use(("OB", kap, nu), i); done_at[("Y", p, nu)] = i
                use(("Yacc", p, nu), i)
    assert len(M) == END
    def mfma(i):
        acc, a, b, cz = M[i]
        Cs = set() if cz else V(acc, 4)
        if not isinstance(a, tuple): a = ("a", a)
        at, as_ = (ar(a[1], 4), Ac(a[1], 4)) if a[0] == "a" else (vr(a[1], 4), V(a[1], 4))
        return Ins(f"v_mfma_f32_16x16x32_bf16 {vr(acc,4)}, {at}, {ar(b,4)}, {'0' if cz else vr(acc,4)}", "mfma",
                   rd=as_ | Ac(b, 4) | Cs, wr=V(acc, 4), rdc=Cs, cost=8)

    ev_done = set()
    events = {}
    def add_event(idx, name, fn): events.setdefault(idx, []).append((name, fn))
    def after_ev(*names): return lambda: all(n in ev_done for n in names)

    M0 = {("s", "m0")}
    reads_left = {}
    last_read = {}; now = [0]
    def res_idle(res):
        return reads_left.get(res, 0) == 0 and not any(r == res for _, r in E.dsq)

    def dma_unit(u, pre=None):
        L = []
        k = u[0]
        if k == "X":
            L.append(Ins(f"s_add_u32 m0, s{sXB}, {(u[1] % 4) * 16384}", "salu", wr=M0, pre=pre))
        elif k == "WO" and 2 * u[1] + u[2] in ESLOT:
            L.append(Ins(f"s_add_u32 m0, s{sXB}, {ESLOT[2 * u[1] + u[2]] * 16384}", "salu", wr=M0, pre=pre))
        else:
            L.append(Ins(f"s_add_u32 m0, s{sRB}, {uoff(u)}", "salu", wr=M0, pre=pre))
        def smov(val): L.append(Ins(f"s_mov_b32 s{sOFF}, {val}", "salu"))
        def sxor(val):
            smov(val)
        def ld(vreg, sr, j, fl):
            L.append(Ins(f"buffer_load_dwordx4 v{vreg}, {srd(sr)}, s{sOFF} offen offset:{j*1024} {fl} lds".replace("  ", " "),
                         "vmem", rd=M0 | V(vreg), tag=u, cost=8))
        if k == "X":
            if cfg.get("rot"): L.append(Ins(f"s_mov_b32 s{sOFF}, s{sSTO+u[1]}", "salu"))
            else: smov(128 * u[1])
            for j in range(4): ld(dX + j, sSRD_X, j, ntX)
        elif k == "WQ":
            if cfg.get("rot"):
                L.append(Ins(f"s_lshl_b32 s{sOFF}, s{sSTO+(u[1]>>1)}, 12", "salu"))
                if u[1] & 1: L.append(Ins(f"s_bitset1_b32 s{sOFF}, 18", "salu"))
            else: smov(u[1] * 32 * 8192)
            for j in range(4): ld(dWQ + j, sSRD_WQ, j, ntW)
        elif k == "K":
            sxor((u[1] >> 1) * 65536 + (u[1] & 1) * 8192 + u[2] * 256)
            for j in range(4): ld(dK + j, sSRD_K, j, ntKV)
        elif k == "V":
            sxor(u[1] * 16384)
            for j in range(4): ld(dV + j, sSRD_V, j, ntKV)
        elif k == "WO":
            for j in range(4):
                smov(u[2] * 128 * 896 + u[1] * 128 + j * (8 * 896 - 1024)); ld(dWO, sSRD_WO, j, "nt" if cfg.get("nto") else "")
        return L

    def rd(kind, dst, n, areg, off, res, after, before, pre=None):
        assert 0 <= off < 65536
        reads_left[res] = reads_left.get(res, 0) + 1
        if not isinstance(dst, tuple): dst = ("a", dst)
        dt, ds_ = (ar(dst[1], n), Ac(dst[1], n)) if dst[0] == "a" else (vr(dst[1], n), V(dst[1], n))
        return Ins(f"{kind} {dt}, v{areg} offset:{off}", "ds", rd=V(areg), wr=ds_, res=res,
                   after=after, before=max(before, after + 1), pre=pre, tag="read")

    RA = []; RB = []
    MID = cfg.get("mid", 40)
    A1, A2 = cfg.get("a1", 6), cfg.get("a2", 30)
    twait = {}
    def vmwait(tags): return (lambda: None) if cfg.get("novmw") else (lambda: E.wait_vm(tags))
    def bar(tags=(), wres=None, idle=()):
        def f():
            for r in idle: assert reads_left.get(r, 0) == 0, f"barrier releases {r} with reads pending"
            if wres is not None:
                assert not any(x.kind == "ds" and x.res is not None and wres(x.res) for x in VS), "publishing barrier before all writes were emitted"
            E.wait_ds_res(lambda r: r in idle or (wres is not None and wres(r)))
            if tags: E.wait_vm(list(tags))
            if not cfg.get("nobar"): R("s_barrier")
        return f
    def areads(base, j, kind, fu, areg, estride, busy=None, qa=qa):
        for ks in range(2):
            u = (kind, 2 * j + ks)
            at = base + (j - 1) * BL + ((A1, A2)[ks] if base == 0 else (cfg.get("v1", 6), cfg.get("v2", 30))[ks])
            if base == 0 and j == 0: at = -1
            if base == 0 and MQ and j == 5: at = 4 * BL + (0, 10)[ks]
            if base == 0 and MQ and j == 6: at = 4 * BL + (22, 34)[ks]
            name = ("Wa", u)
            add_event(at, name, vmwait([u])); twait[u] = at
            for mt in range(4):
                a0 = at if busy is None else max(at, busy(qa(j, ks, mt)))
                for e in range(2):
                    ar_, ex_ = (areg + (mt >> 1), 8 * (mt & 1)) if (kind == "WQ" and cfg.get("q128")) else (areg + mt, 0)
                    RA.append(rd("ds_read_b64_tr_b16", qa(j, ks, mt) + 2 * e, 2, ar_, uoff(u) + e * estride + ex_, u, a0,
                                 first_use[(fu, j, ks, mt)] - DMIN, after_ev(name)))
    XE = (5 * BL + cfg.get("xem", 18)) if MQ else (6 * BL + cfg.get("xe", 12))
    for j in range(7):
        at = (j - 1) * BL + MID if j > 0 else -1
        if MQ and j == 5: at = 4 * BL + 6
        if MQ and j == 6: at = 4 * BL + 44
        name = ("Bx", j)
        add_event(at, name, bar(tags=[("X", j)], idle=[("X", j - 1)] if 0 < j < 4 else []))
        areads(0, j, "WQ", "QA", rWQ, 512, qa=qaq)
        for nu in range(7):
            for ks in range(2):
                a0 = at
                if j >= 2: a0 = max(at, last_use[("QB", j - 2, ks, nu)])
                RB.append(rd("ds_read_b128", qb(j, ks, nu), 4, rX + ks, (j % 4) * 16384 + nu * 2048, ("X", j), a0,
                             min(first_use[("QB", j, ks, nu)] - DMIN, j * BL + MID - 6, XE - 4), after_ev(name)))
    add_event(XE, "Bxe", bar(idle=[("X", 3), ("X", 4), ("X", 5), ("X", 6)]))
    for st in range(16):
        b, h = st >> 1, st & 1
        at = S0 + (st - 1) * 28 + cfg.get("kat", 10)
        if STGX and st == 0: at = S0 - 40
        if STGX and st == 1: at = S0 - 20
        name = ("Wk", st)
        add_event(at, name, vmwait([("K", b, h)])); twait[("K", b, h)] = at
        RA += [rd("ds_read_b128", ka(st, k), 4, rK + k, uoff(("K", b, h)), ("K", b, h), at,
                  first_use[("SA", b, h, k)] - DMIN, after_ev(name)) for k in range(4)]
    QST = cfg.get("qst", [(-24, 3), (0, 5), (22, 7)]) if STGX else [(-1, 7)]
    qdead = {}
    lo_ = 0
    for n_, (pos, hi_) in enumerate(QST):
        add_event(S0 + pos, ("Bq", n_), bar(wres=(lambda h_: (lambda r: r[0] == "qw" and r[1] < h_))(hi_)))
        for nu in range(lo_, hi_): qdead[nu] = (S0 + pos, n_)
        lo_ = hi_
    for kap, nu in sorted(QS, key=lambda kn: first_use[("SB",) + kn]):
        a0 = qdead[nu][0]
        if STGX: a0 = max(a0, QBUSY[(QS[(kap, nu)] - AQ) // 4])
        RB.append(rd("ds_read_b128", QS[(kap, nu)], 4, rE, (kap * 7 + nu) * 1024, ("q",), a0,
                     first_use[("SB", kap, nu)] - DMIN, after_ev(("Bq", qdead[nu][1]))))
    add_event(S0 + BL + 4, "Bqe", bar(idle=[("q",)]))
    def qbusy(reg): return max(last_use[("SB",) + kn] for kn, r in QS.items() if r == reg)
    for j in range(8):
        at = P0 + (j - 1) * BL + MID
        c = j >> 1
        name = ("Bp", j & ~1)
        if j == 0: add_event(at, name, bar(wres=lambda r: r in (("pw", 0), ("pw", 1))))
        elif j == 2: add_event(at, name, bar(idle=[("P", 0)]))
        elif j == 4: add_event(at, name, bar(idle=[("P", 1)], wres=lambda r: r == ("pw", 2)))
        elif j == 6: add_event(at, name, bar(idle=[("P", 2)], wres=lambda r: r in (("pw", 3), ("lw",))))
        areads(P0, j, "V", "VA", rV, 2048, qbusy if j < 2 else None, qa=va)
        if j & 1: at = P0 + (j - 1) * BL + cfg.get("mid2", 30)
        for nu in range(7):
            for ks in range(2):
                a0 = max(at, qbusy(vb(j, ks, nu))) if j < 2 else at
                wprod = 2 * (j & 1) + ks
                RB.append(rd("ds_read_b128", vb(j, ks, nu), 4, rE, (c & 1) * 28672 + (wprod * 7 + nu) * 1024, ("P", c), a0,
                             min(first_use[("VB", j, ks, nu)] - DMIN, P0 + j * BL + (MID - 6 if j < 7 else cfg.get("xe", 12) - 4)), after_ev(name)))
    add_event(P0 + 7 * BL + cfg.get("xe", 12), "Bpe", bar(idle=[("P", 3)]))
    OST = cfg.get("ost", [(-18, 3), (0, 5), (20, 7)]) if STGX else [(-1, 7)]
    wo = lambda p: [("WO", p, 0), ("WO", p, 1)]
    odead = {}; lo_ = 0
    nb = len(OST)
    for n_, (pos, hi_) in enumerate(OST):
        tags = []; idle = []
        if STGX:
            if n_ == 0: tags = wo(0)
            if n_ == 1: idle = wo(0)
            if n_ == 2: tags = wo(1)
        else: idle = wo(0)
        add_event(O0 + pos, ("Box", n_), bar(wres=(lambda h_: (lambda r: r[0] == "ow" and r[1] < h_))(hi_), tags=tags, idle=idle))
        for nu in range(lo_, hi_): odead[nu] = (O0 + pos, n_)
        lo_ = hi_
    REL0 = ("Box", 1 if STGX else 0)
    for p in range(7):
        at = O0 + (p - 1) * BL + cfg.get("oat", 24)
        name = ("Bo", p)
        if STGX and p == 0: name, at = ("Box", 0), O0 + OST[0][0]
        elif STGX and p == 1: name, at = ("Box", 2), O0 + OST[2][0]
        elif p == 0:
            at = O0 - BL + cfg.get("oat0", 38); add_event(at, name, bar(tags=wo(p)))
        elif p == 1:
            at = O0 + cfg.get("oat1", 20); add_event(at, name, bar(tags=wo(p)))
        elif p == 2:
            at = O0 + BL - 2
            add_event(at, name, bar(tags=wo(p), idle=[("o",)] + wo(1)))
        else: add_event(at, name, bar(tags=wo(p)))
        twait[("WO", p, 0)] = twait[("WO", p, 1)] = at
        if p == 2: at = O0 + BL + 8
        for h in range(2):
            st = 2 * p + h
            for k in range(4):
                for e in range(2):
                    if st in ESLOT: areg, off = rWOE, ESLOT[st] * 16384 + k * 4096 + e * 2048
                    else: areg, off = rWO + (k >> 1), (k & 1) * RING + uoff(("WO", p, h)) + e * 2048
                    d = oa(p, 4 * h + k)
                    bef = first_use[("OA", p, h, k)] - DMIN
                    if p == 0: bef = min(bef, O0 - 5)
                    if p == 1: bef = min(bef, at + ((O0 + 48 - at) * (8 * h + 2 * k + e)) // 16 + 2)
                    RA.append(rd("ds_read_b64_tr_b16", (d[0], d[1] + 2 * e), 2, areg, off, ("WO", p, h), at, bef, after_ev(name)))
    for nu in range(7):
        for kap in range(8):
            a0 = odead[nu][0]
            if STGX: a0 = max(a0, OBUSY[(OS[(kap, nu)] - AQ) // 4])
            RB.append(rd("ds_read_b128", OS[(kap, nu)], 4, rE, (kap * 7 + nu) * 1024, ("o",), a0,
                         first_use[("OB", kap, nu)] - DMIN, after_ev(("Box", odead[nu][1]))))

    DQ = []
    order = []
    xs = [("X", j) for j in range(7)]
    order = [xs[0], units[0], units[1], xs[1], units[2], units[3], xs[2], units[4], units[5], xs[3]]
    k = 6
    for j in range(4, 7):
        order += [units[k], units[k + 1], xs[j]]; k += 2
    order += units[k:]
    if cfg.get("xlast"):
        order = [xs[0], units[0], units[1]]
        for j in range(1, 7): order += [units[2 * j], units[2 * j + 1], xs[j]]
        order += units[14:]
    for u in order:
        if u[0] == "X":
            pre = after_ev(("Bx", u[1] - 3)) if u[1] >= 4 else None
        else:
            k = uidx[u]
            if k < NU: pre = None
            elif units[k - NU][0] == "WO":
                st = 2 * u[1] + u[2]
                pre = after_ev(REL0) if st < 8 else after_ev(("Bo", 2))
            else:
                pre = (lambda r: (lambda: reads_left[r] == 0 and now[0] - last_read[r] >= cfg.get("rel", 7)))(units[k - NU])
        L = dma_unit(u, pre)
        if cfg.get("look") and u[0] in cfg.get("lookk", ("K", "V")):
            k = uidx[u]
            n_ = k - 14
            if n_ >= cfg.get("nfree", 7):
                L[0].after = min(int(S0 + cfg.get("poff", 10) + (n_ - cfg.get("nfree", 7)) * cfg.get("pace", 35)), twait[units[k - cfg["look"]]])
        if u[0] != "X" and uidx[u] >= NU and units[uidx[u] - NU][0] != "WO": L[0].res = units[uidx[u] - NU]
        if cfg.get("rate") and u[0] in ("K", "V", "WO") and uidx[u] < 46 + cfg.get("nwo", 6):
            m_ = 4 * (uidx[u] - 14)
            lds_ = [x for x in L if x.kind == "vmem"]
            for j_, x in enumerate(lds_):
                mm = m_ + j_
                t_ = cfg.get("g0", 8.5) * 28 + min(mm, 128) * cfg["rate"] + max(0, mm - 128) * cfg.get("rate2", cfg["rate"])
                if t_ > S0: t_ -= cfg.get("tgap", 0)
                x.after = int(t_)
            L[0].after = lds_[0].after - 4
        if u[0] == "V" and u[1] in cfg.get("dummy", []):
            t_ = cfg["dummy"].index(u[1]) + 6
            ex = []
            va_ = [x for x in L if x.kind == "vmem"][0].after
            for j in range(4):
                ex.append(Ins(f"s_mov_b32 s{sOFF}, {(t_ & 1) * 128 * 896 + (t_ >> 1) * 128 + j * (8 * 896 - 1024)}", "salu"))
                ex.append(Ins(f"buffer_load_dwordx4 v{dWO}, {srd(sSRD_WO)}, s{sOFF} offen offset:{j*1024} lds", "vmem", rd=M0 | V(dWO), tag=("dm",), cost=8, after=va_ - 6))
            L[0].after -= 6
            L[1:1] = ex
        if u[0] == "WO" and 2 * u[1] + u[2] < len(cfg.get("woat", [])): L[0].after = O0 + cfg["woat"][2 * u[1] + u[2]]
        if cfg.get("wopfq") is not None and u[0] != "X" and uidx[u] == 46 + cfg["wopfq"]:
            L.insert(0, Ins(f"buffer_load_dword v{vPFV}, v{vPFV}, {srd(sSRD_WO)}, 0 offen", "vmem", rd=V(vPFV), tag=("pf",), cost=8, after=O0 + cfg.get("pfat", -10000)))
        DQ.append((u, L))

    def valu(text, rd_, wr_, after, before=INF, kind="valu", cost=4, pre=None):
        return Ins(text, kind, rd=rd_, wr=wr_, after=after, before=before, cost=cost, pre=pre)
    VS = []
    for nu in range(7 if cfg.get("q128") else 0):
        dl = qdead[nu][0] + 1 - (cfg.get("wlead", 3) if STGX else 0)
        for al in range(2):
            r = oacc(2 * al, nu)
            for x in range(8): VS.append(valu(f"v_mul_f32 v{r+x}, s{sC}, v{r+x}", V(r + x), V(r + x), done_at[("Q", 2 * al + (x >> 2), nu)], dl))
            aft = done_at[("Q", 2 * al + 1, nu)]
            for x in range(4):
                VS.append(valu(f"v_cvt_pk_bf16_f32 v{r+x}, v{r+2*x}, v{r+2*x+1}", V(r + 2 * x, 2), V(r + x), aft, dl))
            VS.append(Ins(f"ds_write_b128 v{wO}, {vr(r,4)} offset:{(al*7+nu)*1024}", "ds", rd=V(wO) | V(r, 4), res=("qw", nu),
                          after=aft, before=dl, pre=after_ev("Bxe"), cost=20))
    for nu in range(0 if cfg.get("q128") else 7):
        wr = []
        for mt in range(4):
            aft = done_at[("Q", mt, nu)]
            r = oacc(mt, nu)
            for x in range(4): VS.append(valu(f"v_mul_f32 v{r+x}, s{sC}, v{r+x}", V(r + x), V(r + x), aft, qdead[nu][0] + 1 - (cfg.get("wlead", 3) if STGX else 0)))
            VS += wr
            VS.append(valu(f"v_cvt_pk_bf16_f32 v{r}, v{r}, v{r+1}", V(r, 2), V(r), aft, qdead[nu][0] + 1 - (cfg.get("wlead", 3) if STGX else 0)))
            VS.append(valu(f"v_cvt_pk_bf16_f32 v{r+1}, v{r+2}, v{r+3}", V(r + 2, 2), V(r + 1), aft, qdead[nu][0] + 1 - (cfg.get("wlead", 3) if STGX else 0)))
            off = ((mt >> 1) * 7 + nu) * 1024 + (mt & 1) * 512
            wr = [Ins(f"ds_write_b64 v{wQ}, {vr(r,2)} offset:{off}", "ds", rd=V(wQ) | V(r, 2), res=("qw", nu),
                      after=aft, before=qdead[nu][0] + 1 - (cfg.get("wlead", 3) if STGX else 0), pre=after_ev("Bxe"), cost=12)]
        VS += wr
    def pw(c, nu, hf, aft, bef, evn):
        r = PR[c & 1] + 4 * nu + 2 * hf
        return Ins(f"ds_write_b64 v{wP}, {vr(r,2)} offset:{(c&1)*28672+nu*1024+8*hf}", "ds", rd=V(wP) | V(r, 2), res=("pw", c),
                   after=aft, before=bef, pre=after_ev(evn), cost=12)
    pend = []
    WS = []
    pvfirst = {}
    for i in range(P0, P0 + BL): pvfirst.setdefault(M[i][0], i)
    for b in range(8):
        c, hf = b >> 1, b & 1
        for nu in range(7):
            acc = sbuf[b] + 4 * nu
            aft = done_at[("S", b, nu)]
            nxt = [bb for bb in range(b + 1, 8) if sbuf[bb] == sbuf[b]]
            pdead = (P0 - BL + MID, P0 - BL + MID, P0 + 3 * BL + MID, P0 + 5 * BL + MID)[c]
            if nxt: bef = first_use[("Sacc", nxt[0], nu)]
            elif acc in pvfirst: bef = pvfirst[acc]
            else: bef = INF
            bef = min(bef, pdead - 2)
            pr = PR[c & 1] + 4 * nu + 2 * hf
            ex = [valu(f"v_exp_f32 v{acc+x}, v{acc+x}", V(acc + x), V(acc + x), aft, bef, kind="trans", cost=8) for x in range(4)]
            if b == 0:
                ad = [valu(f"v_add_f32 v{vL+nu}, v{acc}, v{acc+1}", V(acc, 2), V(vL + nu), aft, bef)]
                ad += [valu(f"v_add_f32 v{vL+nu}, v{vL+nu}, v{acc+x}", V(vL + nu) | V(acc + x), V(vL + nu), aft, bef) for x in (2, 3)]
                ad = [None] + ad
            else:
                ad = [valu(f"v_add_f32 v{vL+nu}, v{vL+nu}, v{acc+x}", V(vL + nu) | V(acc + x), V(vL + nu), aft, bef) for x in range(4)]
            cv = [valu(f"v_cvt_pk_bf16_f32 v{pr}, v{acc}, v{acc+1}", V(acc, 2), V(pr), aft, bef),
                  valu(f"v_cvt_pk_bf16_f32 v{pr+1}, v{acc+2}, v{acc+3}", V(acc + 2, 2), V(pr + 1), aft, bef)]
            tail = [ad[0], cv[0], ad[1], cv[1], ad[2], ad[3]]
            tail = [x for x in tail if x is not None]
            if cfg.get("pw128"):
                if hf == 1:
                    r = PR[c & 1] + 4 * nu
                    tail.append(Ins(f"ds_write_b128 v{wP}, {vr(r,4)} offset:{(c&1)*28672+nu*1024}", "ds", rd=V(wP) | V(r, 4), res=("pw", c),
                                    after=aft, before=pdead, pre=after_ev(("Bqe", "Bqe", ("Bp", 2), ("Bp", 4))[c]), cost=20))
            else:
                tail.append(pw(c, nu, hf, aft, pdead, ("Bqe", "Bqe", ("Bp", 2), ("Bp", 4))[c]))
            seq = []
            for x in range(4):
                seq.append(ex[x])
                seq += pend[:2]; pend = pend[2:]
            seq += pend
            pend = tail
            VS += seq
    VS += pend
    lbef = P0 + 5 * BL + MID
    T0 = SACC[0]
    aft = done_at[("S", 7, 6)]
    for nu in range(7): VS.append(valu(f"v_mov_b32 v{T0+nu}, v{vL+nu}", V(vL + nu), V(T0 + nu), aft, lbef))
    for nu in range(7): VS.append(valu(f"v_permlane32_swap_b32 v{vL+nu}, v{T0+nu}", V(vL + nu) | V(T0 + nu), V(vL + nu) | V(T0 + nu), aft, lbef, kind="perm", cost=8))
    for nu in range(7): VS.append(valu(f"v_add_f32 v{vL+nu}, v{vL+nu}, v{T0+nu}", V(vL + nu) | V(T0 + nu), V(vL + nu), aft, lbef))
    for nu in range(7): VS.append(valu(f"v_mov_b32 v{T0+nu}, v{vL+nu}", V(vL + nu), V(T0 + nu), aft, lbef))
    for nu in range(7): VS.append(valu(f"v_permlane16_swap_b32 v{vL+nu}, v{T0+nu}", V(vL + nu) | V(T0 + nu), V(vL + nu) | V(T0 + nu), aft, lbef, kind="perm", cost=8))
    for nu in range(7): VS.append(valu(f"v_add_f32 v{T0+8+nu}, v{vL+nu}, v{T0+nu}", V(vL + nu) | V(T0 + nu), V(T0 + 8 + nu), aft, lbef))
    VS.append(valu(f"v_add_u32 v{T0+7}, s{sXB}, v{vST}", V(vST), V(T0+7), aft, lbef))
    VS.append(valu(f"v_subrev_u32 v{T0+7}, s{sW2K}, v{T0+7}", V(T0+7), V(T0+7), aft, lbef))
    for hh in range(2):
        VS.append(Ins(f"ds_write_b128 v{T0+7}, {vr(T0+8+4*hh,4)} offset:{57344+hh*1024}", "ds", rd=V(T0+7) | V(T0 + 8 + 4 * hh, 4),
                      res=("lw",), after=aft, before=lbef, cost=20))
    rb = P0 + 7 * BL
    for w in range(4):
        for hh in range(2):
            d = T0 + 8 * w + 4 * hh
            VS.append(Ins(f"ds_read_b128 {vr(d,4)}, v{rE} offset:{57344+w*2048+hh*1024}", "ds", rd=V(rE), wr=V(d, 4), res=("lr",),
                          after=0, before=rb, pre=after_ev(("Bp", 6))))
    la = P0 + 6 * BL + 20
    for nu in range(7): VS.append(valu(f"v_add_f32 v{T0+nu}, v{T0+nu}, v{T0+8+nu}", V(T0 + nu) | V(T0 + 8 + nu), V(T0 + nu), la, O0))
    for nu in range(7): VS.append(valu(f"v_add_f32 v{T0+16+nu}, v{T0+16+nu}, v{T0+24+nu}", V(T0 + 16 + nu) | V(T0 + 24 + nu), V(T0 + 16 + nu), la, O0))
    for nu in range(7): VS.append(valu(f"v_add_f32 v{T0+nu}, v{T0+nu}, v{T0+16+nu}", V(T0 + nu) | V(T0 + 16 + nu), V(T0 + nu), la, O0))
    if cfg.get("fb", 1):
        a_, b_ = T0 + 8, T0 + 9
        VCC = {("s", "vcc")}
        VS.append(valu(f"v_max3_f32 v{a_}, v{T0}, v{T0+1}, v{T0+2}", V(T0, 3), V(a_), la, O0))
        VS.append(valu(f"v_min3_f32 v{b_}, v{T0}, v{T0+1}, v{T0+2}", V(T0, 3), V(b_), la, O0))
        for r in (3, 5):
            VS.append(valu(f"v_max3_f32 v{a_}, v{a_}, v{T0+r}, v{T0+r+1}", V(a_) | V(T0 + r, 2), V(a_), la, O0))
            VS.append(valu(f"v_min3_f32 v{b_}, v{b_}, v{T0+r}, v{T0+r+1}", V(b_) | V(T0 + r, 2), V(b_), la, O0))
        hi_, lo_ = f2u(2.0 ** cfg.get("lim", 40)), f2u(2.0 ** -cfg.get("lim", 40))
        VS.append(valu(f"v_cmp_nge_f32 vcc, {hi_:#x}, v{a_}\n    s_cbranch_vccnz L_fallback", V(a_), VCC, la, O0, cost=8))
        VS.append(valu(f"v_cmp_nle_f32 vcc, {lo_:#x}, v{b_}\n    s_cbranch_vccnz L_fallback", V(b_), VCC, la, O0, cost=8))
    for nu in range(7): VS.append(valu(f"v_rcp_f32 v{vL+nu}, v{T0+nu}", V(T0 + nu), V(vL + nu), la, O0, kind="trans", cost=8))
    VS.append(valu(f"v_add_u32 v{rWOE}, {EB}, v{rWO}", V(rWO), V(rWOE), P0 + 6 * BL, O0))
    VS.append(valu(f"v_lshrrev_b32 v{vST2}, 1, v{vST}", V(vST), V(vST2), P0 + 6 * BL, O0))
    for p in range(7): VS.append(Ins(f"s_mov_b32 s{sSTO+p}, {p*3584}", "salu", after=P0 + 5 * BL, before=O0))
    for nu in range(7):
        for al in range(2):
            aft = done_at[("O", 2 * al + 1, nu)]
            r = oacc(2 * al, nu)
            for x in range(4):
                VS.append(valu(f"v_cvt_pk_bf16_f32 v{r+x}, v{r+2*x}, v{r+2*x+1}", V(r + 2 * x, 2), V(r + x), aft, odead[nu][0] + 1 - (cfg.get("wlead", 3) if STGX else 0)))
            VS.append(Ins(f"ds_write_b128 v{wO}, {vr(r,4)} offset:{(al*7+nu)*1024}", "ds", rd=V(wO) | V(r, 4), res=("ow", nu),
                          after=aft, before=odead[nu][0] + 1 - (cfg.get("wlead", 3) if STGX else 0), pre=after_ev("Bpe"), cost=20))
    SQ = []
    for p in range(7):
        stg = OACC + 16 * p
        for nu in range(7):
            acc = SACC[p & 1] + 4 * nu
            aft = done_at[("Y", p, nu)]
            bef = first_use[("Yacc", p + 2, nu)] if p < 5 else INF
            for x in range(4): VS.append(valu(f"v_mul_f32 v{acc+x}, v{vL+nu}, v{acc+x}", V(acc + x) | V(vL + nu), V(acc + x), aft, bef))
            d = stg + 2 * nu
            VS.append(valu(f"v_cvt_pk_bf16_f32 v{d}, v{acc}, v{acc+1}", V(acc, 2), V(d), aft, bef))
            VS.append(valu(f"v_cvt_pk_bf16_f32 v{d+1}, v{acc+2}, v{acc+3}", V(acc + 2, 2), V(d + 1), aft, bef))
            gate = (lambda: not dq) if cfg.get("gate", 1) else None
            if nu & 1:
                VS.append(Ins(f"buffer_store_dwordx4 {vr(d-2,4)}, v{vST}, {srd(sSRD_WS)}, s{sSTO+p} offen offset:{(nu>>1)*1024} {stfl}",
                              "vmem", rd=V(d - 2, 4) | V(vST), tag=("st", p), after=aft, before=aft + cfg.get("stdl", INF), cost=32, pre=gate))
            if nu == 6:
                VS.append(Ins(f"buffer_store_dwordx2 {vr(d,2)}, v{vST2}, {srd(sSRD_WS)}, s{sSTO+p} offen offset:3072 {stfl}",
                              "vmem", rd=V(d, 2) | V(vST2), tag=("st", p), after=aft, before=aft + cfg.get("stdl", INF), cost=18, pre=gate))

    vFA, vFO, vFN, vFV = dK, dK + 1, dK + 2, dK + 3
    vRA, vOA, vOA2, vZ = 6, 7, 8, 0
    CO = cfg.get("co", 1); vLR = 9; sU = 55; sO1, sO2 = 30, 31
    SEL = 120; RD_ = 128
    def publish(cnt):
        pubd[0] = cnt
        R(f"v_and_b32 v{vFV}, -16, v{vFV}")
        R(f"v_add_u32 v{vFV}, {16 + cnt}, v{vFV}")
        E.emit(Ins(f"buffer_store_dword v{vFV}, v{vZ}, {srd(sSRD_FM)}, 0 offen {cfg.get('ffl','sc1')}", "vmem", rd=V(vFV) | V(vZ), tag="fl"))
    def reduce_setup():
        t = RD_
        R(f"v_lshrrev_b32 v{t}, 4, v{vST}")
        R(f"v_and_b32 v{t+1}, 15, v{t}")
        R(f"v_lshrrev_b32 v{t+2}, 4, v{t}")
        R(f"v_lshlrev_b32 v{vZ}, 24, v{t}")
        R(f"v_and_b32 v{t+3}, 16, v{vST}")
        R(f"v_mov_b32 v{t+4}, 0x3f80"); R(f"v_lshlrev_b32 v{t+3}, v{t+3}, v{t+4}")
        R(f"v_bfe_u32 v{t+4}, v{t}, 1, 3")
        for io in range(0, 8, 2):
            R(f"v_cmp_eq_u32 vcc, {io}, v{t+4}"); R(f"v_cmp_eq_u32 s[24:25], {io+1}, v{t+4}"); R("s_nop 0")
            R(f"v_cndmask_b32 v{SEL+io}, 0, v{t+3}, vcc"); R(f"v_cndmask_b32 v{SEL+io+1}, 0, v{t+3}, s[24:25]")
        if CO:
            R(f"v_and_b32 v{t+3}, 7, v{t}"); R(f"v_bfe_u32 v{t+4}, v{t}, 3, 1")
            R(f"v_mul_u32_u24 v{vRA}, 100352, v{t+2}"); R(f"v_mul_u32_u24 v{t+5}, 25088, v{t+4}")
            R(f"v_lshl_add_u32 v{vRA}, v{t+3}, 4, v{vRA}"); R(f"v_add_u32 v{vRA}, v{vRA}, v{t+5}")
            R(f"v_lshl_add_u32 v{t+5}, v{t+2}, 3, v{t+3}")
            R(f"v_lshlrev_b32 v{t+5}, 6, v{t+5}"); R(f"v_lshl_add_u32 v{t+5}, v{t+4}, 5, v{t+5}")
            R(f"s_lshl_b32 s40, s{sW}, 3"); R(f"s_add_u32 s40, s40, {EB}"); R(f"v_add_u32 v{vOA2}, s40, v{t+5}")
            R(f"s_lshl_b32 s40, s{sW}, 10"); R(f"s_add_u32 s40, s40, {EB}"); R(f"v_add_u32 v{vLR}, s40, v{vST}")
            R(f"s_lshr_b32 s24, s{sU}, 1"); R("s_cmp_eq_u32 s24, 6")
            R("s_cselect_b32 s25, 2, 1"); R("s_cselect_b32 s26, 1, 16")
            R(f"v_bfe_u32 v{t+3}, v{t}, 2, 3"); R(f"v_lshrrev_b32 v{t+4}, 5, v{t}")
            R(f"v_mul_u32_u24 v{t+3}, s25, v{t+3}"); R(f"v_mul_u32_u24 v{t+4}, s26, v{t+4}"); R(f"v_add_u32 v{t+3}, v{t+3}, v{t+4}")
            R(f"v_mul_u32_u24 v{t+3}, 896, v{t+3}"); R(f"v_and_b32 v{t+4}, 48, v{vST}"); R(f"v_add_u32 v{vOA}, v{t+3}, v{t+4}")
            R("s_lshr_b32 s25, s24, 1"); R("s_lshl_b32 s25, s25, 5"); R("s_and_b32 s24, s24, 1"); R("s_lshl_b32 s24, s24, 3"); R("s_add_u32 s24, s24, s25")
            R("s_mul_i32 s24, s24, 896"); R(f"s_and_b32 s25, s{sU}, 1"); R("s_lshl_b32 s25, s25, 6"); R("s_add_u32 s24, s24, s25")
            R(f"s_lshl_b32 s25, s{sW}, 7"); R(f"s_add_u32 s{sO1}, s24, s25")
            R(f"s_cmp_eq_u32 s{sW}, 3"); R(f"s_cselect_b32 s{sO2}, 0x1000000, s{sO1}")
            return
        R(f"s_lshl_b32 s40, s{sW}, 4"); R(f"v_add_u32 v{t+3}, s40, v{t+1}")
        R(f"v_cmp_gt_u32 s[24:25], 56, v{t+3}")
        R(f"v_mul_u32_u24 v{vRA}, 100352, v{t+2}"); R(f"v_lshl_add_u32 v{vRA}, v{t+3}, 4, v{vRA}")
        R(f"v_mov_b32 v{t+4}, 0x7ffffff0")
        R(f"v_cndmask_b32 v{vRA}, v{t+4}, v{vRA}, s[24:25]")
        s_qd(); R("s_mul_i32 s40, s40, 56"); R(f"v_add_u32 v{t+3}, s40, v{t+3}")
        R(f"v_and_b32 v{t+5}, 1, v{t+2}")
        R(f"v_lshrrev_b32 v{t+6}, 6, v{t+3}"); R(f"v_and_b32 v{t+7}, 15, v{t+3}")
        R(f"v_lshl_add_u32 v{t+6}, v{t+6}, 5, v{t+7}"); R(f"v_lshl_add_u32 v{t+6}, v{t+5}, 4, v{t+6}")
        R(f"v_bfe_u32 v{t+7}, v{t+3}, 4, 2")
        R(f"v_cmp_lt_u32 vcc, 191, v{t+3}")
        R(f"v_and_b32 v{t+8}, 7, v{t+3}"); R(f"v_lshl_add_u32 v{t+8}, v{t+8}, 1, v{t+5}"); R(f"v_add_u32 v{t+8}, 96, v{t+8}")
        R(f"v_bfe_u32 v{t+9}, v{t+3}, 3, 2")
        R(f"v_cndmask_b32 v{t+6}, v{t+6}, v{t+8}, vcc"); R(f"v_cndmask_b32 v{t+7}, v{t+7}, v{t+9}, vcc")
        R(f"v_mul_u32_u24 v{vOA}, 896, v{t+6}"); R(f"v_lshl_add_u32 v{vOA}, v{t+7}, 3, v{vOA}")
        R(f"v_lshrrev_b32 v{t+5}, 1, v{t+2}"); R(f"v_lshl_add_u32 v{vOA}, v{t+5}, 7, v{vOA}")
        R(f"v_cmp_gt_u32 vcc, 32, v{t}")
        s_sw(); R("s_lshl_b32 s40, s40, 5"); R(f"v_add_u32 v{vOA}, s40, v{vOA}")
        R(f"v_cndmask_b32 v{vOA}, v{t+4}, v{vOA}, s[24:25]")
        R(f"v_cndmask_b32 v{vOA2}, v{t+4}, v{vOA}, vcc")
    npoll = [0]; nchk = [0]; pubd = [0]
    spins = []
    def preg(k): return rV + (k & 3)
    def poll():
        npoll[0] += 1
        r = preg(npoll[0])
        E.emit(Ins(f"buffer_load_dword v{r}, v{vFA}, {srd(sSRD_FL)}, 0 offen sc1", "vmem", rd=V(vFA), wr=V(r), tag=("poll", npoll[0])))
    def check_cond(need, r=None):
        r = vFN if r is None else r
        R(f"v_cmp_ne_u32 vcc, v{r}, v{vFO}")
        R(f"v_and_b32 v{vFN}, 15, v{r}")
        R(f"v_cmp_le_u32 s[26:27], {need}, v{vFN}")
        R("s_and_b64 vcc, vcc, s[26:27]")
        R("s_cmp_eq_u64 vcc, -1")
    def check(need, mine):
        nchk[0] += 1
        E.wait_vm([("poll", nchk[0])], 1)
        check_cond(need, preg(nchk[0]))
        k = len(spins); spins.append((need, mine))
        R(f"s_cbranch_scc0 L_spin{k}")
        E.label(f"L_spun{k}")
    def rreg(p, g): return OACC + 16 * p + 4 * g
    def rloads(p):
        L = []
        for g in range(4):
            L.append(Ins(f"s_add_u32 s{sOFF}, s{sRO}, {g*4*100352 + p*3584}", "salu"))
            L.append(Ins(f"buffer_load_dwordx4 {vr(rreg(p,g),4)}, v{vRA}, {srd(sSRD_PB)}, s{sOFF} offen {cfg.get('rfl','sc1')}", "vmem",
                         rd=V(vRA), wr=V(rreg(p, g), 4), tag=("rl", p, g), cost=8))
        return L
    def rsum(p, nxt=None):
        d = RD_ + 4 * (p >> 1); sel = SEL + 4 * (p & 1)
        nl = rloads(nxt) if nxt is not None else None
        for g in range(4):
            if nl:
                E.wait_vm([("rl", p, g)], 1)
                E.emit(nl[2 * g]); E.emit(nl[2 * g + 1])
            E.wait_vm([("rl", p, g)], 1)
            cz = (p & 1) == 0 and g == 0
            E.emit(Ins(f"v_mfma_f32_16x16x32_bf16 {vr(d,4)}, {vr(sel,4)}, {vr(rreg(p,g),4)}, {'0' if cz else vr(d,4)}", "mfma",
                       rd=V(sel, 4) | V(rreg(p, g), 4) | (set() if cz else V(d, 4)), wr=V(d, 4), rdc=set() if cz else V(d, 4)))
    def rstore(q):
        d = RD_ + 4 * q
        E.emit(valu(f"v_cvt_pk_bf16_f32 v{d}, v{d}, v{d+1}", V(d, 2), V(d), 0))
        E.emit(valu(f"v_cvt_pk_bf16_f32 v{d+1}, v{d+2}, v{d+3}", V(d + 2, 2), V(d + 1), 0))
        if CO:
            E.emit(Ins(f"ds_write_b64 v{vOA2}, {vr(d,2)} offset:{2048*q}", "ds", rd=V(d, 2) | V(vOA2), res=("cw",)))
            if q == 3:
                R("s_waitcnt lgkmcnt(0)"); E.dsq = []
                R("s_barrier")
                R(f"ds_read_b128 {vr(RD_,4)}, v{vLR}"); R(f"ds_read_b128 {vr(RD_+4,4)}, v{vLR} offset:4096")
                R("s_waitcnt lgkmcnt(1)")
                R(f"buffer_store_dwordx4 {vr(RD_,4)}, v{vOA}, {srd(sSRD_OUT)}, s{sO1} offen {cfg.get('ofl','sc1')}")
                R("s_waitcnt lgkmcnt(0)")
                R(f"buffer_store_dwordx4 {vr(RD_+4,4)}, v{vOA}, {srd(sSRD_OUT)}, s{sO2} offen offset:512 {cfg.get('ofl','sc1')}")
            return
        va = vOA if q < 3 else vOA2
        E.emit(Ins(f"buffer_store_dwordx2 {vr(d,2)}, v{va}, {srd(sSRD_OUT)}, 0 offen offset:{256*q} {cfg.get('ofl','')}", "vmem", rd=V(d, 2) | V(va), tag="ost"))
    def dyn_tail():
        vA, vLd, vI, vM = 32, 36, 40, 41
        def avail(r):
            R(f"v_cmp_ne_u32 vcc, v{r}, v{vFO}")
            R(f"v_and_b32 v{vFN}, 15, v{r}")
            R("s_nop 0")
            R(f"v_cndmask_b32 v{vFN}, 0, v{vFN}, vcc")
            for g in range(4): R(f"ds_bpermute_b32 v{vA+g}, v{vI}, v{vFN} offset:{16*g}")
            R("s_waitcnt lgkmcnt(0)")
        def piece(p, g, first, track):
            L = rloads(p)
            E.emit(L[2 * g])
            R(f"v_cmpx_lt_u32 vcc, {p}, v{vA+g}")
            if not first: R(f"v_cmpx_ge_u32 vcc, {p}, v{vLd+g}")
            if track: E.emit(L[2 * g + 1])
            else: R(L[2 * g + 1].text)
            R("s_mov_b64 exec, -1")
        poll()
        R(f"v_lshrrev_b32 v{vI}, 8, v{vST}"); R(f"v_lshlrev_b32 v{vI}, 2, v{vI}")
        E.wait_vm([("st", p) for p in range(7)]); publish(7)
        if stamps: stamp()
        nchk[0] += 1; E.wait_vm([("poll", nchk[0])], 1)
        avail(preg(nchk[0]))
        for p in range(7):
            for g in range(4): piece(p, g, True, True)
            if p == cfg.get("dynp", 3):
                R(f"v_mov_b32 v{preg(npoll[0] + 1)}, v{vFO}")
                poll()
        R("s_mov_b32 s28, 0")
        nchk[0] += 1; E.wait_vm([("poll", nchk[0])], 1)
        R(f"v_mov_b32 v{vFN}, v{preg(nchk[0])}")
        E.label("L_dyn")
        for g in range(4): R(f"v_mov_b32 v{vLd+g}, v{vA+g}")
        R(f"v_min3_u32 v{vM}, v{vA}, v{vA+1}, v{vA+2}"); R(f"v_min_u32 v{vM}, v{vM}, v{vA+3}")
        R(f"v_cmp_gt_u32 vcc, 7, v{vM}")
        R("s_cbranch_vccz L_dyn_done")
        avail(vFN)
        for p in range(7):
            R(f"v_cmp_ge_u32 vcc, {p}, v{vM}")
            R(f"s_cbranch_vccz L_dyn_s{p}")
            for g in range(4): piece(p, g, False, False)
            E.label(f"L_dyn_s{p}")
        R(f"v_min3_u32 v{vM}, v{vA}, v{vA+1}, v{vA+2}"); R(f"v_min_u32 v{vM}, v{vM}, v{vA+3}")
        R(f"v_cmp_gt_u32 vcc, 7, v{vM}")
        R("s_cbranch_vccz L_dyn_done")
        R("s_add_u32 s28, s28, 1")
        R("s_and_b32 s29, s28, 7")
        R("s_cbranch_scc1 L_dyn_np")
        publish(7)
        E.label("L_dyn_np")
        R(f"buffer_load_dword v{vFN}, v{vFA}, {srd(sSRD_FL)}, 0 offen sc1")
        R("s_waitcnt vmcnt(0)")
        R("s_cmp_lt_u32 s28, 400000")
        R("s_cbranch_scc1 L_dyn")
        E.label("L_dyn_done")
        if stamps: stamp()
        R("s_waitcnt vmcnt(0)")
        E.vm_known = 0; E.vm_len = len(E.vmq)
        st = 0
        for p in range(7):
            rsum(p)
            while 2 * st + 1 < p: rstore(st); st += 1
        while st < 4: rstore(st); st += 1
    PROG = cfg.get("prog", 1) and cfg.get("ink", 1)
    if cfg.get("ink", 1):
        def ev_setup():
            assert not any(x.kind == "vmem" and x.tag[0] == "V" for x in dq)
            assert not any(x.res == ("pw", 3) for x in VS)
            reduce_setup()
        if cfg.get("rsat") is not None:
            events.setdefault(O0 + int(cfg["rsat"] * BL), []).insert(0, ("rsetup", ev_setup))
        VS.append(valu(f"v_lshlrev_b32 v{vZ}, 20, v{vST}", V(vST), V(vZ), O0 + BL, O0 + 3 * BL))
    def act(a_, inline):
        k = a_[0]
        if k == "pub": E.wait_vm([("st", p) for p in range(a_[1])]); publish(a_[1])
        elif k == "poll": poll()
        elif k == "chk": check(a_[1], pubd[0])
        elif k == "ld":
            if inline:
                for x in rloads(a_[1]): E.emit(x)
            else: dq.extend(rloads(a_[1]))
        elif k == "sum": rsum(a_[1])
        elif k == "sl": rsum(a_[1] // 10, a_[1] % 10)
        elif k == "out": rstore(a_[1])
        elif k == "setup":
            if cfg.get("rsat") is None: reduce_setup()
        elif k == "stamp":
            if stamps: stamp()
    MIDS = cfg.get("mids", [(4.2, ("pub", 3))]) if PROG else []
    for n_, (pos, a_) in enumerate(MIDS):
        add_event(O0 + int(pos * BL), ("mid", n_), (lambda z: (lambda: act(z, False)))(a_))
    TAIL = cfg.get("tail", "poll setup pub7 stamp chk3 ld0 ld1 poll ld2 sum0 sum1 out0 chk7 stamp ld3 ld4 ld5 ld6 sum2 sum3 sum4 out1 sum5 sum6 out2 out3") if PROG \
        else "setup pub7 stamp poll chk7 stamp ld0 ld1 ld2 ld3 ld4 ld5 ld6 sum0 sum1 sum2 out0 sum3 sum4 out1 sum5 sum6 out2 out3"
    if cfg.get("ink", 1):
        fa = P0 - 28
        VS.insert(0, valu(f"v_and_b32 v{vFA}, {0x1f0 if CO else 0xf0}, v{vST}", V(vST), V(dK, 4), fa, P0 + BL, pre=lambda: not any(x.kind == "vmem" and x.tag[0] == "K" for x in dq)))
        VS.insert(1, valu(f"v_lshlrev_b32 v{vFA}, 3, v{vFA}", V(vFA), V(vFA), fa, P0 + BL))
        VS.insert(2, valu(f"v_mov_b32 v{vFN}, 0", set(), V(vFN), fa, P0 + BL))
        VS.insert(3, Ins(f"buffer_load_dword v{vFO}, v{vFA}, {srd(sSRD_FL)}, 0 offen sc1", "vmem", rd=V(vFA), wr=V(vFO), tag="pf", after=fa, before=P0 + BL, cost=8))
        VS.insert(4, Ins(f"buffer_load_dword v{vFV}, v{vFN}, {srd(sSRD_FM)}, 0 offen sc1", "vmem", rd=V(vFN), wr=V(vFV), tag="pf", after=fa, before=P0 + BL, cost=8))

    PF = []
    if cfg.get("wopf") is not None:
        PF.append(Ins(f"buffer_load_dword v{vPFV}, v{vPFV}, {srd(sSRD_WO)}, 0 offen", "vmem", rd=V(vPFV), tag="pf",
                      after=int(cfg["wopf"] * 28), cost=8))

    KN = "standalone__gqa_block_cached__near_ridge_kernel" if cfg.get("ink", 1) else "gqa_main_kernel"
    if cfg.get("ink", 1):
        E.out.append("; fused GQA block: q-proj + attention + out-proj + cross-workgroup head reduction")
        E.out.append("; @launch grid=(256,1,1) block=(256,1,1) lds=163840")
    else:
        E.out.append("""; fused GQA block: q-proj + attention + out-proj partials (main), then head reduction (reduce)
; @launch kernel=gqa_main_kernel grid=(256,1,1) block=(256,1,1) lds=163840
; @launch kernel=gqa_reduce_kernel grid=(448,1,1) block=(256,1,1) lds=0""")
    E.out.append(f""".amdgcn_target "amdgcn-amd-amdhsa--gfx950"
.text
.globl {KN}
.p2align 8
.type {KN},@function
{KN}:""")
    R("s_cmp_ge_u32 s2, 256")
    R("s_cbranch_scc1 L_exit")
    R("s_load_dwordx8 s[8:15], s[0:1], 0")
    R("s_load_dwordx2 s[4:5], s[0:1], 32")
    R(f"s_load_dwordx2 s[{sSRD_OUT}:{sSRD_OUT+1}], s[0:1], 40")
    R("s_load_dwordx2 s[6:7], s[0:1], 56")
    if cfg.get("padT") or cfg.get("padstep") is not None: R("s_memrealtime s[68:69]")
    if stamps:
        R(f"s_memtime s[{sSTAMP}:{sSTAMP+1}]"); R(f"s_memrealtime s[{sSTAMP+30}:{sSTAMP+31}]")
    if cfg.get("cpf", 1):
        R("s_getpc_b64 s[24:25]")
        E.label("L_pc")
        R("s_mov_b32 s26, L_end-L_pc"); R("s_mov_b32 s27, 0x20000")
        R("v_lshlrev_b32 v54, 7, v0"); R("v_lshrrev_b32 v55, 4, v0"); R("s_lshr_b32 s40, s2, 3"); R("s_lshl_b32 s40, s40, 11")
        R("v_lshl_add_u32 v54, v55, 24, v54")
        E.emit(Ins(f"buffer_load_dword v56, v54, s[24:27], s40 offen", "vmem", tag="pf"))
    t0, t1, t2, t3, t4, t5 = 40, 41, 42, 43, 44, 45
    vA, vP8, vG, vP16, vW, vR, vC4 = 46, 47, 48, 49, 50, 51, 52
    R(f"v_lshrrev_b32 v{vW}, 6, v0")
    R(f"v_and_b32 v{vLANE}, 63, v0")
    R(f"v_readfirstlane_b32 s{sW}, v{vW}")
    R(f"v_lshrrev_b32 v{vA}, 3, v{vLANE}")
    R(f"v_and_b32 v{vP8}, 7, v{vLANE}")
    R(f"v_lshrrev_b32 v{vG}, 4, v{vLANE}")
    R(f"v_and_b32 v{vP16}, 15, v{vLANE}")
    R("s_bfe_u32 s46, s2, 0x10003")
    if cfg.get("kmap", 2) == 1:
        R("s_and_b32 s55, s2, 7")
        R("s_lshr_b32 s58, s2, 4")
        R(f"s_mov_b32 s{sSQ}, s58"); R(f"s_mov_b32 s{sSX}, s46")
    elif cfg.get("kmap", 2) == 8:
        R("s_bfe_u32 s55, s2, 0x30004")
        R("s_and_b32 s58, s2, 7"); R("s_lshl_b32 s58, s58, 1"); R(f"s_lshr_b32 s{sSQ}, s2, 7"); R(f"s_add_u32 s58, s58, s{sSQ}")
        R(f"s_bfe_u32 s{sSX}, s2, 0x40003")
    elif cfg.get("kmap", 2) == 4:
        R("s_and_b32 s55, s2, 1"); R("s_lshl_b32 s55, s55, 2"); R("s_bfe_u32 s40, s2, 0x20004"); R("s_add_u32 s55, s55, s40")
        R(f"s_lshr_b32 s{sSQ}, s2, 6"); R("s_bfe_u32 s40, s2, 0x20001"); R("s_lshl_b32 s58, s40, 2"); R(f"s_add_u32 s58, s58, s{sSQ}")
        R(f"s_bfe_u32 s{sSX}, s2, 0x30003")
    else:
        R("s_and_b32 s55, s2, 3"); R("s_lshl_b32 s55, s55, 1"); R("s_bfe_u32 s40, s2, 0x10004"); R("s_add_u32 s55, s55, s40")
        R(f"s_lshr_b32 s{sSQ}, s2, 5"); R("s_bfe_u32 s40, s2, 0x10002"); R("s_lshl_b32 s58, s40, 3"); R(f"s_add_u32 s58, s58, s{sSQ}")
        R(f"s_bfe_u32 s{sSX}, s2, 0x20003")
    R("s_lshl_b32 s56, s55, 1")
    R("s_add_u32 s56, s56, s46")
    STG = 0
    if cfg.get("rot"):
        R(f"s_lshl_b32 s40, s{sSX}, {cfg.get('rotsh', 1)}"); R(f"s_add_u32 s40, s40, s{sSQ}")
        R("s_mul_i32 s43, s40, 37"); R("s_lshr_b32 s43, s43, 8"); R("s_mul_i32 s43, s43, 7"); R("s_sub_u32 s40, s40, s43")
        R(f"s_lshl_b32 s{sSTO}, s40, 7")
    R(f"s_mul_i32 s{sRB}, s{sW}, {RING}")
    R(f"s_lshl_b32 s{sXB}, s{sW}, 12"); R(f"s_add_u32 s{sXB}, s{sXB}, {EB}")
    R(f"v_lshl_add_u32 v{t0}, v{vW}, 5, v{vA}")
    R(f"v_mul_u32_u24 v{t1}, 896, v{t0}")
    R(f"v_xor_b32 v{t2}, v{vP8}, v{vG}")
    R(f"v_lshlrev_b32 v{t2}, 4, v{t2}")
    R(f"v_xor_b32 v{t3}, 64, v{t2}")
    R(f"v_add_u32 v{dX}, v{t1}, v{t2}")
    R(f"v_add_u32 v{dX+1}, v{t1}, v{t3}")
    R(f"v_add_u32 v{dX+2}, {2*6144}, v{dX}")
    R(f"v_add_u32 v{dX+3}, {3*6144}, v{dX+1}")
    R(f"v_add_u32 v{dX+1}, {6144}, v{dX+1}")
    R(f"v_and_b32 v{t2}, 1, v{vG}")
    R(f"v_lshlrev_b32 v{t2}, 1, v{t2}")
    R(f"v_xor_b32 v{t2}, v{vP8}, v{t2}")
    R(f"v_lshlrev_b32 v{t2}, 4, v{t2}")
    R(f"v_lshl_add_u32 v{t2}, v{vW}, 7, v{t2}")
    R(f"v_lshl_add_u32 v{dWQ}, v{vA}, 13, v{t2}")
    R(f"v_xor_b32 v{dWQ+1}, 64, v{dWQ}")
    R(f"v_add_u32 v{dWQ+2}, {2*64512}, v{dWQ}")
    R(f"v_add_u32 v{dWQ+3}, {3*64512}, v{dWQ+1}")
    R(f"v_add_u32 v{dWQ+1}, {64512}, v{dWQ+1}")
    R(f"s_mov_b32 s{sSRD_X+2}, 100352"); R(f"s_mov_b32 s{sSRD_X+3}, 0x20000")
    R(f"s_mul_i32 s{sSRD_X}, s58, 100352")
    R(f"s_lshl_b32 s{sSRD_WQ}, s56, 9")
    R(f"s_sub_u32 s{sSRD_WQ+2}, {448*8192}, s{sSRD_WQ}"); R(f"s_mov_b32 s{sSRD_WQ+3}, 0x20000")
    if cfg.get("padstep") == -3: R("s_memrealtime s[70:71]")
    R("s_waitcnt lgkmcnt(0)")
    if cfg.get("padstep") == -2: R("s_memrealtime s[70:71]")
    R(f"s_add_u32 s{sSRD_X}, s8, s{sSRD_X}"); R(f"s_addc_u32 s{sSRD_X+1}, s9, 0")
    R(f"s_add_u32 s{sSRD_WQ}, s14, s{sSRD_WQ}"); R(f"s_addc_u32 s{sSRD_WQ+1}, s15, 0")
    npro = cfg.get("npro", 3); npro3 = cfg.get("npro3", 6)
    for u, L in DQ[:npro]:
        for x in L: E.emit(x)
    km = cfg.get("kmap", 2)
    if cfg.get("rot"):
        for j in range(1, 7):
            R(f"s_add_u32 s{sSTO+j}, s{sSTO+j-1}, 128"); R(f"s_cmp_eq_u32 s{sSTO+j}, 896"); R(f"s_cselect_b32 s{sSTO+j}, 0, s{sSTO+j}")
    R(f"s_mov_b32 s{sC}, {f2u(math.log2(math.e) / 16.0):#x}")
    R(f"s_lshl_b32 s{sW2K}, s{sW}, 11")
    R(f"s_mul_i32 s40, s{sSQ}, {16*km}"); R(f"v_add_u32 v58, s40, v{vA}")
    R(f"v_mul_u32_u24 v59, {4*km}, v{vW}"); R("v_add_u32 v58, v58, v59"); R("v_mul_u32_u24 v58, 896, v58")
    R(f"v_lshl_add_u32 v{vPFV}, v{vP8}, 7, v58")
    R(f"v_cmp_gt_u32 vcc, {32*km}, v{vLANE}"); R("v_mov_b32 v59, 0x7ffffff0")
    R(f"v_bfe_u32 v{vR}, v{vLANE}, 2, 2")
    R(f"v_cndmask_b32 v{vPFV}, v59, v{vPFV}, vcc")
    R(f"v_and_b32 v{vC4}, 3, v{vLANE}")
    R(f"v_lshlrev_b32 v{vST}, 4, v{vLANE}")
    R(f"v_bfe_u32 v{t2}, v{vLANE}, 1, 3")
    R(f"v_xor_b32 v{t2}, v{t2}, v{vG}")
    R(f"v_lshlrev_b32 v{t2}, 4, v{t2}")
    R(f"v_lshl_add_u32 v{t2}, v{vP16}, 7, v{t2}")
    R(f"v_add_u32 v{rX}, {EB}, v{t2}")
    R(f"v_xor_b32 v{rX+1}, 64, v{rX}")
    R(f"v_lshrrev_b32 v{t4}, 1, v{vR}")
    R(f"v_and_b32 v{t2}, 1, v{vG}")
    R(f"v_lshl_add_u32 v{t5}, v{t2}, 1, v{t4}")
    R(f"v_lshlrev_b32 v{t3}, 3, v{vC4}")
    R(f"v_lshl_add_u32 v{t3}, v{t5}, 5, v{t3}")
    R(f"v_add_u32 v{t4}, s{sRB}, v{t3}")
    R(f"v_lshl_add_u32 v{t2}, v{vG}, 3, v{vR}")
    R(f"v_lshl_add_u32 v{rWQ}, v{t2}, 7, v{t4}")
    for m in range(1, 4): R(f"v_xor_b32 v{rWQ+m}, {32*m}, v{rWQ}")
    if cfg.get("q128"):
        R(f"v_lshlrev_b32 v{rWQ+2}, 1, v{t5}"); R(f"v_xor_b32 v{rWQ+2}, v{rWQ+2}, v{vC4}"); R(f"v_lshlrev_b32 v{rWQ+2}, 4, v{rWQ+2}")
        R(f"v_lshl_add_u32 v{rWQ+2}, v{t2}, 7, v{rWQ+2}"); R(f"v_add_u32 v{rWQ}, s{sRB}, v{rWQ+2}"); R(f"v_xor_b32 v{rWQ+1}, 64, v{rWQ}")
    R(f"v_lshl_add_u32 v{t2}, v{vG}, 2, v{vR}")
    R(f"v_lshl_add_u32 v{rV}, v{t2}, 7, v{t4}")
    for m in range(1, 4): R(f"v_xor_b32 v{rV+m}, {32*m}, v{rV}")
    R(f"v_lshl_add_u32 v{rWO}, v{t2}, 7, v{t3}")
    R(f"v_lshlrev_b32 v{t2}, 5, v{vW}")
    R(f"v_xor_b32 v{rWO}, v{rWO}, v{t2}")
    R(f"v_add_u32 v{rWO+1}, {2*RING}, v{rWO}")
    R(f"v_xor_b32 v{t3}, v{vG}, v{vP16}")
    R(f"v_lshlrev_b32 v{t3}, 4, v{t3}")
    R(f"v_lshl_add_u32 v{t2}, v{vP16}, 8, v{t3}")
    R(f"v_add_u32 v{rK}, s{sRB}, v{t2}")
    for k in range(1, 4): R(f"v_xor_b32 v{rK+k}, {64*k}, v{rK}")
    R(f"v_lshl_add_u32 v{t2}, v{vW}, 5, v{vG}")
    R(f"v_lshl_add_u32 v{dK}, v{t2}, 9, v{t3}")
    for j in range(1, 4):
        R(f"v_xor_b32 v{dK+j}, {64*j}, v{dK}")
        R(f"v_add_u32 v{dK+j}, {1024*j}, v{dK+j}")
    R(f"v_lshlrev_b32 v{t2}, 1, v{vG}")
    R(f"v_xor_b32 v{t2}, v{vP8}, v{t2}")
    R(f"v_lshlrev_b32 v{t2}, 4, v{t2}")
    R(f"v_add_u32 v{dWO}, v{t1}, v{t2}")
    R(f"v_lshl_add_u32 v{t2}, v{vW}, 7, v{t2}")
    R(f"v_lshl_add_u32 v{dV}, v{vA}, 9, v{t2}")
    for j in range(1, 4): R(f"v_add_u32 v{dV+j}, {3072*j}, v{dV}")
    R(f"v_add_u32 v{rE}, {EB}, v{vST}")
    R(f"v_mul_u32_u24 v{t2}, 7168, v{vW}")
    R(f"v_add_u32 v{wP}, v{rE}, v{t2}")
    R(f"v_add_u32 v{wO}, v{wP}, v{t2}")
    R(f"v_lshrrev_b32 v{t3}, 1, v{vG}")
    R(f"v_lshl_add_u32 v{t3}, v{t3}, 4, v{vP16}")
    R(f"v_and_b32 v{t4}, 1, v{vG}")
    R(f"v_lshlrev_b32 v{t4}, 3, v{t4}")
    R(f"v_lshl_add_u32 v{t3}, v{t3}, 4, v{t4}")
    R(f"v_lshl_add_u32 v{t3}, v{t2}, 1, v{t3}")
    R(f"v_add_u32 v{wQ}, {EB}, v{t3}")
    for sr, size in ((sSRD_K, 262144), (sSRD_V, 262144), (sSRD_WO, 229376), (sSRD_WS, 25088), (sSRD_OUT, 100352), (sSRD_PB, 1605632)):
        R(f"s_mov_b32 s{sr+2}, {size}"); R(f"s_mov_b32 s{sr+3}, 0x20000")
    R(f"s_lshl_b32 s40, s58, 3"); R("s_add_u32 s40, s40, s55"); R(f"s_lshl_b32 s{sSRD_V}, s40, 18")
    if cfg.get("l2kv"): R(f"s_lshl_b32 s{sSRD_V}, s55, 18")
    R(f"s_mul_i32 s{sSRD_WO}, s56, 229376")
    R("s_lshl_b32 s40, s58, 4"); R("s_add_u32 s40, s40, s56"); R("s_lshl_b32 s40, s40, 2"); R(f"s_add_u32 s40, s40, s{sW}")
    R(f"s_mul_i32 s{sSRD_WS}, s40, 25088")
    R(f"s_mul_i32 s{sSRD_PB}, s58, 1605632")
    if CO:
        R(f"s_lshl_b32 s40, s{sBB}, 1"); R(f"s_add_u32 s40, s40, s{sH}"); R(f"s_and_b32 s{sU}, s40, 15")
        R(f"s_and_b32 s40, s{sU}, 1"); R(f"s_mul_i32 s{sRO}, s40, 50176")
        R(f"s_lshr_b32 s40, s{sU}, 2"); R("s_lshl_b32 s40, s40, 10"); R(f"s_add_u32 s{sRO}, s{sRO}, s40")
        R(f"s_bfe_u32 s40, s{sU}, 0x10001"); R("s_lshl_b32 s40, s40, 7"); R(f"s_add_u32 s{sRO}, s{sRO}, s40")
        R(f"s_cmp_ge_u32 s{sU}, 12"); R("s_cselect_b32 s40, 7, 8"); R(f"s_lshl_b32 s40, s{sW}, s40"); R(f"s_add_u32 s{sRO}, s{sRO}, s40")
        R(f"s_cmp_ge_u32 s{sU}, 14"); R(f"s_cselect_b32 s{sSRD_PB+2}, 0, s{sSRD_PB+2}"); R(f"s_cselect_b32 s{sSRD_OUT+2}, 0, s{sSRD_OUT+2}")
    else:
        s_sw(); R(f"s_mul_i32 s{sRO}, s40, 25088"); s_qd(); R("s_mul_i32 s40, s40, 896"); R(f"s_add_u32 s{sRO}, s{sRO}, s40")
    R(f"s_lshl_b32 s46, s{sBB}, 2")
    if CO: R(f"s_and_b32 s40, s{sU}, 1"); R("s_lshl_b32 s40, s40, 1")
    else: s_sw()
    R("s_add_u32 s40, s40, s46"); R("s_lshl_b32 s40, s40, 11"); R(f"s_add_u32 s41, s40, {FLOFF}")
    R(f"s_add_u32 s40, s46, s{sW}"); R("s_lshl_b32 s40, s40, 4"); R(f"s_add_u32 s40, s40, s{sH}"); R("s_lshl_b32 s40, s40, 7"); R(f"s_add_u32 s46, s40, {FLOFF}")
    R(f"s_mul_i32 s40, s58, 100352")
    R(f"s_add_u32 s{sSRD_K}, s10, s{sSRD_V}"); R(f"s_addc_u32 s{sSRD_K+1}, s11, 0")
    R(f"s_add_u32 s{sSRD_V}, s12, s{sSRD_V}"); R(f"s_addc_u32 s{sSRD_V+1}, s13, 0")
    R(f"s_add_u32 s{sSRD_WO}, s4, s{sSRD_WO}"); R(f"s_addc_u32 s{sSRD_WO+1}, s5, 0")
    R(f"s_add_u32 s{sSRD_WS}, s6, s{sSRD_WS}"); R(f"s_addc_u32 s{sSRD_WS+1}, s7, 0")
    R(f"s_add_u32 s{sSRD_OUT}, s{sSRD_OUT}, s40"); R(f"s_addc_u32 s{sSRD_OUT+1}, s{sSRD_OUT+1}, 0")
    R(f"s_add_u32 s{sSRD_PB}, s6, s{sSRD_PB}"); R(f"s_addc_u32 s{sSRD_PB+1}, s7, 0")
    R(f"s_add_u32 s{sSRD_FL}, s6, s41"); R(f"s_addc_u32 s{sSRD_FL+1}, s7, 0"); R(f"s_mov_b32 s{sSRD_FL+2}, {4096 if CO else 2048}"); R(f"s_mov_b32 s{sSRD_FL+3}, 0x20000")
    R(f"s_add_u32 s{sSRD_FM}, s6, s46"); R(f"s_addc_u32 s{sSRD_FM+1}, s7, 0"); R(f"s_mov_b32 s{sSRD_FM+2}, 128"); R(f"s_mov_b32 s{sSRD_FM+3}, 0x20000")
    for u, L in DQ[npro:npro3]:
        for x in L: E.emit(x)
    if cfg.get("padstep") == -1: R("s_memrealtime s[70:71]")
    dq = [x for u, L in DQ[npro3:] for x in L]

    stamp_n = [1]
    def stamp():
        k = stamp_n[0]; stamp_n[0] += 1
        R(f"{'s_memrealtime' if cfg.get('rt', 1) and k != len(stamps) + 5 else 's_memtime'} s[{sSTAMP+2*k}:{sSTAMP+2*k+1}]")
    def skipf(i):
        if cfg.get("nodma") and i.kind == "vmem" and "lds" in i.text: return True
        if cfg.get("nost") and "buffer_store" in i.text: return True
        if cfg.get("skipwo") and i.kind == "vmem" and i.tag[0] == "WO" and 2 * i.tag[1] + i.tag[2] >= cfg["skipwo"]: return True
        if cfg.get("nosoft") and (i.text.startswith("v_exp") or i.text.startswith("v_add_f32")): return True
        if cfg.get("nopw") and i.kind == "ds" and i.res and i.res[0] == "pw": return True
        if cfg.get("nodsw") and "ds_write" in i.text: return True
        if cfg.get("novalu") and i.kind in ("valu", "trans", "perm"): return True
        return False

    wgap = {}; issued = {}
    def emit(x):
        if x.tag == "read":
            reads_left[x.res] -= 1; last_read[x.res] = now[0]
        if x.kind == "salu" and x.res is not None: E.wait_ds_res(lambda r: r == x.res)
        E.emit(x)
        if x.kind == "vmem": issued[x.tag] = now[0]
        for r in x.wr: wgap[r] = (now[0], x.kind)
    def ok(x, i): return x.after <= i and (x.pre is None or x.pre())
    def run_events(idx):
        for name, fn in events.get(idx, []):
            fn(); ev_done.add(name)
    def conflicts(x, y): return bool(x.rd & y.wr or x.wr & y.rd or x.wr & y.wr)
    def force_fifo(st, i, what):
        k = 0
        for kk, x in enumerate(st[:64]):
            if x.before <= i: k = kk + 1
        c = 0
        for x in st[:k]:
            assert ok(x, i), f"forced {what} not eligible at {i}: {x.text}"
            emit(x); c += x.cost
        del st[:k]
        return c
    c2 = [0]
    def force_vs(i):
        c2[0] = 0
        need = [False] * min(len(VS), 600)
        for k in range(len(need) - 1, -1, -1):
            if VS[k].before <= i: need[k] = True
            if need[k]:
                for kk in range(k):
                    if not need[kk] and conflicts(VS[k], VS[kk]): need[kk] = True
        c = 0
        sel = [VS[k] for k in range(len(need)) if need[k]]
        for x in sel:
            assert ok(x, i), f"forced valu not eligible at {i}: {x.text}"
            VS.remove(x); emit(x); c += x.cost
            c2[0] += x.cost
            if c2[0] >= 96 and dq and ok(dq[0], i):
                c2[0] = 0
                while dq and ok(dq[0], i):
                    y = dq.pop(0); emit(y); c += y.cost
                    if y.kind == "vmem": break
        return c
    WIN = cfg.get("win", 150)
    def ready(x, i):
        if not ok(x, i) or E.need_nops(x) > 0: return False
        k = E.ds_idx(x)
        if k >= 0 and any(wgap.get(r, (-99, 0))[1] == "ds" and i - wgap[r][0] < 10 for r in x.rd | x.wr): return False
        for r in x.rd:
            if r in wgap and wgap[r][1] == "trans" and wgap[r][0] >= i: return False
        return True
    def pick(pred, i):
        blocked = []
        n = 0
        for k, x in enumerate(VS):
            if x.after <= i:
                n += 1
                if n > WIN: return None
            if pred(x) and ready(x, i) and not any(conflicts(x, y) for y in blocked): return x
            blocked.append(x)
            if k > 400: return None
        return None
    ismem = lambda x: x.kind in ("ds", "vmem")
    is4 = lambda x: x.cost == 4 and not ismem(x)

    run_events(-1)
    if stamps: stamp()
    E.skip = skipf
    over = {}; lastdma = -10; lastb128 = -10; lastw = -10; idle = {}
    for i in range(END):
        now[0] = i
        ph = "QSPO"[(i >= S0) + (i >= P0) + (i >= O0)]
        if i % 28 == 0:
            E.comment(f"---- step {i//28} {units[i//28]}")
            if i // 28 in stamps: stamp()
            if cfg.get("padstep") == i // 28: R("s_memrealtime s[70:71]")
        c = force_fifo(RA, i - 4, "read") + force_fifo(RB, i - 4, "read") if i > 0 else force_fifo(RA, 0, "read") + force_fifo(RB, 0, "read")
        if i in (S0, O0) and not STGX: c += force_fifo(RB, i, "read")
        over[ph] = over.get(ph, 0) + c
        E.emit(mfma(i))
        bud = BUD
        if any(x.before <= i + 1 for x in VS[:600]):
            c = force_vs(i + 1); over[ph] = over.get(ph, 0) + max(0, c - bud); bud -= c
        run_events(i)
        if bud < BUD:
            continue
        cand = [q for q in (RA, RB) if q and ok(q[0], i)]
        cand.sort(key=lambda q: q[0].before)
        urgent = [q for q in cand if q[0].before <= i + 1 + sum(1 for x in q[:6] if x.before <= i + 6)]
        sp = cfg.get("dmasp", 4) if i >= cfg.get("fastuntil", 0) else cfg.get("fastsp", 2)
        if dq and dq[0].kind == "vmem" and dq[0].tag[0] == "K" and i < S0: sp = cfg.get("ksp", 8)
        if dq and dq[0].kind == "vmem" and dq[0].tag[0] in ("K", "V") and i >= S0: sp = cfg.get("msp", 4)
        if dq and dq[0].kind == "vmem" and dq[0].tag[0] == "WO": sp = cfg.get("osp", 4) if i < O0 else cfg.get("osp2", 4)
        if dq and dq[0].kind == "vmem" and dq[0].tag[0] == "rl": sp = cfg.get("rsp", 3)
        if cfg.get("rate") and dq and dq[0].kind == "vmem" and dq[0].after > 0: sp = cfg.get("minsp", 4)
        dma_due = dq and dq[0].kind == "vmem" and ok(dq[0], i) and i - lastdma >= sp and E.need_nops(dq[0]) == 0
        x = None
        if dma_due and (not urgent or i - max(lastdma + sp, dq[0].after) >= 2):
            x = dq.pop(0); lastdma = i
            if urgent:
                emit(urgent[0].pop(0)); over[ph] = over.get(ph, 0) + 4
        elif urgent: x = urgent[0].pop(0)
        elif PF and PF[0].after <= i and i - lastdma >= 2: x = PF.pop(0)
        else:
            cand = [q for q in cand if not ("b128" in q[0].text and i - lastb128 < cfg.get("b128sp", 2))]
            if cand: x = cand[0].pop(0)
        if x is None and dq and dq[0].kind == "salu" and ok(dq[0], i) and cfg.get("salup", 1):
            pass
        elif x is None:
            big = lambda z: not is4(z) and not (ismem(z) and z.cost > 8 and i - lastw < (cfg.get("wsp", 3) if z.kind == "ds" else cfg.get("ssp", 6)))
            y4 = pick(is4, i); y8 = pick(big, i)
            y = y8
            if y4 is not None and y8 is not None and VS.index(y4) < VS.index(y8):
                load = sum(z.cost for z in VS[:600] if z.before <= y4.before)
                if load / 8.0 > (y4.before - i) * cfg.get("urg", 0.6): y = y4
            if y is not None and not is4(y):
                VS.remove(y); x = y
                if ismem(y) and y.cost > 8: lastw = i
        if x is not None:
            if "read_b128" in x.text: lastb128 = i
            emit(x); bud -= x.cost
            if x.cost > BUD: over[ph] = over.get(ph, 0) + x.cost - BUD
        while bud >= 4:
            if dq and dq[0].kind == "salu" and ok(dq[0], i):
                emit(dq.pop(0)); bud -= 4; continue
            y = pick(is4, i)
            if y is None: break
            VS.remove(y); emit(y); bud -= 4
        if bud > 0: idle[ph] = idle.get(ph, 0) + bud
    now[0] = END
    over["tail"] = sum(x.cost for x in VS)
    for x in VS: emit(x)
    for x in dq: emit(x)
    assert not RA and not RB and not PF
    INK = cfg.get("ink", 1)
    if cfg.get("padstep") == 60: R("s_memrealtime s[70:71]")
    if INK:
        if stamps: stamp()
        E.skip = None
        if cfg.get("dyn"):
            dyn_tail()
            TAIL = ""
        import re as _re
        for tok in TAIL.split():
            m_ = _re.match(r"([a-z]+)(\d*)", tok)
            act((m_.group(1), int(m_.group(2))) if m_.group(2) else (m_.group(1),), True)
    if stamps:
        if not INK: stamp(); stamp(); stamp()
        R("s_waitcnt vmcnt(0)")
        stamp()
        R(f"s_memrealtime s[{sSTAMP+32}:{sSTAMP+33}]")
        R("s_waitcnt lgkmcnt(0)")
        n = stamp_n[0]
        R("s_add_u32 s8, s6, 0x8000000"); R("s_addc_u32 s9, s7, 0"); R("s_mov_b32 s10, 0x100000"); R("s_mov_b32 s11, 0x20000")
        R("s_lshl_b32 s12, s2, 2"); R(f"s_add_u32 s12, s12, s{sW}"); R("s_lshl_b32 s12, s12, 7")
        R("v_mov_b32 v2, s12")
        R(f"v_cmp_eq_u32 vcc, 0, v{vST}")
        R("s_and_saveexec_b64 s[14:15], vcc")
        for k in range(1, n):
            R(f"s_sub_u32 s13, s{sSTAMP+2*k}, s{sSTAMP+30 if cfg.get('rt', 1) and k != len(stamps) + 5 else sSTAMP}")
            R("v_mov_b32 v3, s13")
            R(f"buffer_store_dword v3, v2, s[8:11], 0 offen offset:{4*(k-1)}")
        R(f"v_mov_b32 v3, s{sSTAMP+30}")
        R(f"buffer_store_dword v3, v2, s[8:11], 0 offen offset:{4*30}")
        R(f"v_mov_b32 v3, s{sSTAMP+32}")
        R(f"buffer_store_dword v3, v2, s[8:11], 0 offen offset:{4*31}")
    if stamps or cfg.get("padT") or cfg.get("padstep") is not None or cfg.get("fw"): R("s_waitcnt vmcnt(0)")
    if cfg.get("padT") or cfg.get("padstep") is not None:
        R("s_memrealtime s[72:73]"); R("s_waitcnt lgkmcnt(0)")
        if cfg.get("padG"):
            R("s_load_dwordx2 s[76:77], s[0:1], 48"); R("s_waitcnt lgkmcnt(0)"); R("s_mov_b32 s78, 256"); R("s_mov_b32 s79, 0x20000")
            R("s_not_b32 s75, s68"); R("v_mov_b32 v50, s75"); R(f"v_lshlrev_b32 v51, 20, v{vST}")
            R("buffer_atomic_umax v50, v51, s[76:79], 0 offen sc1"); R("s_waitcnt vmcnt(0)")
            R("s_add_u32 s74, s68, 4000")
            E.label("L_pad0")
            R("s_memrealtime s[72:73]"); R("s_waitcnt lgkmcnt(0)")
            R("s_sub_u32 s75, s72, s74"); R("s_cmp_lt_i32 s75, 0"); R("s_cbranch_scc1 L_pad0")
            R("v_mov_b32 v51, 0"); R("buffer_load_dword v50, v51, s[76:79], 0 offen sc1"); R("s_waitcnt vmcnt(0)")
            R("v_readfirstlane_b32 s68, v50"); R("s_nop 3"); R("s_not_b32 s68, s68")
        if cfg.get("padT"): R(f"s_add_u32 s74, s68, {cfg['padT']}")
        else: R("s_sub_u32 s74, s70, s68"); R(f"s_mul_i32 s74, s74, {cfg.get('padk', 1)}"); R("s_add_u32 s74, s74, s72")
        E.label("L_pad")
        R("s_memrealtime s[72:73]"); R("s_waitcnt lgkmcnt(0)")
        R("s_sub_u32 s75, s72, s74"); R("s_cmp_lt_i32 s75, 0"); R("s_cbranch_scc1 L_pad")
    E.label("L_exit")
    R("s_endpgm")
    fb_lines = []
    if cfg.get("fb", 1) and INK:
        import gen_c32
        keep = E.out; E.out = []
        E.label("L_fallback")
        R("s_waitcnt vmcnt(0) lgkmcnt(0)"); R("s_nop 15"); R("s_barrier")
        R(f"v_accvgpr_write_b32 a250, v{vFO}"); R(f"v_accvgpr_write_b32 a251, v{vFV}")
        R(f"v_lshrrev_b32 v0, 4, v{vST}"); R(f"s_lshl_b32 s40, s{sW}, 6"); R("v_add_u32 v0, s40, v0")
        E.out += gen_c32.build({"sB": sBB, "sH": sH, "kearly": 0})
        E.label("L_ftail")
        R("s_waitcnt vmcnt(0) lgkmcnt(0)"); R("s_nop 15"); R("s_barrier")
        R(f"v_lshlrev_b32 v{vST}, 4, v1")
        R(f"v_accvgpr_read_b32 v{vFO}, a250"); R(f"v_accvgpr_read_b32 v{vFV}, a251")
        R(f"v_and_b32 v{vFA}, {0x1f0 if CO else 0xf0}, v{vST}"); R(f"v_lshlrev_b32 v{vFA}, 3, v{vFA}")
        reduce_setup()
        E.vmq = []; E.vm_known = 1 << 30; E.vm_len = 0; E.dsq = []
        publish(7); nchk[0] = npoll[0]; poll(); check(7, 7)
        for p in range(7):
            for x in rloads(p): E.emit(x)
        for p in range(7): rsum(p)
        for q in range(4): rstore(q)
        R("s_waitcnt vmcnt(0)"); R("s_endpgm")
        fb_lines = E.out; E.out = keep
    for k, (need, mine) in enumerate(spins):
        E.label(f"L_spin{k}")
        R("s_mov_b32 s28, 0")
        E.label(f"L_spinl{k}")
        R(f"buffer_load_dword v{vFN}, v{vFA}, {srd(sSRD_FL)}, 0 offen sc1")
        R("s_waitcnt vmcnt(0)")
        check_cond(need)
        R(f"s_cbranch_scc1 L_spun{k}")
        R("s_add_u32 s28, s28, 1")
        R("s_and_b32 s29, s28, 7")
        R(f"s_cbranch_scc1 L_spinl{k}")
        publish(mine)
        R("s_cmp_lt_u32 s28, 400000")
        R(f"s_cbranch_scc1 L_spinl{k}")
        R(f"s_branch L_spun{k}")
    E.label("L_end")
    E.out += fb_lines
    if cfg.get("verbose"):
        print(" ".join(f"{u[0]}{uidx[u]}:{issued[u]/28:.1f}/{twait.get(u,0)/28:.1f}" for u in units if u in issued), file=sys.stderr)
    print(f"main: nops {E.nops}, over {over}, idle {idle}, instrs {E.pos}", file=sys.stderr)

    KD = """.p2align 6
.amdhsa_kernel %s
  .amdhsa_next_free_vgpr %d
  .amdhsa_next_free_sgpr %d
  .amdhsa_accum_offset %d
  .amdhsa_group_segment_fixed_size 0
  .amdhsa_kernarg_size 64
  .amdhsa_user_sgpr_count 2
  .amdhsa_user_sgpr_kernarg_segment_ptr 1
  .amdhsa_system_sgpr_workgroup_id_x 1
.end_amdhsa_kernel
"""
    if INK:
        E.out.append('.section .rodata,"a"\n' + KD % (KN, 512, 102, 256))
        return "\n".join(E.out)
    E.out.append(""".globl gqa_reduce_kernel
.p2align 8
.type gqa_reduce_kernel,@function
gqa_reduce_kernel:""")
    R("s_cmp_ge_u32 s2, 448")
    R("s_cbranch_scc1 LR_exit")
    R("s_load_dwordx2 s[4:5], s[0:1], 40")
    R("s_load_dwordx2 s[6:7], s[0:1], 56")
    R("v_lshrrev_b32 v2, 6, v0")
    R("v_and_b32 v1, 63, v0")
    R("v_readfirstlane_b32 s3, v2")
    R(f"s_mul_hi_u32 s8, s2, {(2**32 + 27)//28}")
    R("s_mul_i32 s9, s8, 28")
    R("s_sub_u32 s9, s2, s9")
    R(f"s_mul_hi_u32 s10, s9, {(2**32 + 6)//7}")
    R("s_mul_i32 s11, s10, 7")
    R("s_sub_u32 s11, s9, s11")
    R("v_lshlrev_b32 v5, 4, v1")
    R("v_and_b32 v3, 15, v1"); R("v_lshrrev_b32 v4, 4, v1")
    R("s_mov_b32 s24, 14336")
    R("s_cmp_eq_u32 s3, 3")
    R("s_cbranch_scc0 LR_a")
    R("v_lshlrev_b32 v3, 1, v1"); R("v_and_b32 v3, 15, v3"); R("v_lshrrev_b32 v4, 3, v1")
    R("s_mov_b32 s24, 896")
    R("v_mov_b32 v6, 0x40000000")
    R("v_cmp_lt_u32 vcc, 31, v1")
    R("s_nop 1")
    R("v_cndmask_b32 v5, v5, v6, vcc")
    R("v_cndmask_b32 v3, v3, v6, vcc")
    R("v_min_u32 v3, 0x10000, v3")
    E.label("LR_a")
    R("v_mul_u32_u24 v7, 896, v3")
    R("v_lshl_add_u32 v7, v4, 3, v7")
    R("s_mul_i32 s13, s8, 1605632")
    R("s_mul_i32 s14, s9, 3584")
    R("s_add_u32 s13, s13, s14")
    R("s_lshl_b32 s14, s3, 10")
    R("s_add_u32 s13, s13, s14")
    R("s_waitcnt lgkmcnt(0)")
    R("s_add_u32 s16, s6, s13"); R("s_addc_u32 s17, s7, 0"); R("s_mov_b32 s18, 1605632"); R("s_mov_b32 s19, 0x20000")
    for h in range(16):
        R(f"s_mov_b32 s15, {h*100352}")
        R(f"buffer_load_dwordx4 v[{8+4*h}:{11+4*h}], v5, s[16:19], s15 offen {cfg.get('rlfl','')}")
    R("s_mul_i32 s13, s8, 100352")
    R("s_add_u32 s20, s4, s13"); R("s_addc_u32 s21, s5, 0"); R("s_mov_b32 s22, 100352"); R("s_mov_b32 s23, 0x20000")
    R("s_mul_i32 s14, s3, 28672")
    R("s_lshl_b32 s15, s11, 7"); R("s_add_u32 s14, s14, s15")
    R("s_lshl_b32 s15, s10, 5"); R("s_add_u32 s14, s14, s15")
    R("s_add_u32 s24, s24, s14")
    for h in range(16):
        R(f"s_waitcnt vmcnt({15-h})")
        for r in range(4):
            src = 8 + 4 * h + r
            if h == 0:
                R(f"v_lshlrev_b32 v{72+2*r}, 16, v{src}"); R(f"v_and_b32 v{73+2*r}, 0xffff0000, v{src}")
            else:
                R(f"v_lshlrev_b32 v80, 16, v{src}"); R(f"v_and_b32 v81, 0xffff0000, v{src}")
                R(f"v_add_f32 v{72+2*r}, v{72+2*r}, v80"); R(f"v_add_f32 v{73+2*r}, v{73+2*r}, v81")
    for r in range(4): R(f"v_cvt_pk_bf16_f32 v{84+r}, v{72+2*r}, v{73+2*r}")
    R("buffer_store_dwordx2 v[84:85], v7, s[20:23], s14 offen")
    R("buffer_store_dwordx2 v[86:87], v7, s[20:23], s24 offen")
    if stamps:
        R("s_waitcnt vmcnt(0)")
        R("s_memrealtime s[24:25]")
        R("s_waitcnt lgkmcnt(0)")
        R("s_add_u32 s16, s6, 0x8100000"); R("s_addc_u32 s17, s7, 0"); R("s_mov_b32 s18, 0x100000"); R("s_mov_b32 s19, 0x20000")
        R("s_lshl_b32 s12, s2, 2"); R("v_mov_b32 v2, s12"); R("v_mov_b32 v3, s24")
        R("v_cmp_eq_u32 vcc, 0, v0")
        R("s_and_saveexec_b64 s[14:15], vcc")
        R("buffer_store_dword v3, v2, s[16:19], 0 offen")
    R("s_waitcnt vmcnt(0)")
    E.label("LR_exit")
    R("s_endpgm")
    E.out.append(""".section .rodata,"a"
.p2align 6
.amdhsa_kernel gqa_main_kernel
  .amdhsa_next_free_vgpr 512
  .amdhsa_next_free_sgpr 102
  .amdhsa_accum_offset 256
  .amdhsa_group_segment_fixed_size 0
  .amdhsa_kernarg_size 64
  .amdhsa_user_sgpr_count 2
  .amdhsa_user_sgpr_kernarg_segment_ptr 1
  .amdhsa_system_sgpr_workgroup_id_x 1
.end_amdhsa_kernel
.p2align 6
.amdhsa_kernel gqa_reduce_kernel
  .amdhsa_next_free_vgpr 88
  .amdhsa_next_free_sgpr 32
  .amdhsa_accum_offset 88
  .amdhsa_group_segment_fixed_size 0
  .amdhsa_kernarg_size 64
  .amdhsa_user_sgpr_count 2
  .amdhsa_user_sgpr_kernarg_segment_ptr 1
  .amdhsa_system_sgpr_workgroup_id_x 1
.end_amdhsa_kernel
""")
    return "\n".join(E.out)

if __name__ == "__main__":
    ap = argparse.ArgumentParser()
    ap.add_argument("-o", default="a16.s")
    ap.add_argument("kv", nargs="*")
    a = ap.parse_args()
    cfg = {}
    for kv in a.kv:
        k, v = kv.split("=", 1)
        try: cfg[k] = eval(v)
        except Exception: cfg[k] = v
    txt = build(cfg)
    open(a.o, "w").write(txt)
```

```python
import sys, math, struct, argparse

def f2u(x): return struct.unpack("<I", struct.pack("<f", x))[0]
def V(lo, n=1): return {("v", lo + i) for i in range(n)}
def Ac(lo, n=1): return {("a", lo + i) for i in range(n)}
def vr(lo, n): return f"v[{lo}:{lo+n-1}]" if n > 1 else f"v{lo}"
def ar(lo, n): return f"a[{lo}:{lo+n-1}]"
INF = 1 << 30

class Ins:
    def __init__(s, text, kind, rd=(), wr=(), cost=4, after=-1, before=INF, tag=None, rdc=(), pre=None, res=None, passes=4):
        s.text, s.kind, s.rd, s.wr, s.cost = text, kind, set(rd), set(wr), cost
        s.after, s.before, s.tag, s.rdc = after, before, tag, set(rdc)
        s.pre = pre
        s.res = res
        s.passes = passes

class Emitter:
    def __init__(s):
        s.out = []; s.pos = 0
        s.dsq = []
        s.vmq = []
        s.lastw = {}; s.lastc = {}; s.lastst = {}
        s.nops = 0; s.skip = None
    def raw(s, text, n=1):
        s.out.append("    " + text); s.pos += n
    def label(s, l): s.out.append(l + ":")
    def comment(s, c): s.out.append("    ; " + c)
    def need_nops(s, i):
        need = 0
        def req(p, d):
            nonlocal need
            need = max(need, d - (s.pos - p - 1))
        for r in i.rd | i.wr:
            if r in s.lastw:
                k, p = s.lastw[r]
                if k == "mfma":
                    if i.kind == "mfma":
                        if r in i.rd and r not in i.rdc: req(p, 8)
                    else: req(p, 8)
                if r in i.rd:
                    if k in ("valu", "trans") and i.kind == "mfma": req(p, 2)
                    if k == "trans" and i.kind in ("valu", "trans", "perm", "vmem", "ds"): req(p, 1)
                    if k in ("valu", "trans") and i.kind == "perm": req(p, 2)
                    if k == "salu" and r == ("s", "m0") and i.kind == "vmem": req(p, 1)
        if i.kind in ("valu", "trans", "perm"):
            for r in i.wr:
                if r in s.lastc: req(s.lastc[r], 3)
                if r in s.lastst: req(s.lastst[r], 2)
        if i.kind == "mfma":
            for r in i.wr:
                if r in s.lastst: req(s.lastst[r], 2)
        return need
    def ds_idx(s, i):
        idx = -1
        for k, (d, _) in enumerate(s.dsq):
            if d & (i.rd | i.wr): idx = k
        return idx
    def wait_ds_idx(s, idx):
        n = len(s.dsq) - idx - 1
        if n > 15:
            idx += n - 15; n = 15
        s.raw(f"s_waitcnt lgkmcnt({n})")
        s.dsq = s.dsq[idx + 1:]
    def wait_ds_res(s, pred):
        idx = -1
        for k, (_, r) in enumerate(s.dsq):
            if r is not None and pred(r): idx = k
        if idx >= 0: s.wait_ds_idx(idx)
    def emit(s, i):
        idx = s.ds_idx(i)
        if idx >= 0: s.wait_ds_idx(idx)
        if i.kind == "ds" and len(s.dsq) >= 13: s.wait_ds_idx(len(s.dsq) - 1 - 9)
        n = s.need_nops(i)
        if n > 0:
            s.nops += n
            while n > 0:
                k = min(n, 16); s.raw(f"s_nop {k-1}", k); n -= k
        if not (s.skip and s.skip(i)): s.out.append("    " + i.text)
        p = s.pos; s.pos += 1
        kind = "valu" if i.kind == "perm" else i.kind
        for r in i.wr: s.lastw[r] = (kind, p)
        if i.kind == "mfma":
            for r in i.rdc: s.lastc[r] = p
        if i.kind == "ds": s.dsq.append((set(i.wr), i.res))
        if i.kind == "vmem":
            s.vmq.append(i.tag)
            if "buffer_store" in i.text:
                for r in i.rd: s.lastst[r] = p
    def wait_vm(s, tags, cnt=4):
        idx = -1
        for k, t in enumerate(s.vmq):
            if t in tags: idx = k
        for t in tags:
            assert s.vmq.count(t) == cnt, f"unit {t} not fully issued before its wait ({s.vmq.count(t)})"
        n = min(63, len(s.vmq) - idx - 1)
        if n < getattr(s, "vm_known", 1 << 30) + (len(s.vmq) - getattr(s, "vm_len", 0)):
            s.raw(f"s_waitcnt vmcnt({n})")
            s.vm_known = n; s.vm_len = len(s.vmq)

RING = 24576; NU = 6; UNIT = 4096
EB = 4 * RING
LB = EB + 57344
vLANE = 53
dK = 1
dV = 5
dWO = 9
vST = 10
vST2 = 5
rK = 12
rV = 16
rWO = 20
rE = 22
wP = 23
wO = 24
vL = 25
SACC = [32, 60]; PR = [88, 116]; OACC = 144
dX = 116
dWQ = 120
rX = 124
rWQ = 126
wQ = 130
AQ = 0
AK = 224
sSRD_X, sSRD_WQ, sSRD_K, sSRD_V, sSRD_WO, sSRD_WS = 16, 20, 24, 28, 32, 36
sRB = 42; sOFF = 43; sC = 44; sXB = 45; sW = 3; sST = 47
sSTAMP = 68
sSRD_FL, sSRD_FM, sSRD_PB, sSRD_OUT = 8, 12, 60, 64
sH = 56; sRO = 57; sBB = 58
FLOFF = 0x2000000
sSTO = 48
sPFO = 55
sW2K = 59
sSQ = 47; sSX = 41
vPFK = 11; vPFV = 11
def srd(n): return f"s[{n}:{n+3}]"
assert vL + 7 <= 32

BEST = dict(urg=0.8, gate=0, v1=22, v2=40, kat=16, wopfq=-4, g0=8, rate2=4, rate=7.5, tgap=14, q128=1, rot=1, kmap=1, rotsh=2, stdl=14)
def build(cfg):
    cfg = {**BEST, **cfg}
    BUD = cfg.get("budget", 8)
    stamps = cfg.get("stamps", [])
    ntKV = "nt" if cfg.get("ntkv", 1) else ""
    ntW = "nt" if cfg.get("ntw", 0) else ""
    ntX = "nt" if cfg.get("ntx", 0) else ""
    stfl = cfg.get("stfl", "sc1")
    DMIN = cfg.get("dmin", 8)
    E = Emitter(); R = E.raw
    def s_sw(): R(f"s_and_b32 s40, s{sH}, 3" if cfg.get("swl", 1) else f"s_lshr_b32 s40, s{sH}, 2")
    def s_qd(): R(f"s_lshr_b32 s40, s{sH}, 2" if cfg.get("swl", 1) else f"s_and_b32 s40, s{sH}, 3")
    BL = 56
    Q0, S0, P0, O0, END = 0, 7 * BL, 15 * BL, 23 * BL, 30 * BL

    units = [("WQ", t) for t in range(14)] + [("K", i, h) for i in range(8) for h in range(2)] \
          + [("V", k) for k in range(16)] + [("WO", p, kh) for p in range(7) for kh in range(2)]
    uidx = {u: k for k, u in enumerate(units)}
    ESLOT = {8: 0, 9: 1, 10: 2, 11: 3}
    def uoff(u):
        if u[0] == "WO" and 2 * u[1] + u[2] >= 12: return ((uidx[u] - 10) % NU) * UNIT
        return (uidx[u] % NU) * UNIT
    rWOE = rK

    M = []
    def qa(j, ks, mt): return 32 * (j & 1) + 16 * ks + 4 * mt
    def qb(j, ks, nu): return 64 + 56 * (j & 1) + 28 * ks + 4 * nu
    def oacc(mt, nu): return OACC + 4 * (4 * nu + mt)
    first_use = {}; last_use = {}
    def use(name, i):
        first_use.setdefault(name, i); last_use[name] = i
    done_at = {}
    MQ = cfg.get("mq", 1)
    def qaq(j, ks, mt): return 176 + 16 * ks + 4 * mt if (MQ and j == 6) else qa(j, ks, mt)
    for js in ([[0], [1], [2], [3], [4], [5, 6]] if MQ else [[j] for j in range(7)]):
        for nu in range(7):
            for mt in range(4):
                for j in js:
                    for ks in range(2):
                        i = len(M)
                        M.append((oacc(mt, nu), qaq(j, ks, mt), qb(j, ks, nu), j == 0 and ks == 0))
                        use(("QA", j, ks, mt), i); use(("QB", j, ks, nu), i); done_at[("Q", mt, nu)] = i
    STGX = cfg.get("stgx", 0)
    def slotmap(lo, hi):
        busy = {k: -1 for k in range(56)}
        for i in range(lo, hi):
            for r in (M[i][1], M[i][2]):
                if not isinstance(r, tuple) and r < 224: busy[r // 4] = i
        order_ = sorted(range(56), key=lambda k: (busy[k], k))
        return {(kap, nu): AQ + 4 * order_[nu * 8 + kap] for nu in range(7) for kap in range(8)}, busy
    if STGX: QS, QBUSY = slotmap(0, len(M))
    else: QS, QBUSY = {(kap, nu): AQ + 4 * (kap * 7 + nu) for nu in range(7) for kap in range(8)}, None
    def ka(step, k):
        if STGX and step == 2: return ("v", OACC + 4 * k)
        return AK + 16 * (step & 1) + 4 * k
    SX = OACC + 112 - 28
    sbuf = [SACC[0], SACC[1], SX, SACC[0], SACC[1], SX, SACC[0], SACC[1]] if cfg.get("s3", 1) else [SACC[b & 1] for b in range(8)]
    for b in range(8):
        seq = [(h, nu, k) for h in range(2) for nu in range(7) for k in range(4)]
        if STGX and b == 0: seq = [(h, nu, k) for nu in range(7) for h in range(2) for k in range(4)]
        for h, nu, k in seq:
            i = len(M)
            M.append((sbuf[b] + 4 * nu, ka(2 * b + h, k), QS[(4 * h + k, nu)], h == 0 and k == 0))
            use(("SA", b, h, k), i); use(("SB", 4 * h + k, nu), i); done_at[("S", b, nu)] = i
            use(("Sacc", b, nu), i)
    qdie = sorted(range(56), key=lambda k: max(last_use[("SB",) + kn] for kn, r in QS.items() if r == AQ + 4 * k))
    def va(j, ks, mt): return AQ + 4 * qdie[(22 * (j & 1)) + 4 * ks + mt] if STGX else qa(j, ks, mt)
    def vb(j, ks, nu): return AQ + 4 * qdie[(22 * (j & 1)) + 8 + 2 * nu + ks] if STGX else qb(j, ks, nu)
    for j in range(8):
        for nu in range(7):
            for mt in range(4):
                for ks in range(2):
                    i = len(M)
                    M.append((oacc(mt, nu), va(j, ks, mt), vb(j, ks, nu), j == 0 and ks == 0))
                    use(("VA", j, ks, mt), i); use(("VB", j, ks, nu), i); done_at[("O", mt, nu)] = i
    if STGX: OS, OBUSY = slotmap(P0, len(M))
    else: OS, OBUSY = QS, None
    def oa(p, kap): return ("a", AK + 4 * kap) if p % 2 == 0 else ("v", PR[0] + 4 * kap)
    for p in range(7):
        for nu in range(7):
            for kap in range(8):
                i = len(M)
                M.append((SACC[p & 1] + 4 * nu, oa(p, kap), OS[(kap, nu)], kap == 0))
                use(("OA", p, kap >> 2, kap & 3), i); use(("OB", kap, nu), i); done_at[("Y", p, nu)] = i
                use(("Yacc", p, nu), i)
    assert len(M) == END
    def mfma(i):
        acc, a, b, cz = M[i]
        Cs = set() if cz else V(acc, 4)
        if not isinstance(a, tuple): a = ("a", a)
        at, as_ = (ar(a[1], 4), Ac(a[1], 4)) if a[0] == "a" else (vr(a[1], 4), V(a[1], 4))
        return Ins(f"v_mfma_f32_16x16x32_bf16 {vr(acc,4)}, {at}, {ar(b,4)}, {'0' if cz else vr(acc,4)}", "mfma",
                   rd=as_ | Ac(b, 4) | Cs, wr=V(acc, 4), rdc=Cs, cost=8)

    ev_done = set()
    events = {}
    def add_event(idx, name, fn): events.setdefault(idx, []).append((name, fn))
    def after_ev(*names): return lambda: all(n in ev_done for n in names)

    M0 = {("s", "m0")}
    reads_left = {}
    last_read = {}; now = [0]
    def res_idle(res):
        return reads_left.get(res, 0) == 0 and not any(r == res for _, r in E.dsq)

    def dma_unit(u, pre=None):
        L = []
        k = u[0]
        if k == "X":
            L.append(Ins(f"s_add_u32 m0, s{sXB}, {(u[1] % 4) * 16384}", "salu", wr=M0, pre=pre))
        elif k == "WO" and 2 * u[1] + u[2] in ESLOT:
            L.append(Ins(f"s_add_u32 m0, s{sXB}, {ESLOT[2 * u[1] + u[2]] * 16384}", "salu", wr=M0, pre=pre))
        else:
            L.append(Ins(f"s_add_u32 m0, s{sRB}, {uoff(u)}", "salu", wr=M0, pre=pre))
        def smov(val): L.append(Ins(f"s_mov_b32 s{sOFF}, {val}", "salu"))
        def sxor(val):
            smov(val)
        def ld(vreg, sr, j, fl):
            L.append(Ins(f"buffer_load_dwordx4 v{vreg}, {srd(sr)}, s{sOFF} offen offset:{j*1024} {fl} lds".replace("  ", " "),
                         "vmem", rd=M0 | V(vreg), tag=u, cost=8))
        if k == "X":
            if cfg.get("rot"): L.append(Ins(f"s_mov_b32 s{sOFF}, s{sSTO+u[1]}", "salu"))
            else: smov(128 * u[1])
            for j in range(4): ld(dX + j, sSRD_X, j, ntX)
        elif k == "WQ":
            if cfg.get("rot"):
                L.append(Ins(f"s_lshl_b32 s{sOFF}, s{sSTO+(u[1]>>1)}, 12", "salu"))
                if u[1] & 1: L.append(Ins(f"s_bitset1_b32 s{sOFF}, 18", "salu"))
            else: smov(u[1] * 32 * 8192)
            for j in range(4): ld(dWQ + j, sSRD_WQ, j, ntW)
        elif k == "K":
            sxor((u[1] >> 1) * 65536 + (u[1] & 1) * 8192 + u[2] * 256)
            for j in range(4): ld(dK + j, sSRD_K, j, ntKV)
        elif k == "V":
            sxor(u[1] * 16384)
            for j in range(4): ld(dV + j, sSRD_V, j, ntKV)
        elif k == "WO":
            for j in range(4):
                smov(u[2] * 128 * 896 + u[1] * 128 + j * (8 * 896 - 1024)); ld(dWO, sSRD_WO, j, "nt" if cfg.get("nto") else "")
        return L

    def rd(kind, dst, n, areg, off, res, after, before, pre=None):
        assert 0 <= off < 65536
        reads_left[res] = reads_left.get(res, 0) + 1
        if not isinstance(dst, tuple): dst = ("a", dst)
        dt, ds_ = (ar(dst[1], n), Ac(dst[1], n)) if dst[0] == "a" else (vr(dst[1], n), V(dst[1], n))
        return Ins(f"{kind} {dt}, v{areg} offset:{off}", "ds", rd=V(areg), wr=ds_, res=res,
                   after=after, before=max(before, after + 1), pre=pre, tag="read")

    RA = []; RB = []
    MID = cfg.get("mid", 40)
    A1, A2 = cfg.get("a1", 6), cfg.get("a2", 30)
    twait = {}
    def vmwait(tags): return (lambda: None) if cfg.get("novmw") else (lambda: E.wait_vm(tags))
    def bar(tags=(), wres=None, idle=()):
        def f():
            for r in idle: assert reads_left.get(r, 0) == 0, f"barrier releases {r} with reads pending"
            if wres is not None:
                assert not any(x.kind == "ds" and x.res is not None and wres(x.res) for x in VS), "publishing barrier before all writes were emitted"
            E.wait_ds_res(lambda r: r in idle or (wres is not None and wres(r)))
            if tags: E.wait_vm(list(tags))
            if not cfg.get("nobar"): R("s_barrier")
        return f
    def areads(base, j, kind, fu, areg, estride, busy=None, qa=qa):
        for ks in range(2):
            u = (kind, 2 * j + ks)
            at = base + (j - 1) * BL + ((A1, A2)[ks] if base == 0 else (cfg.get("v1", 6), cfg.get("v2", 30))[ks])
            if base == 0 and j == 0: at = -1
            if base == 0 and MQ and j == 5: at = 4 * BL + (0, 10)[ks]
            if base == 0 and MQ and j == 6: at = 4 * BL + (22, 34)[ks]
            name = ("Wa", u)
            add_event(at, name, vmwait([u])); twait[u] = at
            for mt in range(4):
                a0 = at if busy is None else max(at, busy(qa(j, ks, mt)))
                for e in range(2):
                    ar_, ex_ = (areg + (mt >> 1), 8 * (mt & 1)) if (kind == "WQ" and cfg.get("q128")) else (areg + mt, 0)
                    RA.append(rd("ds_read_b64_tr_b16", qa(j, ks, mt) + 2 * e, 2, ar_, uoff(u) + e * estride + ex_, u, a0,
                                 first_use[(fu, j, ks, mt)] - DMIN, after_ev(name)))
    XE = (5 * BL + cfg.get("xem", 18)) if MQ else (6 * BL + cfg.get("xe", 12))
    for j in range(7):
        at = (j - 1) * BL + MID if j > 0 else -1
        if MQ and j == 5: at = 4 * BL + 6
        if MQ and j == 6: at = 4 * BL + 44
        name = ("Bx", j)
        add_event(at, name, bar(tags=[("X", j)], idle=[("X", j - 1)] if 0 < j < 4 else []))
        areads(0, j, "WQ", "QA", rWQ, 512, qa=qaq)
        for nu in range(7):
            for ks in range(2):
                a0 = at
                if j >= 2: a0 = max(at, last_use[("QB", j - 2, ks, nu)])
                RB.append(rd("ds_read_b128", qb(j, ks, nu), 4, rX + ks, (j % 4) * 16384 + nu * 2048, ("X", j), a0,
                             min(first_use[("QB", j, ks, nu)] - DMIN, j * BL + MID - 6, XE - 4), after_ev(name)))
    add_event(XE, "Bxe", bar(idle=[("X", 3), ("X", 4), ("X", 5), ("X", 6)]))
    for st in range(16):
        b, h = st >> 1, st & 1
        at = S0 + (st - 1) * 28 + cfg.get("kat", 10)
        if STGX and st == 0: at = S0 - 40
        if STGX and st == 1: at = S0 - 20
        name = ("Wk", st)
        add_event(at, name, vmwait([("K", b, h)])); twait[("K", b, h)] = at
        RA += [rd("ds_read_b128", ka(st, k), 4, rK + k, uoff(("K", b, h)), ("K", b, h), at,
                  first_use[("SA", b, h, k)] - DMIN, after_ev(name)) for k in range(4)]
    QST = cfg.get("qst", [(-24, 3), (0, 5), (22, 7)]) if STGX else [(-1, 7)]
    qdead = {}
    lo_ = 0
    for n_, (pos, hi_) in enumerate(QST):
        add_event(S0 + pos, ("Bq", n_), bar(wres=(lambda h_: (lambda r: r[0] == "qw" and r[1] < h_))(hi_)))
        for nu in range(lo_, hi_): qdead[nu] = (S0 + pos, n_)
        lo_ = hi_
    for kap, nu in sorted(QS, key=lambda kn: first_use[("SB",) + kn]):
        a0 = qdead[nu][0]
        if STGX: a0 = max(a0, QBUSY[(QS[(kap, nu)] - AQ) // 4])
        RB.append(rd("ds_read_b128", QS[(kap, nu)], 4, rE, (kap * 7 + nu) * 1024, ("q",), a0,
                     first_use[("SB", kap, nu)] - DMIN, after_ev(("Bq", qdead[nu][1]))))
    add_event(S0 + BL + 4, "Bqe", bar(idle=[("q",)]))
    def qbusy(reg): return max(last_use[("SB",) + kn] for kn, r in QS.items() if r == reg)
    for j in range(8):
        at = P0 + (j - 1) * BL + MID
        c = j >> 1
        name = ("Bp", j & ~1)
        if j == 0: add_event(at, name, bar(wres=lambda r: r in (("pw", 0), ("pw", 1))))
        elif j == 2: add_event(at, name, bar(idle=[("P", 0)]))
        elif j == 4: add_event(at, name, bar(idle=[("P", 1)], wres=lambda r: r == ("pw", 2)))
        elif j == 6: add_event(at, name, bar(idle=[("P", 2)], wres=lambda r: r in (("pw", 3), ("lw",))))
        areads(P0, j, "V", "VA", rV, 2048, qbusy if j < 2 else None, qa=va)
        if j & 1: at = P0 + (j - 1) * BL + cfg.get("mid2", 30)
        for nu in range(7):
            for ks in range(2):
                a0 = max(at, qbusy(vb(j, ks, nu))) if j < 2 else at
                wprod = 2 * (j & 1) + ks
                RB.append(rd("ds_read_b128", vb(j, ks, nu), 4, rE, (c & 1) * 28672 + (wprod * 7 + nu) * 1024, ("P", c), a0,
                             min(first_use[("VB", j, ks, nu)] - DMIN, P0 + j * BL + (MID - 6 if j < 7 else cfg.get("xe", 12) - 4)), after_ev(name)))
    add_event(P0 + 7 * BL + cfg.get("xe", 12), "Bpe", bar(idle=[("P", 3)]))
    OST = cfg.get("ost", [(-18, 3), (0, 5), (20, 7)]) if STGX else [(-1, 7)]
    wo = lambda p: [("WO", p, 0), ("WO", p, 1)]
    odead = {}; lo_ = 0
    nb = len(OST)
    for n_, (pos, hi_) in enumerate(OST):
        tags = []; idle = []
        if STGX:
            if n_ == 0: tags = wo(0)
            if n_ == 1: idle = wo(0)
            if n_ == 2: tags = wo(1)
        else: idle = wo(0)
        add_event(O0 + pos, ("Box", n_), bar(wres=(lambda h_: (lambda r: r[0] == "ow" and r[1] < h_))(hi_), tags=tags, idle=idle))
        for nu in range(lo_, hi_): odead[nu] = (O0 + pos, n_)
        lo_ = hi_
    REL0 = ("Box", 1 if STGX else 0)
    for p in range(7):
        at = O0 + (p - 1) * BL + cfg.get("oat", 24)
        name = ("Bo", p)
        if STGX and p == 0: name, at = ("Box", 0), O0 + OST[0][0]
        elif STGX and p == 1: name, at = ("Box", 2), O0 + OST[2][0]
        elif p == 0:
            at = O0 - BL + cfg.get("oat0", 38); add_event(at, name, bar(tags=wo(p)))
        elif p == 1:
            at = O0 + cfg.get("oat1", 20); add_event(at, name, bar(tags=wo(p)))
        elif p == 2:
            at = O0 + BL - 2
            add_event(at, name, bar(tags=wo(p), idle=[("o",)] + wo(1)))
        else: add_event(at, name, bar(tags=wo(p)))
        twait[("WO", p, 0)] = twait[("WO", p, 1)] = at
        if p == 2: at = O0 + BL + 8
        for h in range(2):
            st = 2 * p + h
            for k in range(4):
                for e in range(2):
                    if st in ESLOT: areg, off = rWOE, ESLOT[st] * 16384 + k * 4096 + e * 2048
                    else: areg, off = rWO + (k >> 1), (k & 1) * RING + uoff(("WO", p, h)) + e * 2048
                    d = oa(p, 4 * h + k)
                    bef = first_use[("OA", p, h, k)] - DMIN
                    if p == 0: bef = min(bef, O0 - 5)
                    if p == 1: bef = min(bef, at + ((O0 + 48 - at) * (8 * h + 2 * k + e)) // 16 + 2)
                    RA.append(rd("ds_read_b64_tr_b16", (d[0], d[1] + 2 * e), 2, areg, off, ("WO", p, h), at, bef, after_ev(name)))
    for nu in range(7):
        for kap in range(8):
            a0 = odead[nu][0]
            if STGX: a0 = max(a0, OBUSY[(OS[(kap, nu)] - AQ) // 4])
            RB.append(rd("ds_read_b128", OS[(kap, nu)], 4, rE, (kap * 7 + nu) * 1024, ("o",), a0,
                         first_use[("OB", kap, nu)] - DMIN, after_ev(("Box", odead[nu][1]))))

    DQ = []
    order = []
    xs = [("X", j) for j in range(7)]
    order = [xs[0], units[0], units[1], xs[1], units[2], units[3], xs[2], units[4], units[5], xs[3]]
    k = 6
    for j in range(4, 7):
        order += [units[k], units[k + 1], xs[j]]; k += 2
    order += units[k:]
    if cfg.get("xlast"):
        order = [xs[0], units[0], units[1]]
        for j in range(1, 7): order += [units[2 * j], units[2 * j + 1], xs[j]]
        order += units[14:]
    for u in order:
        if u[0] == "X":
            pre = after_ev(("Bx", u[1] - 3)) if u[1] >= 4 else None
        else:
            k = uidx[u]
            if k < NU: pre = None
            elif units[k - NU][0] == "WO":
                st = 2 * u[1] + u[2]
                pre = after_ev(REL0) if st < 8 else after_ev(("Bo", 2))
            else:
                pre = (lambda r: (lambda: reads_left[r] == 0 and now[0] - last_read[r] >= cfg.get("rel", 7)))(units[k - NU])
        L = dma_unit(u, pre)
        if cfg.get("look") and u[0] in cfg.get("lookk", ("K", "V")):
            k = uidx[u]
            n_ = k - 14
            if n_ >= cfg.get("nfree", 7):
                L[0].after = min(int(S0 + cfg.get("poff", 10) + (n_ - cfg.get("nfree", 7)) * cfg.get("pace", 35)), twait[units[k - cfg["look"]]])
        if u[0] != "X" and uidx[u] >= NU and units[uidx[u] - NU][0] != "WO": L[0].res = units[uidx[u] - NU]
        if cfg.get("rate") and u[0] in ("K", "V", "WO") and uidx[u] < 46 + cfg.get("nwo", 6):
            m_ = 4 * (uidx[u] - 14)
            lds_ = [x for x in L if x.kind == "vmem"]
            for j_, x in enumerate(lds_):
                mm = m_ + j_
                t_ = cfg.get("g0", 8.5) * 28 + min(mm, 128) * cfg["rate"] + max(0, mm - 128) * cfg.get("rate2", cfg["rate"])
                if t_ > S0: t_ -= cfg.get("tgap", 0)
                x.after = int(t_)
            L[0].after = lds_[0].after - 4
        if u[0] == "V" and u[1] in cfg.get("dummy", []):
            t_ = cfg["dummy"].index(u[1]) + 6
            ex = []
            va_ = [x for x in L if x.kind == "vmem"][0].after
            for j in range(4):
                ex.append(Ins(f"s_mov_b32 s{sOFF}, {(t_ & 1) * 128 * 896 + (t_ >> 1) * 128 + j * (8 * 896 - 1024)}", "salu"))
                ex.append(Ins(f"buffer_load_dwordx4 v{dWO}, {srd(sSRD_WO)}, s{sOFF} offen offset:{j*1024} lds", "vmem", rd=M0 | V(dWO), tag=("dm",), cost=8, after=va_ - 6))
            L[0].after -= 6
            L[1:1] = ex
        if u[0] == "WO" and 2 * u[1] + u[2] < len(cfg.get("woat", [])): L[0].after = O0 + cfg["woat"][2 * u[1] + u[2]]
        if cfg.get("wopfq") is not None and u[0] != "X" and uidx[u] == 46 + cfg["wopfq"]:
            L.insert(0, Ins(f"buffer_load_dword v{vPFV}, v{vPFV}, {srd(sSRD_WO)}, 0 offen", "vmem", rd=V(vPFV), tag=("pf",), cost=8, after=O0 + cfg.get("pfat", -10000)))
        DQ.append((u, L))

    def valu(text, rd_, wr_, after, before=INF, kind="valu", cost=4, pre=None):
        return Ins(text, kind, rd=rd_, wr=wr_, after=after, before=before, cost=cost, pre=pre)
    VS = []
    for nu in range(7 if cfg.get("q128") else 0):
        dl = qdead[nu][0] + 1 - (cfg.get("wlead", 3) if STGX else 0)
        for al in range(2):
            r = oacc(2 * al, nu)
            for x in range(8): VS.append(valu(f"v_mul_f32 v{r+x}, s{sC}, v{r+x}", V(r + x), V(r + x), done_at[("Q", 2 * al + (x >> 2), nu)], dl))
            aft = done_at[("Q", 2 * al + 1, nu)]
            for x in range(4):
                VS.append(valu(f"v_cvt_pk_bf16_f32 v{r+x}, v{r+2*x}, v{r+2*x+1}", V(r + 2 * x, 2), V(r + x), aft, dl))
            VS.append(Ins(f"ds_write_b128 v{wO}, {vr(r,4)} offset:{(al*7+nu)*1024}", "ds", rd=V(wO) | V(r, 4), res=("qw", nu),
                          after=aft, before=dl, pre=after_ev("Bxe"), cost=20))
    for nu in range(0 if cfg.get("q128") else 7):
        wr = []
        for mt in range(4):
            aft = done_at[("Q", mt, nu)]
            r = oacc(mt, nu)
            for x in range(4): VS.append(valu(f"v_mul_f32 v{r+x}, s{sC}, v{r+x}", V(r + x), V(r + x), aft, qdead[nu][0] + 1 - (cfg.get("wlead", 3) if STGX else 0)))
            VS += wr
            VS.append(valu(f"v_cvt_pk_bf16_f32 v{r}, v{r}, v{r+1}", V(r, 2), V(r), aft, qdead[nu][0] + 1 - (cfg.get("wlead", 3) if STGX else 0)))
            VS.append(valu(f"v_cvt_pk_bf16_f32 v{r+1}, v{r+2}, v{r+3}", V(r + 2, 2), V(r + 1), aft, qdead[nu][0] + 1 - (cfg.get("wlead", 3) if STGX else 0)))
            off = ((mt >> 1) * 7 + nu) * 1024 + (mt & 1) * 512
            wr = [Ins(f"ds_write_b64 v{wQ}, {vr(r,2)} offset:{off}", "ds", rd=V(wQ) | V(r, 2), res=("qw", nu),
                      after=aft, before=qdead[nu][0] + 1 - (cfg.get("wlead", 3) if STGX else 0), pre=after_ev("Bxe"), cost=12)]
        VS += wr
    def pw(c, nu, hf, aft, bef, evn):
        r = PR[c & 1] + 4 * nu + 2 * hf
        return Ins(f"ds_write_b64 v{wP}, {vr(r,2)} offset:{(c&1)*28672+nu*1024+8*hf}", "ds", rd=V(wP) | V(r, 2), res=("pw", c),
                   after=aft, before=bef, pre=after_ev(evn), cost=12)
    pend = []
    WS = []
    pvfirst = {}
    for i in range(P0, P0 + BL): pvfirst.setdefault(M[i][0], i)
    for b in range(8):
        c, hf = b >> 1, b & 1
        for nu in range(7):
            acc = sbuf[b] + 4 * nu
            aft = done_at[("S", b, nu)]
            nxt = [bb for bb in range(b + 1, 8) if sbuf[bb] == sbuf[b]]
            pdead = (P0 - BL + MID, P0 - BL + MID, P0 + 3 * BL + MID, P0 + 5 * BL + MID)[c]
            if nxt: bef = first_use[("Sacc", nxt[0], nu)]
            elif acc in pvfirst: bef = pvfirst[acc]
            else: bef = INF
            bef = min(bef, pdead - 2)
            pr = PR[c & 1] + 4 * nu + 2 * hf
            ex = [valu(f"v_exp_f32 v{acc+x}, v{acc+x}", V(acc + x), V(acc + x), aft, bef, kind="trans", cost=8) for x in range(4)]
            if b == 0:
                ad = [valu(f"v_add_f32 v{vL+nu}, v{acc}, v{acc+1}", V(acc, 2), V(vL + nu), aft, bef)]
                ad += [valu(f"v_add_f32 v{vL+nu}, v{vL+nu}, v{acc+x}", V(vL + nu) | V(acc + x), V(vL + nu), aft, bef) for x in (2, 3)]
                ad = [None] + ad
            else:
                ad = [valu(f"v_add_f32 v{vL+nu}, v{vL+nu}, v{acc+x}", V(vL + nu) | V(acc + x), V(vL + nu), aft, bef) for x in range(4)]
            cv = [valu(f"v_cvt_pk_bf16_f32 v{pr}, v{acc}, v{acc+1}", V(acc, 2), V(pr), aft, bef),
                  valu(f"v_cvt_pk_bf16_f32 v{pr+1}, v{acc+2}, v{acc+3}", V(acc + 2, 2), V(pr + 1), aft, bef)]
            tail = [ad[0], cv[0], ad[1], cv[1], ad[2], ad[3]]
            tail = [x for x in tail if x is not None]
            if cfg.get("pw128"):
                if hf == 1:
                    r = PR[c & 1] + 4 * nu
                    tail.append(Ins(f"ds_write_b128 v{wP}, {vr(r,4)} offset:{(c&1)*28672+nu*1024}", "ds", rd=V(wP) | V(r, 4), res=("pw", c),
                                    after=aft, before=pdead, pre=after_ev(("Bqe", "Bqe", ("Bp", 2), ("Bp", 4))[c]), cost=20))
            else:
                tail.append(pw(c, nu, hf, aft, pdead, ("Bqe", "Bqe", ("Bp", 2), ("Bp", 4))[c]))
            seq = []
            for x in range(4):
                seq.append(ex[x])
                seq += pend[:2]; pend = pend[2:]
            seq += pend
            pend = tail
            VS += seq
    VS += pend
    lbef = P0 + 5 * BL + MID
    T0 = SACC[0]
    aft = done_at[("S", 7, 6)]
    for nu in range(7): VS.append(valu(f"v_mov_b32 v{T0+nu}, v{vL+nu}", V(vL + nu), V(T0 + nu), aft, lbef))
    for nu in range(7): VS.append(valu(f"v_permlane32_swap_b32 v{vL+nu}, v{T0+nu}", V(vL + nu) | V(T0 + nu), V(vL + nu) | V(T0 + nu), aft, lbef, kind="perm", cost=8))
    for nu in range(7): VS.append(valu(f"v_add_f32 v{vL+nu}, v{vL+nu}, v{T0+nu}", V(vL + nu) | V(T0 + nu), V(vL + nu), aft, lbef))
    for nu in range(7): VS.append(valu(f"v_mov_b32 v{T0+nu}, v{vL+nu}", V(vL + nu), V(T0 + nu), aft, lbef))
    for nu in range(7): VS.append(valu(f"v_permlane16_swap_b32 v{vL+nu}, v{T0+nu}", V(vL + nu) | V(T0 + nu), V(vL + nu) | V(T0 + nu), aft, lbef, kind="perm", cost=8))
    for nu in range(7): VS.append(valu(f"v_add_f32 v{T0+8+nu}, v{vL+nu}, v{T0+nu}", V(vL + nu) | V(T0 + nu), V(T0 + 8 + nu), aft, lbef))
    VS.append(valu(f"v_add_u32 v{T0+7}, s{sXB}, v{vST}", V(vST), V(T0+7), aft, lbef))
    VS.append(valu(f"v_subrev_u32 v{T0+7}, s{sW2K}, v{T0+7}", V(T0+7), V(T0+7), aft, lbef))
    for hh in range(2):
        VS.append(Ins(f"ds_write_b128 v{T0+7}, {vr(T0+8+4*hh,4)} offset:{57344+hh*1024}", "ds", rd=V(T0+7) | V(T0 + 8 + 4 * hh, 4),
                      res=("lw",), after=aft, before=lbef, cost=20))
    rb = P0 + 7 * BL
    for w in range(4):
        for hh in range(2):
            d = T0 + 8 * w + 4 * hh
            VS.append(Ins(f"ds_read_b128 {vr(d,4)}, v{rE} offset:{57344+w*2048+hh*1024}", "ds", rd=V(rE), wr=V(d, 4), res=("lr",),
                          after=0, before=rb, pre=after_ev(("Bp", 6))))
    la = P0 + 6 * BL + 20
    for nu in range(7): VS.append(valu(f"v_add_f32 v{T0+nu}, v{T0+nu}, v{T0+8+nu}", V(T0 + nu) | V(T0 + 8 + nu), V(T0 + nu), la, O0))
    for nu in range(7): VS.append(valu(f"v_add_f32 v{T0+16+nu}, v{T0+16+nu}, v{T0+24+nu}", V(T0 + 16 + nu) | V(T0 + 24 + nu), V(T0 + 16 + nu), la, O0))
    for nu in range(7): VS.append(valu(f"v_add_f32 v{T0+nu}, v{T0+nu}, v{T0+16+nu}", V(T0 + nu) | V(T0 + 16 + nu), V(T0 + nu), la, O0))
    if cfg.get("fb", 1):
        a_, b_ = T0 + 8, T0 + 9
        VCC = {("s", "vcc")}
        VS.append(valu(f"v_max3_f32 v{a_}, v{T0}, v{T0+1}, v{T0+2}", V(T0, 3), V(a_), la, O0))
        VS.append(valu(f"v_min3_f32 v{b_}, v{T0}, v{T0+1}, v{T0+2}", V(T0, 3), V(b_), la, O0))
        for r in (3, 5):
            VS.append(valu(f"v_max3_f32 v{a_}, v{a_}, v{T0+r}, v{T0+r+1}", V(a_) | V(T0 + r, 2), V(a_), la, O0))
            VS.append(valu(f"v_min3_f32 v{b_}, v{b_}, v{T0+r}, v{T0+r+1}", V(b_) | V(T0 + r, 2), V(b_), la, O0))
        hi_, lo_ = f2u(2.0 ** cfg.get("lim", 40)), f2u(2.0 ** -cfg.get("lim", 40))
        VS.append(valu(f"v_cmp_nge_f32 vcc, {hi_:#x}, v{a_}\n    s_cbranch_vccnz L_fallback", V(a_), VCC, la, O0, cost=8))
        VS.append(valu(f"v_cmp_nle_f32 vcc, {lo_:#x}, v{b_}\n    s_cbranch_vccnz L_fallback", V(b_), VCC, la, O0, cost=8))
    for nu in range(7): VS.append(valu(f"v_rcp_f32 v{vL+nu}, v{T0+nu}", V(T0 + nu), V(vL + nu), la, O0, kind="trans", cost=8))
    VS.append(valu(f"v_add_u32 v{rWOE}, {EB}, v{rWO}", V(rWO), V(rWOE), P0 + 6 * BL, O0))
    VS.append(valu(f"v_lshrrev_b32 v{vST2}, 1, v{vST}", V(vST), V(vST2), P0 + 6 * BL, O0))
    for p in range(7): VS.append(Ins(f"s_mov_b32 s{sSTO+p}, {p*3584}", "salu", after=P0 + 5 * BL, before=O0))
    for nu in range(7):
        for al in range(2):
            aft = done_at[("O", 2 * al + 1, nu)]
            r = oacc(2 * al, nu)
            for x in range(4):
                VS.append(valu(f"v_cvt_pk_bf16_f32 v{r+x}, v{r+2*x}, v{r+2*x+1}", V(r + 2 * x, 2), V(r + x), aft, odead[nu][0] + 1 - (cfg.get("wlead", 3) if STGX else 0)))
            VS.append(Ins(f"ds_write_b128 v{wO}, {vr(r,4)} offset:{(al*7+nu)*1024}", "ds", rd=V(wO) | V(r, 4), res=("ow", nu),
                          after=aft, before=odead[nu][0] + 1 - (cfg.get("wlead", 3) if STGX else 0), pre=after_ev("Bpe"), cost=20))
    SQ = []
    for p in range(7):
        stg = OACC + 16 * p
        for nu in range(7):
            acc = SACC[p & 1] + 4 * nu
            aft = done_at[("Y", p, nu)]
            bef = first_use[("Yacc", p + 2, nu)] if p < 5 else INF
            for x in range(4): VS.append(valu(f"v_mul_f32 v{acc+x}, v{vL+nu}, v{acc+x}", V(acc + x) | V(vL + nu), V(acc + x), aft, bef))
            d = stg + 2 * nu
            VS.append(valu(f"v_cvt_pk_bf16_f32 v{d}, v{acc}, v{acc+1}", V(acc, 2), V(d), aft, bef))
            VS.append(valu(f"v_cvt_pk_bf16_f32 v{d+1}, v{acc+2}, v{acc+3}", V(acc + 2, 2), V(d + 1), aft, bef))
            gate = (lambda: not dq) if cfg.get("gate", 1) else None
            if nu & 1:
                VS.append(Ins(f"buffer_store_dwordx4 {vr(d-2,4)}, v{vST}, {srd(sSRD_WS)}, s{sSTO+p} offen offset:{(nu>>1)*1024} {stfl}",
                              "vmem", rd=V(d - 2, 4) | V(vST), tag=("st", p), after=aft, before=aft + cfg.get("stdl", INF), cost=32, pre=gate))
            if nu == 6:
                VS.append(Ins(f"buffer_store_dwordx2 {vr(d,2)}, v{vST2}, {srd(sSRD_WS)}, s{sSTO+p} offen offset:3072 {stfl}",
                              "vmem", rd=V(d, 2) | V(vST2), tag=("st", p), after=aft, before=aft + cfg.get("stdl", INF), cost=18, pre=gate))

    vFA, vFO, vFN, vFV = dK, dK + 1, dK + 2, dK + 3
    vRA, vOA, vOA2, vZ = 6, 7, 8, 0
    CO = cfg.get("co", 1); vLR = 9; sU = 55; sO1, sO2 = 30, 31
    SEL = 120; RD_ = 128
    def publish(cnt):
        pubd[0] = cnt
        R(f"v_and_b32 v{vFV}, -16, v{vFV}")
        R(f"v_add_u32 v{vFV}, {16 + cnt}, v{vFV}")
        E.emit(Ins(f"buffer_store_dword v{vFV}, v{vZ}, {srd(sSRD_FM)}, 0 offen {cfg.get('ffl','sc1')}", "vmem", rd=V(vFV) | V(vZ), tag="fl"))
    def reduce_setup():
        t = RD_
        R(f"v_lshrrev_b32 v{t}, 4, v{vST}")
        R(f"v_and_b32 v{t+1}, 15, v{t}")
        R(f"v_lshrrev_b32 v{t+2}, 4, v{t}")
        R(f"v_lshlrev_b32 v{vZ}, 24, v{t}")
        R(f"v_and_b32 v{t+3}, 16, v{vST}")
        R(f"v_mov_b32 v{t+4}, 0x3f80"); R(f"v_lshlrev_b32 v{t+3}, v{t+3}, v{t+4}")
        R(f"v_bfe_u32 v{t+4}, v{t}, 1, 3")
        for io in range(0, 8, 2):
            R(f"v_cmp_eq_u32 vcc, {io}, v{t+4}"); R(f"v_cmp_eq_u32 s[24:25], {io+1}, v{t+4}"); R("s_nop 0")
            R(f"v_cndmask_b32 v{SEL+io}, 0, v{t+3}, vcc"); R(f"v_cndmask_b32 v{SEL+io+1}, 0, v{t+3}, s[24:25]")
        if CO:
            R(f"v_and_b32 v{t+3}, 7, v{t}"); R(f"v_bfe_u32 v{t+4}, v{t}, 3, 1")
            R(f"v_mul_u32_u24 v{vRA}, 100352, v{t+2}"); R(f"v_mul_u32_u24 v{t+5}, 25088, v{t+4}")
            R(f"v_lshl_add_u32 v{vRA}, v{t+3}, 4, v{vRA}"); R(f"v_add_u32 v{vRA}, v{vRA}, v{t+5}")
            R(f"v_lshl_add_u32 v{t+5}, v{t+2}, 3, v{t+3}")
            R(f"v_lshlrev_b32 v{t+5}, 6, v{t+5}"); R(f"v_lshl_add_u32 v{t+5}, v{t+4}, 5, v{t+5}")
            R(f"s_lshl_b32 s40, s{sW}, 3"); R(f"s_add_u32 s40, s40, {EB}"); R(f"v_add_u32 v{vOA2}, s40, v{t+5}")
            R(f"s_lshl_b32 s40, s{sW}, 10"); R(f"s_add_u32 s40, s40, {EB}"); R(f"v_add_u32 v{vLR}, s40, v{vST}")
            R(f"s_lshr_b32 s24, s{sU}, 1"); R("s_cmp_eq_u32 s24, 6")
            R("s_cselect_b32 s25, 2, 1"); R("s_cselect_b32 s26, 1, 16")
            R(f"v_bfe_u32 v{t+3}, v{t}, 2, 3"); R(f"v_lshrrev_b32 v{t+4}, 5, v{t}")
            R(f"v_mul_u32_u24 v{t+3}, s25, v{t+3}"); R(f"v_mul_u32_u24 v{t+4}, s26, v{t+4}"); R(f"v_add_u32 v{t+3}, v{t+3}, v{t+4}")
            R(f"v_mul_u32_u24 v{t+3}, 896, v{t+3}"); R(f"v_and_b32 v{t+4}, 48, v{vST}"); R(f"v_add_u32 v{vOA}, v{t+3}, v{t+4}")
            R("s_lshr_b32 s25, s24, 1"); R("s_lshl_b32 s25, s25, 5"); R("s_and_b32 s24, s24, 1"); R("s_lshl_b32 s24, s24, 3"); R("s_add_u32 s24, s24, s25")
            R("s_mul_i32 s24, s24, 896"); R(f"s_and_b32 s25, s{sU}, 1"); R("s_lshl_b32 s25, s25, 6"); R("s_add_u32 s24, s24, s25")
            R(f"s_lshl_b32 s25, s{sW}, 7"); R(f"s_add_u32 s{sO1}, s24, s25")
            R(f"s_cmp_eq_u32 s{sW}, 3"); R(f"s_cselect_b32 s{sO2}, 0x1000000, s{sO1}")
            return
        R(f"s_lshl_b32 s40, s{sW}, 4"); R(f"v_add_u32 v{t+3}, s40, v{t+1}")
        R(f"v_cmp_gt_u32 s[24:25], 56, v{t+3}")
        R(f"v_mul_u32_u24 v{vRA}, 100352, v{t+2}"); R(f"v_lshl_add_u32 v{vRA}, v{t+3}, 4, v{vRA}")
        R(f"v_mov_b32 v{t+4}, 0x7ffffff0")
        R(f"v_cndmask_b32 v{vRA}, v{t+4}, v{vRA}, s[24:25]")
        s_qd(); R("s_mul_i32 s40, s40, 56"); R(f"v_add_u32 v{t+3}, s40, v{t+3}")
        R(f"v_and_b32 v{t+5}, 1, v{t+2}")
        R(f"v_lshrrev_b32 v{t+6}, 6, v{t+3}"); R(f"v_and_b32 v{t+7}, 15, v{t+3}")
        R(f"v_lshl_add_u32 v{t+6}, v{t+6}, 5, v{t+7}"); R(f"v_lshl_add_u32 v{t+6}, v{t+5}, 4, v{t+6}")
        R(f"v_bfe_u32 v{t+7}, v{t+3}, 4, 2")
        R(f"v_cmp_lt_u32 vcc, 191, v{t+3}")
        R(f"v_and_b32 v{t+8}, 7, v{t+3}"); R(f"v_lshl_add_u32 v{t+8}, v{t+8}, 1, v{t+5}"); R(f"v_add_u32 v{t+8}, 96, v{t+8}")
        R(f"v_bfe_u32 v{t+9}, v{t+3}, 3, 2")
        R(f"v_cndmask_b32 v{t+6}, v{t+6}, v{t+8}, vcc"); R(f"v_cndmask_b32 v{t+7}, v{t+7}, v{t+9}, vcc")
        R(f"v_mul_u32_u24 v{vOA}, 896, v{t+6}"); R(f"v_lshl_add_u32 v{vOA}, v{t+7}, 3, v{vOA}")
        R(f"v_lshrrev_b32 v{t+5}, 1, v{t+2}"); R(f"v_lshl_add_u32 v{vOA}, v{t+5}, 7, v{vOA}")
        R(f"v_cmp_gt_u32 vcc, 32, v{t}")
        s_sw(); R("s_lshl_b32 s40, s40, 5"); R(f"v_add_u32 v{vOA}, s40, v{vOA}")
        R(f"v_cndmask_b32 v{vOA}, v{t+4}, v{vOA}, s[24:25]")
        R(f"v_cndmask_b32 v{vOA2}, v{t+4}, v{vOA}, vcc")
    npoll = [0]; nchk = [0]; pubd = [0]
    spins = []
    def preg(k): return rV + (k & 3)
    def poll():
        npoll[0] += 1
        r = preg(npoll[0])
        E.emit(Ins(f"buffer_load_dword v{r}, v{vFA}, {srd(sSRD_FL)}, 0 offen sc1", "vmem", rd=V(vFA), wr=V(r), tag=("poll", npoll[0])))
    def check_cond(need, r=None):
        r = vFN if r is None else r
        R(f"v_cmp_ne_u32 vcc, v{r}, v{vFO}")
        R(f"v_and_b32 v{vFN}, 15, v{r}")
        R(f"v_cmp_le_u32 s[26:27], {need}, v{vFN}")
        R("s_and_b64 vcc, vcc, s[26:27]")
        R("s_cmp_eq_u64 vcc, -1")
    def check(need, mine):
        nchk[0] += 1
        E.wait_vm([("poll", nchk[0])], 1)
        check_cond(need, preg(nchk[0]))
        k = len(spins); spins.append((need, mine))
        R(f"s_cbranch_scc0 L_spin{k}")
        E.label(f"L_spun{k}")
    def rreg(p, g): return OACC + 16 * p + 4 * g
    def rloads(p):
        L = []
        for g in range(4):
            L.append(Ins(f"s_add_u32 s{sOFF}, s{sRO}, {g*4*100352 + p*3584}", "salu"))
            L.append(Ins(f"buffer_load_dwordx4 {vr(rreg(p,g),4)}, v{vRA}, {srd(sSRD_PB)}, s{sOFF} offen {cfg.get('rfl','sc1')}", "vmem",
                         rd=V(vRA), wr=V(rreg(p, g), 4), tag=("rl", p, g), cost=8))
        return L
    def rsum(p, nxt=None):
        d = RD_ + 4 * (p >> 1); sel = SEL + 4 * (p & 1)
        nl = rloads(nxt) if nxt is not None else None
        for g in range(4):
            if nl:
                E.wait_vm([("rl", p, g)], 1)
                E.emit(nl[2 * g]); E.emit(nl[2 * g + 1])
            E.wait_vm([("rl", p, g)], 1)
            cz = (p & 1) == 0 and g == 0
            E.emit(Ins(f"v_mfma_f32_16x16x32_bf16 {vr(d,4)}, {vr(sel,4)}, {vr(rreg(p,g),4)}, {'0' if cz else vr(d,4)}", "mfma",
                       rd=V(sel, 4) | V(rreg(p, g), 4) | (set() if cz else V(d, 4)), wr=V(d, 4), rdc=set() if cz else V(d, 4)))
    def rstore(q):
        d = RD_ + 4 * q
        E.emit(valu(f"v_cvt_pk_bf16_f32 v{d}, v{d}, v{d+1}", V(d, 2), V(d), 0))
        E.emit(valu(f"v_cvt_pk_bf16_f32 v{d+1}, v{d+2}, v{d+3}", V(d + 2, 2), V(d + 1), 0))
        if CO:
            E.emit(Ins(f"ds_write_b64 v{vOA2}, {vr(d,2)} offset:{2048*q}", "ds", rd=V(d, 2) | V(vOA2), res=("cw",)))
            if q == 3:
                R("s_waitcnt lgkmcnt(0)"); E.dsq = []
                R("s_barrier")
                R(f"ds_read_b128 {vr(RD_,4)}, v{vLR}"); R(f"ds_read_b128 {vr(RD_+4,4)}, v{vLR} offset:4096")
                R("s_waitcnt lgkmcnt(1)")
                R(f"buffer_store_dwordx4 {vr(RD_,4)}, v{vOA}, {srd(sSRD_OUT)}, s{sO1} offen {cfg.get('ofl','')}")
                R("s_waitcnt lgkmcnt(0)")
                R(f"buffer_store_dwordx4 {vr(RD_+4,4)}, v{vOA}, {srd(sSRD_OUT)}, s{sO2} offen offset:512 {cfg.get('ofl','')}")
            return
        va = vOA if q < 3 else vOA2
        E.emit(Ins(f"buffer_store_dwordx2 {vr(d,2)}, v{va}, {srd(sSRD_OUT)}, 0 offen offset:{256*q} {cfg.get('ofl','')}", "vmem", rd=V(d, 2) | V(va), tag="ost"))
    def dyn_tail():
        vA, vLd, vI, vM = 32, 36, 40, 41
        def avail(r):
            R(f"v_cmp_ne_u32 vcc, v{r}, v{vFO}")
            R(f"v_and_b32 v{vFN}, 15, v{r}")
            R("s_nop 0")
            R(f"v_cndmask_b32 v{vFN}, 0, v{vFN}, vcc")
            for g in range(4): R(f"ds_bpermute_b32 v{vA+g}, v{vI}, v{vFN} offset:{16*g}")
            R("s_waitcnt lgkmcnt(0)")
        def piece(p, g, first, track):
            L = rloads(p)
            E.emit(L[2 * g])
            R(f"v_cmpx_lt_u32 vcc, {p}, v{vA+g}")
            if not first: R(f"v_cmpx_ge_u32 vcc, {p}, v{vLd+g}")
            if track: E.emit(L[2 * g + 1])
            else: R(L[2 * g + 1].text)
            R("s_mov_b64 exec, -1")
        poll()
        R(f"v_lshrrev_b32 v{vI}, 8, v{vST}"); R(f"v_lshlrev_b32 v{vI}, 2, v{vI}")
        E.wait_vm([("st", p) for p in range(7)]); publish(7)
        if stamps: stamp()
        nchk[0] += 1; E.wait_vm([("poll", nchk[0])], 1)
        avail(preg(nchk[0]))
        for p in range(7):
            for g in range(4): piece(p, g, True, True)
            if p == cfg.get("dynp", 3):
                R(f"v_mov_b32 v{preg(npoll[0] + 1)}, v{vFO}")
                poll()
        R("s_mov_b32 s28, 0")
        nchk[0] += 1; E.wait_vm([("poll", nchk[0])], 1)
        R(f"v_mov_b32 v{vFN}, v{preg(nchk[0])}")
        E.label("L_dyn")
        for g in range(4): R(f"v_mov_b32 v{vLd+g}, v{vA+g}")
        R(f"v_min3_u32 v{vM}, v{vA}, v{vA+1}, v{vA+2}"); R(f"v_min_u32 v{vM}, v{vM}, v{vA+3}")
        R(f"v_cmp_gt_u32 vcc, 7, v{vM}")
        R("s_cbranch_vccz L_dyn_done")
        avail(vFN)
        for p in range(7):
            R(f"v_cmp_ge_u32 vcc, {p}, v{vM}")
            R(f"s_cbranch_vccz L_dyn_s{p}")
            for g in range(4): piece(p, g, False, False)
            E.label(f"L_dyn_s{p}")
        R(f"v_min3_u32 v{vM}, v{vA}, v{vA+1}, v{vA+2}"); R(f"v_min_u32 v{vM}, v{vM}, v{vA+3}")
        R(f"v_cmp_gt_u32 vcc, 7, v{vM}")
        R("s_cbranch_vccz L_dyn_done")
        R("s_add_u32 s28, s28, 1")
        R("s_and_b32 s29, s28, 7")
        R("s_cbranch_scc1 L_dyn_np")
        publish(7)
        E.label("L_dyn_np")
        R(f"buffer_load_dword v{vFN}, v{vFA}, {srd(sSRD_FL)}, 0 offen sc1")
        R("s_waitcnt vmcnt(0)")
        R("s_cmp_lt_u32 s28, 400000")
        R("s_cbranch_scc1 L_dyn")
        E.label("L_dyn_done")
        if stamps: stamp()
        R("s_waitcnt vmcnt(0)")
        E.vm_known = 0; E.vm_len = len(E.vmq)
        st = 0
        for p in range(7):
            rsum(p)
            while 2 * st + 1 < p: rstore(st); st += 1
        while st < 4: rstore(st); st += 1
    PROG = cfg.get("prog", 1) and cfg.get("ink", 1)
    if cfg.get("ink", 1):
        def ev_setup():
            assert not any(x.kind == "vmem" and x.tag[0] == "V" for x in dq)
            assert not any(x.res == ("pw", 3) for x in VS)
            reduce_setup()
        if cfg.get("rsat") is not None:
            events.setdefault(O0 + int(cfg["rsat"] * BL), []).insert(0, ("rsetup", ev_setup))
        VS.append(valu(f"v_lshlrev_b32 v{vZ}, 20, v{vST}", V(vST), V(vZ), O0 + BL, O0 + 3 * BL))
    def act(a_, inline):
        k = a_[0]
        if k == "pub": E.wait_vm([("st", p) for p in range(a_[1])]); publish(a_[1])
        elif k == "poll": poll()
        elif k == "chk": check(a_[1], pubd[0])
        elif k == "ld":
            if inline:
                for x in rloads(a_[1]): E.emit(x)
            else: dq.extend(rloads(a_[1]))
        elif k == "sum": rsum(a_[1])
        elif k == "sl": rsum(a_[1] // 10, a_[1] % 10)
        elif k == "out": rstore(a_[1])
        elif k == "setup":
            if cfg.get("rsat") is None: reduce_setup()
        elif k == "stamp":
            if stamps: stamp()
    MIDS = cfg.get("mids", [(4.2, ("pub", 3))]) if PROG else []
    for n_, (pos, a_) in enumerate(MIDS):
        add_event(O0 + int(pos * BL), ("mid", n_), (lambda z: (lambda: act(z, False)))(a_))
    TAIL = cfg.get("tail", "poll setup pub7 stamp chk3 ld0 ld1 poll ld2 sum0 sum1 out0 chk7 stamp ld3 ld4 ld5 ld6 sum2 sum3 sum4 out1 sum5 sum6 out2 out3") if PROG \
        else "setup pub7 stamp poll chk7 stamp ld0 ld1 ld2 ld3 ld4 ld5 ld6 sum0 sum1 sum2 out0 sum3 sum4 out1 sum5 sum6 out2 out3"
    if cfg.get("ink", 1):
        fa = P0 - 28
        VS.insert(0, valu(f"v_and_b32 v{vFA}, {0x1f0 if CO else 0xf0}, v{vST}", V(vST), V(dK, 4), fa, P0 + BL, pre=lambda: not any(x.kind == "vmem" and x.tag[0] == "K" for x in dq)))
        VS.insert(1, valu(f"v_lshlrev_b32 v{vFA}, 3, v{vFA}", V(vFA), V(vFA), fa, P0 + BL))
        VS.insert(2, valu(f"v_mov_b32 v{vFN}, 0", set(), V(vFN), fa, P0 + BL))
        VS.insert(3, Ins(f"buffer_load_dword v{vFO}, v{vFA}, {srd(sSRD_FL)}, 0 offen sc1", "vmem", rd=V(vFA), wr=V(vFO), tag="pf", after=fa, before=P0 + BL, cost=8))
        VS.insert(4, Ins(f"buffer_load_dword v{vFV}, v{vFN}, {srd(sSRD_FM)}, 0 offen sc1", "vmem", rd=V(vFN), wr=V(vFV), tag="pf", after=fa, before=P0 + BL, cost=8))

    PF = []
    if cfg.get("wopf") is not None:
        PF.append(Ins(f"buffer_load_dword v{vPFV}, v{vPFV}, {srd(sSRD_WO)}, 0 offen", "vmem", rd=V(vPFV), tag="pf",
                      after=int(cfg["wopf"] * 28), cost=8))

    KN = "standalone__gqa_block_cached__near_ridge_kernel" if cfg.get("ink", 1) else "gqa_main_kernel"
    if cfg.get("ink", 1):
        E.out.append("; fused GQA block: q-proj + attention + out-proj + cross-workgroup head reduction")
        E.out.append("; @launch grid=(256,1,1) block=(256,1,1) lds=163840")
    else:
        E.out.append("""; fused GQA block: q-proj + attention + out-proj partials (main), then head reduction (reduce)
; @launch kernel=gqa_main_kernel grid=(256,1,1) block=(256,1,1) lds=163840
; @launch kernel=gqa_reduce_kernel grid=(448,1,1) block=(256,1,1) lds=0""")
    E.out.append(f""".amdgcn_target "amdgcn-amd-amdhsa--gfx950"
.text
.globl {KN}
.p2align 8
.type {KN},@function
{KN}:""")
    R("s_cmp_ge_u32 s2, 256")
    R("s_cbranch_scc1 L_exit")
    R("s_load_dwordx8 s[8:15], s[0:1], 0")
    R("s_load_dwordx2 s[4:5], s[0:1], 32")
    R(f"s_load_dwordx2 s[{sSRD_OUT}:{sSRD_OUT+1}], s[0:1], 40")
    R("s_load_dwordx2 s[6:7], s[0:1], 56")
    if cfg.get("padT") or cfg.get("padstep") is not None: R("s_memrealtime s[68:69]")
    if stamps:
        R(f"s_memtime s[{sSTAMP}:{sSTAMP+1}]"); R(f"s_memrealtime s[{sSTAMP+30}:{sSTAMP+31}]")
    if cfg.get("cpf", 1):
        R("s_getpc_b64 s[24:25]")
        E.label("L_pc")
        R("s_mov_b32 s26, L_end-L_pc"); R("s_mov_b32 s27, 0x20000")
        R("v_lshlrev_b32 v54, 7, v0"); R("v_lshrrev_b32 v55, 4, v0"); R("s_lshr_b32 s40, s2, 3"); R("s_lshl_b32 s40, s40, 11")
        R("v_lshl_add_u32 v54, v55, 24, v54")
        E.emit(Ins(f"buffer_load_dword v56, v54, s[24:27], s40 offen", "vmem", tag="pf"))
    t0, t1, t2, t3, t4, t5 = 40, 41, 42, 43, 44, 45
    vA, vP8, vG, vP16, vW, vR, vC4 = 46, 47, 48, 49, 50, 51, 52
    R(f"v_lshrrev_b32 v{vW}, 6, v0")
    R(f"v_and_b32 v{vLANE}, 63, v0")
    R(f"v_readfirstlane_b32 s{sW}, v{vW}")
    R(f"v_lshrrev_b32 v{vA}, 3, v{vLANE}")
    R(f"v_and_b32 v{vP8}, 7, v{vLANE}")
    R(f"v_lshrrev_b32 v{vG}, 4, v{vLANE}")
    R(f"v_and_b32 v{vP16}, 15, v{vLANE}")
    R("s_bfe_u32 s46, s2, 0x10003")
    if cfg.get("kmap", 2) == 1:
        R("s_and_b32 s55, s2, 7")
        R("s_lshr_b32 s58, s2, 4")
        R(f"s_mov_b32 s{sSQ}, s58"); R(f"s_mov_b32 s{sSX}, s46")
    elif cfg.get("kmap", 2) == 8:
        R("s_bfe_u32 s55, s2, 0x30004")
        R("s_and_b32 s58, s2, 7"); R("s_lshl_b32 s58, s58, 1"); R(f"s_lshr_b32 s{sSQ}, s2, 7"); R(f"s_add_u32 s58, s58, s{sSQ}")
        R(f"s_bfe_u32 s{sSX}, s2, 0x40003")
    elif cfg.get("kmap", 2) == 4:
        R("s_and_b32 s55, s2, 1"); R("s_lshl_b32 s55, s55, 2"); R("s_bfe_u32 s40, s2, 0x20004"); R("s_add_u32 s55, s55, s40")
        R(f"s_lshr_b32 s{sSQ}, s2, 6"); R("s_bfe_u32 s40, s2, 0x20001"); R("s_lshl_b32 s58, s40, 2"); R(f"s_add_u32 s58, s58, s{sSQ}")
        R(f"s_bfe_u32 s{sSX}, s2, 0x30003")
    else:
        R("s_and_b32 s55, s2, 3"); R("s_lshl_b32 s55, s55, 1"); R("s_bfe_u32 s40, s2, 0x10004"); R("s_add_u32 s55, s55, s40")
        R(f"s_lshr_b32 s{sSQ}, s2, 5"); R("s_bfe_u32 s40, s2, 0x10002"); R("s_lshl_b32 s58, s40, 3"); R(f"s_add_u32 s58, s58, s{sSQ}")
        R(f"s_bfe_u32 s{sSX}, s2, 0x20003")
    R("s_lshl_b32 s56, s55, 1")
    R("s_add_u32 s56, s56, s46")
    STG = 0
    if cfg.get("rot"):
        R(f"s_lshl_b32 s40, s{sSX}, {cfg.get('rotsh', 1)}"); R(f"s_add_u32 s40, s40, s{sSQ}")
        R("s_mul_i32 s43, s40, 37"); R("s_lshr_b32 s43, s43, 8"); R("s_mul_i32 s43, s43, 7"); R("s_sub_u32 s40, s40, s43")
        R(f"s_lshl_b32 s{sSTO}, s40, 7")
    R(f"s_mul_i32 s{sRB}, s{sW}, {RING}")
    R(f"s_lshl_b32 s{sXB}, s{sW}, 12"); R(f"s_add_u32 s{sXB}, s{sXB}, {EB}")
    R(f"v_lshl_add_u32 v{t0}, v{vW}, 5, v{vA}")
    R(f"v_mul_u32_u24 v{t1}, 896, v{t0}")
    R(f"v_xor_b32 v{t2}, v{vP8}, v{vG}")
    R(f"v_lshlrev_b32 v{t2}, 4, v{t2}")
    R(f"v_xor_b32 v{t3}, 64, v{t2}")
    R(f"v_add_u32 v{dX}, v{t1}, v{t2}")
    R(f"v_add_u32 v{dX+1}, v{t1}, v{t3}")
    R(f"v_add_u32 v{dX+2}, {2*6144}, v{dX}")
    R(f"v_add_u32 v{dX+3}, {3*6144}, v{dX+1}")
    R(f"v_add_u32 v{dX+1}, {6144}, v{dX+1}")
    R(f"v_and_b32 v{t2}, 1, v{vG}")
    R(f"v_lshlrev_b32 v{t2}, 1, v{t2}")
    R(f"v_xor_b32 v{t2}, v{vP8}, v{t2}")
    R(f"v_lshlrev_b32 v{t2}, 4, v{t2}")
    R(f"v_lshl_add_u32 v{t2}, v{vW}, 7, v{t2}")
    R(f"v_lshl_add_u32 v{dWQ}, v{vA}, 13, v{t2}")
    R(f"v_xor_b32 v{dWQ+1}, 64, v{dWQ}")
    R(f"v_add_u32 v{dWQ+2}, {2*64512}, v{dWQ}")
    R(f"v_add_u32 v{dWQ+3}, {3*64512}, v{dWQ+1}")
    R(f"v_add_u32 v{dWQ+1}, {64512}, v{dWQ+1}")
    R(f"s_mov_b32 s{sSRD_X+2}, 100352"); R(f"s_mov_b32 s{sSRD_X+3}, 0x20000")
    R(f"s_mul_i32 s{sSRD_X}, s58, 100352")
    R(f"s_lshl_b32 s{sSRD_WQ}, s56, 9")
    R(f"s_sub_u32 s{sSRD_WQ+2}, {448*8192}, s{sSRD_WQ}"); R(f"s_mov_b32 s{sSRD_WQ+3}, 0x20000")
    if cfg.get("padstep") == -3: R("s_memrealtime s[70:71]")
    R("s_waitcnt lgkmcnt(0)")
    if cfg.get("padstep") == -2: R("s_memrealtime s[70:71]")
    R(f"s_add_u32 s{sSRD_X}, s8, s{sSRD_X}"); R(f"s_addc_u32 s{sSRD_X+1}, s9, 0")
    R(f"s_add_u32 s{sSRD_WQ}, s14, s{sSRD_WQ}"); R(f"s_addc_u32 s{sSRD_WQ+1}, s15, 0")
    npro = cfg.get("npro", 3); npro3 = cfg.get("npro3", 6)
    for u, L in DQ[:npro]:
        for x in L: E.emit(x)
    km = cfg.get("kmap", 2)
    if cfg.get("rot"):
        for j in range(1, 7):
            R(f"s_add_u32 s{sSTO+j}, s{sSTO+j-1}, 128"); R(f"s_cmp_eq_u32 s{sSTO+j}, 896"); R(f"s_cselect_b32 s{sSTO+j}, 0, s{sSTO+j}")
    R(f"s_mov_b32 s{sC}, {f2u(math.log2(math.e) / 16.0):#x}")
    R(f"s_lshl_b32 s{sW2K}, s{sW}, 11")
    R(f"s_mul_i32 s40, s{sSQ}, {16*km}"); R(f"v_add_u32 v58, s40, v{vA}")
    R(f"v_mul_u32_u24 v59, {4*km}, v{vW}"); R("v_add_u32 v58, v58, v59"); R("v_mul_u32_u24 v58, 896, v58")
    R(f"v_lshl_add_u32 v{vPFV}, v{vP8}, 7, v58")
    R(f"v_cmp_gt_u32 vcc, {32*km}, v{vLANE}"); R("v_mov_b32 v59, 0x7ffffff0")
    R(f"v_bfe_u32 v{vR}, v{vLANE}, 2, 2")
    R(f"v_cndmask_b32 v{vPFV}, v59, v{vPFV}, vcc")
    R(f"v_and_b32 v{vC4}, 3, v{vLANE}")
    R(f"v_lshlrev_b32 v{vST}, 4, v{vLANE}")
    R(f"v_bfe_u32 v{t2}, v{vLANE}, 1, 3")
    R(f"v_xor_b32 v{t2}, v{t2}, v{vG}")
    R(f"v_lshlrev_b32 v{t2}, 4, v{t2}")
    R(f"v_lshl_add_u32 v{t2}, v{vP16}, 7, v{t2}")
    R(f"v_add_u32 v{rX}, {EB}, v{t2}")
    R(f"v_xor_b32 v{rX+1}, 64, v{rX}")
    R(f"v_lshrrev_b32 v{t4}, 1, v{vR}")
    R(f"v_and_b32 v{t2}, 1, v{vG}")
    R(f"v_lshl_add_u32 v{t5}, v{t2}, 1, v{t4}")
    R(f"v_lshlrev_b32 v{t3}, 3, v{vC4}")
    R(f"v_lshl_add_u32 v{t3}, v{t5}, 5, v{t3}")
    R(f"v_add_u32 v{t4}, s{sRB}, v{t3}")
    R(f"v_lshl_add_u32 v{t2}, v{vG}, 3, v{vR}")
    R(f"v_lshl_add_u32 v{rWQ}, v{t2}, 7, v{t4}")
    for m in range(1, 4): R(f"v_xor_b32 v{rWQ+m}, {32*m}, v{rWQ}")
    if cfg.get("q128"):
        R(f"v_lshlrev_b32 v{rWQ+2}, 1, v{t5}"); R(f"v_xor_b32 v{rWQ+2}, v{rWQ+2}, v{vC4}"); R(f"v_lshlrev_b32 v{rWQ+2}, 4, v{rWQ+2}")
        R(f"v_lshl_add_u32 v{rWQ+2}, v{t2}, 7, v{rWQ+2}"); R(f"v_add_u32 v{rWQ}, s{sRB}, v{rWQ+2}"); R(f"v_xor_b32 v{rWQ+1}, 64, v{rWQ}")
    R(f"v_lshl_add_u32 v{t2}, v{vG}, 2, v{vR}")
    R(f"v_lshl_add_u32 v{rV}, v{t2}, 7, v{t4}")
    for m in range(1, 4): R(f"v_xor_b32 v{rV+m}, {32*m}, v{rV}")
    R(f"v_lshl_add_u32 v{rWO}, v{t2}, 7, v{t3}")
    R(f"v_lshlrev_b32 v{t2}, 5, v{vW}")
    R(f"v_xor_b32 v{rWO}, v{rWO}, v{t2}")
    R(f"v_add_u32 v{rWO+1}, {2*RING}, v{rWO}")
    R(f"v_xor_b32 v{t3}, v{vG}, v{vP16}")
    R(f"v_lshlrev_b32 v{t3}, 4, v{t3}")
    R(f"v_lshl_add_u32 v{t2}, v{vP16}, 8, v{t3}")
    R(f"v_add_u32 v{rK}, s{sRB}, v{t2}")
    for k in range(1, 4): R(f"v_xor_b32 v{rK+k}, {64*k}, v{rK}")
    R(f"v_lshl_add_u32 v{t2}, v{vW}, 5, v{vG}")
    R(f"v_lshl_add_u32 v{dK}, v{t2}, 9, v{t3}")
    for j in range(1, 4):
        R(f"v_xor_b32 v{dK+j}, {64*j}, v{dK}")
        R(f"v_add_u32 v{dK+j}, {1024*j}, v{dK+j}")
    R(f"v_lshlrev_b32 v{t2}, 1, v{vG}")
    R(f"v_xor_b32 v{t2}, v{vP8}, v{t2}")
    R(f"v_lshlrev_b32 v{t2}, 4, v{t2}")
    R(f"v_add_u32 v{dWO}, v{t1}, v{t2}")
    R(f"v_lshl_add_u32 v{t2}, v{vW}, 7, v{t2}")
    R(f"v_lshl_add_u32 v{dV}, v{vA}, 9, v{t2}")
    for j in range(1, 4): R(f"v_add_u32 v{dV+j}, {3072*j}, v{dV}")
    R(f"v_add_u32 v{rE}, {EB}, v{vST}")
    R(f"v_mul_u32_u24 v{t2}, 7168, v{vW}")
    R(f"v_add_u32 v{wP}, v{rE}, v{t2}")
    R(f"v_add_u32 v{wO}, v{wP}, v{t2}")
    R(f"v_lshrrev_b32 v{t3}, 1, v{vG}")
    R(f"v_lshl_add_u32 v{t3}, v{t3}, 4, v{vP16}")
    R(f"v_and_b32 v{t4}, 1, v{vG}")
    R(f"v_lshlrev_b32 v{t4}, 3, v{t4}")
    R(f"v_lshl_add_u32 v{t3}, v{t3}, 4, v{t4}")
    R(f"v_lshl_add_u32 v{t3}, v{t2}, 1, v{t3}")
    R(f"v_add_u32 v{wQ}, {EB}, v{t3}")
    for sr, size in ((sSRD_K, 262144), (sSRD_V, 262144), (sSRD_WO, 229376), (sSRD_WS, 25088), (sSRD_OUT, 100352), (sSRD_PB, 1605632)):
        R(f"s_mov_b32 s{sr+2}, {size}"); R(f"s_mov_b32 s{sr+3}, 0x20000")
    R(f"s_lshl_b32 s40, s58, 3"); R("s_add_u32 s40, s40, s55"); R(f"s_lshl_b32 s{sSRD_V}, s40, 18")
    if cfg.get("l2kv"): R(f"s_lshl_b32 s{sSRD_V}, s55, 18")
    R(f"s_mul_i32 s{sSRD_WO}, s56, 229376")
    R("s_lshl_b32 s40, s58, 4"); R("s_add_u32 s40, s40, s56"); R("s_lshl_b32 s40, s40, 2"); R(f"s_add_u32 s40, s40, s{sW}")
    R(f"s_mul_i32 s{sSRD_WS}, s40, 25088")
    R(f"s_mul_i32 s{sSRD_PB}, s58, 1605632")
    if CO:
        R(f"s_lshl_b32 s40, s{sBB}, 1"); R(f"s_add_u32 s40, s40, s{sH}"); R(f"s_and_b32 s{sU}, s40, 15")
        R(f"s_and_b32 s40, s{sU}, 1"); R(f"s_mul_i32 s{sRO}, s40, 50176")
        R(f"s_lshr_b32 s40, s{sU}, 2"); R("s_lshl_b32 s40, s40, 10"); R(f"s_add_u32 s{sRO}, s{sRO}, s40")
        R(f"s_bfe_u32 s40, s{sU}, 0x10001"); R("s_lshl_b32 s40, s40, 7"); R(f"s_add_u32 s{sRO}, s{sRO}, s40")
        R(f"s_cmp_ge_u32 s{sU}, 12"); R("s_cselect_b32 s40, 7, 8"); R(f"s_lshl_b32 s40, s{sW}, s40"); R(f"s_add_u32 s{sRO}, s{sRO}, s40")
        R(f"s_cmp_ge_u32 s{sU}, 14"); R(f"s_cselect_b32 s{sSRD_PB+2}, 0, s{sSRD_PB+2}"); R(f"s_cselect_b32 s{sSRD_OUT+2}, 0, s{sSRD_OUT+2}")
    else:
        s_sw(); R(f"s_mul_i32 s{sRO}, s40, 25088"); s_qd(); R("s_mul_i32 s40, s40, 896"); R(f"s_add_u32 s{sRO}, s{sRO}, s40")
    R(f"s_lshl_b32 s46, s{sBB}, 2")
    if CO: R(f"s_and_b32 s40, s{sU}, 1"); R("s_lshl_b32 s40, s40, 1")
    else: s_sw()
    R("s_add_u32 s40, s40, s46"); R("s_lshl_b32 s40, s40, 11"); R(f"s_add_u32 s41, s40, {FLOFF}")
    R(f"s_add_u32 s40, s46, s{sW}"); R("s_lshl_b32 s40, s40, 4"); R(f"s_add_u32 s40, s40, s{sH}"); R("s_lshl_b32 s40, s40, 7"); R(f"s_add_u32 s46, s40, {FLOFF}")
    R(f"s_mul_i32 s40, s58, 100352")
    R(f"s_add_u32 s{sSRD_K}, s10, s{sSRD_V}"); R(f"s_addc_u32 s{sSRD_K+1}, s11, 0")
    R(f"s_add_u32 s{sSRD_V}, s12, s{sSRD_V}"); R(f"s_addc_u32 s{sSRD_V+1}, s13, 0")
    R(f"s_add_u32 s{sSRD_WO}, s4, s{sSRD_WO}"); R(f"s_addc_u32 s{sSRD_WO+1}, s5, 0")
    R(f"s_add_u32 s{sSRD_WS}, s6, s{sSRD_WS}"); R(f"s_addc_u32 s{sSRD_WS+1}, s7, 0")
    R(f"s_add_u32 s{sSRD_OUT}, s{sSRD_OUT}, s40"); R(f"s_addc_u32 s{sSRD_OUT+1}, s{sSRD_OUT+1}, 0")
    R(f"s_add_u32 s{sSRD_PB}, s6, s{sSRD_PB}"); R(f"s_addc_u32 s{sSRD_PB+1}, s7, 0")
    R(f"s_add_u32 s{sSRD_FL}, s6, s41"); R(f"s_addc_u32 s{sSRD_FL+1}, s7, 0"); R(f"s_mov_b32 s{sSRD_FL+2}, {4096 if CO else 2048}"); R(f"s_mov_b32 s{sSRD_FL+3}, 0x20000")
    R(f"s_add_u32 s{sSRD_FM}, s6, s46"); R(f"s_addc_u32 s{sSRD_FM+1}, s7, 0"); R(f"s_mov_b32 s{sSRD_FM+2}, 128"); R(f"s_mov_b32 s{sSRD_FM+3}, 0x20000")
    if cfg.get("tw"):
        R("v_lshlrev_b32 v54, 22, v0")
        for sr in {1: (sSRD_K, sSRD_V, sSRD_WO, sSRD_WS, sSRD_FL, sSRD_OUT), 2: (sSRD_K, sSRD_V), 3: (sSRD_WO, sSRD_WS, sSRD_FL, sSRD_OUT)}[cfg["tw"]]:
            E.emit(Ins(f"buffer_load_dword v56, v54, {srd(sr)}, 0 offen nt", "vmem", tag="pf"))
    for u, L in DQ[npro:npro3]:
        for x in L: E.emit(x)
    if cfg.get("padstep") == -1: R("s_memrealtime s[70:71]")
    dq = [x for u, L in DQ[npro3:] for x in L]

    stamp_n = [1]
    def stamp():
        k = stamp_n[0]; stamp_n[0] += 1
        R(f"{'s_memrealtime' if cfg.get('rt', 1) and k != len(stamps) + 5 else 's_memtime'} s[{sSTAMP+2*k}:{sSTAMP+2*k+1}]")
    def skipf(i):
        if cfg.get("nodma") and i.kind == "vmem" and "lds" in i.text: return True
        if cfg.get("nost") and "buffer_store" in i.text: return True
        if cfg.get("skipwo") and i.kind == "vmem" and i.tag[0] == "WO" and 2 * i.tag[1] + i.tag[2] >= cfg["skipwo"]: return True
        if cfg.get("nosoft") and (i.text.startswith("v_exp") or i.text.startswith("v_add_f32")): return True
        if cfg.get("nopw") and i.kind == "ds" and i.res and i.res[0] == "pw": return True
        if cfg.get("nodsw") and "ds_write" in i.text: return True
        if cfg.get("novalu") and i.kind in ("valu", "trans", "perm"): return True
        return False

    wgap = {}; issued = {}
    def emit(x):
        if x.tag == "read":
            reads_left[x.res] -= 1; last_read[x.res] = now[0]
        if x.kind == "salu" and x.res is not None: E.wait_ds_res(lambda r: r == x.res)
        E.emit(x)
        if x.kind == "vmem": issued[x.tag] = now[0]
        for r in x.wr: wgap[r] = (now[0], x.kind)
    def ok(x, i): return x.after <= i and (x.pre is None or x.pre())
    def run_events(idx):
        for name, fn in events.get(idx, []):
            fn(); ev_done.add(name)
    def conflicts(x, y): return bool(x.rd & y.wr or x.wr & y.rd or x.wr & y.wr)
    def force_fifo(st, i, what):
        k = 0
        for kk, x in enumerate(st[:64]):
            if x.before <= i: k = kk + 1
        c = 0
        for x in st[:k]:
            assert ok(x, i), f"forced {what} not eligible at {i}: {x.text}"
            emit(x); c += x.cost
        del st[:k]
        return c
    c2 = [0]
    def force_vs(i):
        c2[0] = 0
        need = [False] * min(len(VS), 600)
        for k in range(len(need) - 1, -1, -1):
            if VS[k].before <= i: need[k] = True
            if need[k]:
                for kk in range(k):
                    if not need[kk] and conflicts(VS[k], VS[kk]): need[kk] = True
        c = 0
        sel = [VS[k] for k in range(len(need)) if need[k]]
        for x in sel:
            assert ok(x, i), f"forced valu not eligible at {i}: {x.text}"
            VS.remove(x); emit(x); c += x.cost
            c2[0] += x.cost
            if c2[0] >= 96 and dq and ok(dq[0], i):
                c2[0] = 0
                while dq and ok(dq[0], i):
                    y = dq.pop(0); emit(y); c += y.cost
                    if y.kind == "vmem": break
        return c
    WIN = cfg.get("win", 150)
    def ready(x, i):
        if not ok(x, i) or E.need_nops(x) > 0: return False
        k = E.ds_idx(x)
        if k >= 0 and any(wgap.get(r, (-99, 0))[1] == "ds" and i - wgap[r][0] < 10 for r in x.rd | x.wr): return False
        for r in x.rd:
            if r in wgap and wgap[r][1] == "trans" and wgap[r][0] >= i: return False
        return True
    def pick(pred, i):
        blocked = []
        n = 0
        for k, x in enumerate(VS):
            if x.after <= i:
                n += 1
                if n > WIN: return None
            if pred(x) and ready(x, i) and not any(conflicts(x, y) for y in blocked): return x
            blocked.append(x)
            if k > 400: return None
        return None
    ismem = lambda x: x.kind in ("ds", "vmem")
    is4 = lambda x: x.cost == 4 and not ismem(x)

    run_events(-1)
    if stamps: stamp()
    E.skip = skipf
    over = {}; lastdma = -10; lastb128 = -10; lastw = -10; idle = {}
    for i in range(END):
        now[0] = i
        ph = "QSPO"[(i >= S0) + (i >= P0) + (i >= O0)]
        if i % 28 == 0:
            E.comment(f"---- step {i//28} {units[i//28]}")
            if i // 28 in stamps: stamp()
            if cfg.get("padstep") == i // 28: R("s_memrealtime s[70:71]")
        c = force_fifo(RA, i - 4, "read") + force_fifo(RB, i - 4, "read") if i > 0 else force_fifo(RA, 0, "read") + force_fifo(RB, 0, "read")
        if i in (S0, O0) and not STGX: c += force_fifo(RB, i, "read")
        over[ph] = over.get(ph, 0) + c
        E.emit(mfma(i))
        bud = BUD
        if any(x.before <= i + 1 for x in VS[:600]):
            c = force_vs(i + 1); over[ph] = over.get(ph, 0) + max(0, c - bud); bud -= c
        run_events(i)
        if bud < BUD:
            continue
        cand = [q for q in (RA, RB) if q and ok(q[0], i)]
        cand.sort(key=lambda q: q[0].before)
        urgent = [q for q in cand if q[0].before <= i + 1 + sum(1 for x in q[:6] if x.before <= i + 6)]
        sp = cfg.get("dmasp", 4) if i >= cfg.get("fastuntil", 0) else cfg.get("fastsp", 2)
        if dq and dq[0].kind == "vmem" and dq[0].tag[0] == "K" and i < S0: sp = cfg.get("ksp", 8)
        if dq and dq[0].kind == "vmem" and dq[0].tag[0] in ("K", "V") and i >= S0: sp = cfg.get("msp", 4)
        if dq and dq[0].kind == "vmem" and dq[0].tag[0] == "WO": sp = cfg.get("osp", 4) if i < O0 else cfg.get("osp2", 4)
        if dq and dq[0].kind == "vmem" and dq[0].tag[0] == "rl": sp = cfg.get("rsp", 3)
        if cfg.get("rate") and dq and dq[0].kind == "vmem" and dq[0].after > 0: sp = cfg.get("minsp", 4)
        dma_due = dq and dq[0].kind == "vmem" and ok(dq[0], i) and i - lastdma >= sp and E.need_nops(dq[0]) == 0
        x = None
        if dma_due and (not urgent or i - max(lastdma + sp, dq[0].after) >= 2):
            x = dq.pop(0); lastdma = i
            if urgent:
                emit(urgent[0].pop(0)); over[ph] = over.get(ph, 0) + 4
        elif urgent: x = urgent[0].pop(0)
        elif PF and PF[0].after <= i and i - lastdma >= 2: x = PF.pop(0)
        else:
            cand = [q for q in cand if not ("b128" in q[0].text and i - lastb128 < cfg.get("b128sp", 2))]
            if cand: x = cand[0].pop(0)
        if x is None and dq and dq[0].kind == "salu" and ok(dq[0], i) and cfg.get("salup", 1):
            pass
        elif x is None:
            big = lambda z: not is4(z) and not (ismem(z) and z.cost > 8 and i - lastw < (cfg.get("wsp", 3) if z.kind == "ds" else cfg.get("ssp", 6)))
            y4 = pick(is4, i); y8 = pick(big, i)
            y = y8
            if y4 is not None and y8 is not None and VS.index(y4) < VS.index(y8):
                load = sum(z.cost for z in VS[:600] if z.before <= y4.before)
                if load / 8.0 > (y4.before - i) * cfg.get("urg", 0.6): y = y4
            if y is not None and not is4(y):
                VS.remove(y); x = y
                if ismem(y) and y.cost > 8: lastw = i
        if x is not None:
            if "read_b128" in x.text: lastb128 = i
            emit(x); bud -= x.cost
            if x.cost > BUD: over[ph] = over.get(ph, 0) + x.cost - BUD
        while bud >= 4:
            if dq and dq[0].kind == "salu" and ok(dq[0], i):
                emit(dq.pop(0)); bud -= 4; continue
            y = pick(is4, i)
            if y is None: break
            VS.remove(y); emit(y); bud -= 4
        if bud > 0: idle[ph] = idle.get(ph, 0) + bud
    now[0] = END
    over["tail"] = sum(x.cost for x in VS)
    for x in VS: emit(x)
    for x in dq: emit(x)
    assert not RA and not RB and not PF
    INK = cfg.get("ink", 1)
    if cfg.get("padstep") == 60: R("s_memrealtime s[70:71]")
    if INK:
        if stamps: stamp()
        E.skip = None
        if cfg.get("dyn"):
            dyn_tail()
            TAIL = ""
        import re as _re
        for tok in TAIL.split():
            m_ = _re.match(r"([a-z]+)(\d*)", tok)
            act((m_.group(1), int(m_.group(2))) if m_.group(2) else (m_.group(1),), True)
    if stamps:
        if not INK: stamp(); stamp(); stamp()
        R("s_waitcnt vmcnt(0)")
        stamp()
        R(f"s_memrealtime s[{sSTAMP+32}:{sSTAMP+33}]")
        R("s_waitcnt lgkmcnt(0)")
        n = stamp_n[0]
        R("s_add_u32 s8, s6, 0x8000000"); R("s_addc_u32 s9, s7, 0"); R("s_mov_b32 s10, 0x100000"); R("s_mov_b32 s11, 0x20000")
        R("s_lshl_b32 s12, s2, 2"); R(f"s_add_u32 s12, s12, s{sW}"); R("s_lshl_b32 s12, s12, 7")
        R("v_mov_b32 v2, s12")
        R(f"v_cmp_eq_u32 vcc, 0, v{vST}")
        R("s_and_saveexec_b64 s[14:15], vcc")
        for k in range(1, n):
            R(f"s_sub_u32 s13, s{sSTAMP+2*k}, s{sSTAMP+30 if cfg.get('rt', 1) and k != len(stamps) + 5 else sSTAMP}")
            R("v_mov_b32 v3, s13")
            R(f"buffer_store_dword v3, v2, s[8:11], 0 offen offset:{4*(k-1)}")
        R(f"v_mov_b32 v3, s{sSTAMP+30}")
        R(f"buffer_store_dword v3, v2, s[8:11], 0 offen offset:{4*30}")
        R(f"v_mov_b32 v3, s{sSTAMP+32}")
        R(f"buffer_store_dword v3, v2, s[8:11], 0 offen offset:{4*31}")
    if stamps or cfg.get("padT") or cfg.get("padstep") is not None or cfg.get("fw"): R("s_waitcnt vmcnt(0)")
    if cfg.get("padT") or cfg.get("padstep") is not None:
        R("s_memrealtime s[72:73]"); R("s_waitcnt lgkmcnt(0)")
        if cfg.get("padG"):
            R("s_load_dwordx2 s[76:77], s[0:1], 48"); R("s_waitcnt lgkmcnt(0)"); R("s_mov_b32 s78, 256"); R("s_mov_b32 s79, 0x20000")
            R("s_not_b32 s75, s68"); R("v_mov_b32 v50, s75"); R(f"v_lshlrev_b32 v51, 20, v{vST}")
            R("buffer_atomic_umax v50, v51, s[76:79], 0 offen sc1"); R("s_waitcnt vmcnt(0)")
            R("s_add_u32 s74, s68, 4000")
            E.label("L_pad0")
            R("s_memrealtime s[72:73]"); R("s_waitcnt lgkmcnt(0)")
            R("s_sub_u32 s75, s72, s74"); R("s_cmp_lt_i32 s75, 0"); R("s_cbranch_scc1 L_pad0")
            R("v_mov_b32 v51, 0"); R("buffer_load_dword v50, v51, s[76:79], 0 offen sc1"); R("s_waitcnt vmcnt(0)")
            R("v_readfirstlane_b32 s68, v50"); R("s_nop 3"); R("s_not_b32 s68, s68")
        if cfg.get("padT"): R(f"s_add_u32 s74, s68, {cfg['padT']}")
        else: R("s_sub_u32 s74, s70, s68"); R(f"s_mul_i32 s74, s74, {cfg.get('padk', 1)}"); R("s_add_u32 s74, s74, s72")
        E.label("L_pad")
        R("s_memrealtime s[72:73]"); R("s_waitcnt lgkmcnt(0)")
        R("s_sub_u32 s75, s72, s74"); R("s_cmp_lt_i32 s75, 0"); R("s_cbranch_scc1 L_pad")
    E.label("L_exit")
    R("s_endpgm")
    fb_lines = []
    if cfg.get("fb", 1) and INK:
        import gen_c32
        keep = E.out; E.out = []
        E.label("L_fallback")
        R("s_waitcnt vmcnt(0) lgkmcnt(0)"); R("s_nop 15"); R("s_barrier")
        R(f"v_accvgpr_write_b32 a250, v{vFO}"); R(f"v_accvgpr_write_b32 a251, v{vFV}")
        R(f"v_lshrrev_b32 v0, 4, v{vST}"); R(f"s_lshl_b32 s40, s{sW}, 6"); R("v_add_u32 v0, s40, v0")
        E.out += gen_c32.build({"sB": sBB, "sH": sH, "kearly": 0})
        E.label("L_ftail")
        R("s_waitcnt vmcnt(0) lgkmcnt(0)"); R("s_nop 15"); R("s_barrier")
        R(f"v_lshlrev_b32 v{vST}, 4, v1")
        R(f"v_accvgpr_read_b32 v{vFO}, a250"); R(f"v_accvgpr_read_b32 v{vFV}, a251")
        R(f"v_and_b32 v{vFA}, {0x1f0 if CO else 0xf0}, v{vST}"); R(f"v_lshlrev_b32 v{vFA}, 3, v{vFA}")
        reduce_setup()
        E.vmq = []; E.vm_known = 1 << 30; E.vm_len = 0; E.dsq = []
        publish(7); nchk[0] = npoll[0]; poll(); check(7, 7)
        for p in range(7):
            for x in rloads(p): E.emit(x)
        for p in range(7): rsum(p)
        for q in range(4): rstore(q)
        R("s_waitcnt vmcnt(0)"); R("s_endpgm")
        fb_lines = E.out; E.out = keep
    for k, (need, mine) in enumerate(spins):
        E.label(f"L_spin{k}")
        R("s_mov_b32 s28, 0")
        E.label(f"L_spinl{k}")
        R(f"buffer_load_dword v{vFN}, v{vFA}, {srd(sSRD_FL)}, 0 offen sc1")
        R("s_waitcnt vmcnt(0)")
        check_cond(need)
        R(f"s_cbranch_scc1 L_spinx{k}")
        R("s_add_u32 s28, s28, 1")
        R(f"s_and_b32 s29, s28, {cfg.get('refr', 63)}")
        R(f"s_cbranch_scc1 L_spinl{k}")
        publish(mine)
        R("s_cmp_lt_u32 s28, 400000")
        R(f"s_cbranch_scc1 L_spinl{k}")
        E.label(f"L_spinx{k}")
        R("s_cmp_lt_u32 s28, 14")
        R(f"s_cbranch_scc1 L_spun{k}")
        publish(mine)
        R(f"s_branch L_spun{k}")
    E.label("L_end")
    E.out += fb_lines
    if cfg.get("verbose"):
        print(" ".join(f"{u[0]}{uidx[u]}:{issued[u]/28:.1f}/{twait.get(u,0)/28:.1f}" for u in units if u in issued), file=sys.stderr)
    print(f"main: nops {E.nops}, over {over}, idle {idle}, instrs {E.pos}", file=sys.stderr)

    KD = """.p2align 6
.amdhsa_kernel %s
  .amdhsa_next_free_vgpr %d
  .amdhsa_next_free_sgpr %d
  .amdhsa_accum_offset %d
  .amdhsa_group_segment_fixed_size 0
  .amdhsa_kernarg_size 64
  .amdhsa_user_sgpr_count 2
  .amdhsa_user_sgpr_kernarg_segment_ptr 1
  .amdhsa_system_sgpr_workgroup_id_x 1
.end_amdhsa_kernel
"""
    if INK:
        E.out.append('.section .rodata,"a"\n' + KD % (KN, 512, 102, 256))
        return "\n".join(E.out)
    E.out.append(""".globl gqa_reduce_kernel
.p2align 8
.type gqa_reduce_kernel,@function
gqa_reduce_kernel:""")
    R("s_cmp_ge_u32 s2, 448")
    R("s_cbranch_scc1 LR_exit")
    R("s_load_dwordx2 s[4:5], s[0:1], 40")
    R("s_load_dwordx2 s[6:7], s[0:1], 56")
    R("v_lshrrev_b32 v2, 6, v0")
    R("v_and_b32 v1, 63, v0")
    R("v_readfirstlane_b32 s3, v2")
    R(f"s_mul_hi_u32 s8, s2, {(2**32 + 27)//28}")
    R("s_mul_i32 s9, s8, 28")
    R("s_sub_u32 s9, s2, s9")
    R(f"s_mul_hi_u32 s10, s9, {(2**32 + 6)//7}")
    R("s_mul_i32 s11, s10, 7")
    R("s_sub_u32 s11, s9, s11")
    R("v_lshlrev_b32 v5, 4, v1")
    R("v_and_b32 v3, 15, v1"); R("v_lshrrev_b32 v4, 4, v1")
    R("s_mov_b32 s24, 14336")
    R("s_cmp_eq_u32 s3, 3")
    R("s_cbranch_scc0 LR_a")
    R("v_lshlrev_b32 v3, 1, v1"); R("v_and_b32 v3, 15, v3"); R("v_lshrrev_b32 v4, 3, v1")
    R("s_mov_b32 s24, 896")
    R("v_mov_b32 v6, 0x40000000")
    R("v_cmp_lt_u32 vcc, 31, v1")
    R("s_nop 1")
    R("v_cndmask_b32 v5, v5, v6, vcc")
    R("v_cndmask_b32 v3, v3, v6, vcc")
    R("v_min_u32 v3, 0x10000, v3")
    E.label("LR_a")
    R("v_mul_u32_u24 v7, 896, v3")
    R("v_lshl_add_u32 v7, v4, 3, v7")
    R("s_mul_i32 s13, s8, 1605632")
    R("s_mul_i32 s14, s9, 3584")
    R("s_add_u32 s13, s13, s14")
    R("s_lshl_b32 s14, s3, 10")
    R("s_add_u32 s13, s13, s14")
    R("s_waitcnt lgkmcnt(0)")
    R("s_add_u32 s16, s6, s13"); R("s_addc_u32 s17, s7, 0"); R("s_mov_b32 s18, 1605632"); R("s_mov_b32 s19, 0x20000")
    for h in range(16):
        R(f"s_mov_b32 s15, {h*100352}")
        R(f"buffer_load_dwordx4 v[{8+4*h}:{11+4*h}], v5, s[16:19], s15 offen {cfg.get('rlfl','')}")
    R("s_mul_i32 s13, s8, 100352")
    R("s_add_u32 s20, s4, s13"); R("s_addc_u32 s21, s5, 0"); R("s_mov_b32 s22, 100352"); R("s_mov_b32 s23, 0x20000")
    R("s_mul_i32 s14, s3, 28672")
    R("s_lshl_b32 s15, s11, 7"); R("s_add_u32 s14, s14, s15")
    R("s_lshl_b32 s15, s10, 5"); R("s_add_u32 s14, s14, s15")
    R("s_add_u32 s24, s24, s14")
    for h in range(16):
        R(f"s_waitcnt vmcnt({15-h})")
        for r in range(4):
            src = 8 + 4 * h + r
            if h == 0:
                R(f"v_lshlrev_b32 v{72+2*r}, 16, v{src}"); R(f"v_and_b32 v{73+2*r}, 0xffff0000, v{src}")
            else:
                R(f"v_lshlrev_b32 v80, 16, v{src}"); R(f"v_and_b32 v81, 0xffff0000, v{src}")
                R(f"v_add_f32 v{72+2*r}, v{72+2*r}, v80"); R(f"v_add_f32 v{73+2*r}, v{73+2*r}, v81")
    for r in range(4): R(f"v_cvt_pk_bf16_f32 v{84+r}, v{72+2*r}, v{73+2*r}")
    R("buffer_store_dwordx2 v[84:85], v7, s[20:23], s14 offen")
    R("buffer_store_dwordx2 v[86:87], v7, s[20:23], s24 offen")
    if stamps:
        R("s_waitcnt vmcnt(0)")
        R("s_memrealtime s[24:25]")
        R("s_waitcnt lgkmcnt(0)")
        R("s_add_u32 s16, s6, 0x8100000"); R("s_addc_u32 s17, s7, 0"); R("s_mov_b32 s18, 0x100000"); R("s_mov_b32 s19, 0x20000")
        R("s_lshl_b32 s12, s2, 2"); R("v_mov_b32 v2, s12"); R("v_mov_b32 v3, s24")
        R("v_cmp_eq_u32 vcc, 0, v0")
        R("s_and_saveexec_b64 s[14:15], vcc")
        R("buffer_store_dword v3, v2, s[16:19], 0 offen")
    R("s_waitcnt vmcnt(0)")
    E.label("LR_exit")
    R("s_endpgm")
    E.out.append(""".section .rodata,"a"
.p2align 6
.amdhsa_kernel gqa_main_kernel
  .amdhsa_next_free_vgpr 512
  .amdhsa_next_free_sgpr 102
  .amdhsa_accum_offset 256
  .amdhsa_group_segment_fixed_size 0
  .amdhsa_kernarg_size 64
  .amdhsa_user_sgpr_count 2
  .amdhsa_user_sgpr_kernarg_segment_ptr 1
  .amdhsa_system_sgpr_workgroup_id_x 1
.end_amdhsa_kernel
.p2align 6
.amdhsa_kernel gqa_reduce_kernel
  .amdhsa_next_free_vgpr 88
  .amdhsa_next_free_sgpr 32
  .amdhsa_accum_offset 88
  .amdhsa_group_segment_fixed_size 0
  .amdhsa_kernarg_size 64
  .amdhsa_user_sgpr_count 2
  .amdhsa_user_sgpr_kernarg_segment_ptr 1
  .amdhsa_system_sgpr_workgroup_id_x 1
.end_amdhsa_kernel
""")
    return "\n".join(E.out)

if __name__ == "__main__":
    ap = argparse.ArgumentParser()
    ap.add_argument("-o", default="a16.s")
    ap.add_argument("kv", nargs="*")
    a = ap.parse_args()
    cfg = {}
    for kv in a.kv:
        k, v = kv.split("=", 1)
        try: cfg[k] = eval(v)
        except Exception: cfg[k] = v
    txt = build(cfg)
    open(a.o, "w").write(txt)
```
